```python
import torch

def _softmax(x, axis=-1):
    return torch.softmax(x, dim=axis)
def _gelu(x):
    return torch.nn.functional.gelu(x, approximate="tanh")
def _silu(x):
    return torch.nn.functional.silu(x)
def _sigmoid(x):
    return torch.sigmoid(x)
def _layernorm(x, axis=-1, eps=1e-5):
    m = x.mean(dim=axis, keepdim=True)
    v = x.var(dim=axis, keepdim=True, unbiased=False)
    return (x - m) / torch.sqrt(v + eps)
def _scatter_add(tgt, idx, src, axis=0):
    return tgt.clone().index_add_(axis, idx, src)
def _segment_sum(src, seg, n):
    out = torch.zeros((n,) + src.shape[1:], dtype=src.dtype)
    return out.index_add_(0, seg, src)
def _pad(x, pw):
    flat = tuple(v for pair in reversed(pw) for v in pair)
    return torch.nn.functional.pad(x, flat)

kernel_name = 'parallel_sum__compressed_kv_cla__glu_gated_glu__decode'

def setup_inputs():

    _w = (lambda a: (lambda t: t.to(torch.bfloat16) if t.is_floating_point() else t)(torch.as_tensor(a)))
    def _A_setup():
        B, H, Sq, Sk, D, M = 1, 32, 1, 8192, 128, 576
        Dc = 4 * D
        return {
            "x": _w((lambda *s: torch.randn(*s, dtype=torch.bfloat16) * 0.05)(B, Sq, M)),
            "c_kv": _w((lambda *s: torch.randn(*s, dtype=torch.bfloat16) * 1.6)(B, Sk, Dc)),
            "w_q": _w((lambda *s: torch.randn(*s, dtype=torch.bfloat16) * 3.2)(M, H, D) * (M ** -0.5)),
            "w_uk": _w((lambda *s: torch.randn(*s, dtype=torch.bfloat16) * 3.2)(Dc, H, D) * (Dc ** -0.5)),
            "w_uv": _w((lambda *s: torch.randn(*s, dtype=torch.bfloat16) * 1.6)(Dc, H, D) * (Dc ** -0.5)),
            "w_o": _w((lambda *s: torch.randn(*s, dtype=torch.bfloat16) * 1.6)(H, D, M) * ((H * D) ** -0.5)),
        }
    _A_in = _A_setup()

    def _B_setup():
        B, S, D, F = 1, 1, 576, 4608
        return {
            "x": _w((lambda *s: torch.randn(*s, dtype=torch.bfloat16) * 0.05)(B, S, D)),
            "w_gate": _w((lambda *s: torch.randn(*s, dtype=torch.bfloat16) * 0.2)(D, F)),
            "w_up": _w((lambda *s: torch.randn(*s, dtype=torch.bfloat16) * 0.05)(D, F)),
            "w_down": _w((lambda *s: torch.randn(*s, dtype=torch.bfloat16) * 0.05)(F, D)),
        }
    _B_in = _B_setup()

    return {
        "A_x": _A_in["x"],
        "A_c_kv": _A_in["c_kv"],
        "A_w_q": _A_in["w_q"],
        "A_w_uk": _A_in["w_uk"],
        "A_w_uv": _A_in["w_uv"],
        "A_w_o": _A_in["w_o"],
        "B_x": _B_in["x"],
        "B_w_gate": _B_in["w_gate"],
        "B_w_up": _B_in["w_up"],
        "B_w_down": _B_in["w_down"],
    }

def reference(A_x, A_c_kv, A_w_q, A_w_uk, A_w_uv, A_w_o, B_x, B_w_gate, B_w_up, B_w_down):
    def _A_ref(x, c_kv, w_q, w_uk, w_uv, w_o):
        B, Sq, M = x.shape[0], x.shape[1], x.shape[2]
        Sk = c_kv.shape[1]
        H, D = w_q.shape[1], w_q.shape[2]
        q = torch.einsum("bqm,mhd->bhqd", x, w_q)
        k = torch.einsum("bkc,chd->bhkd", c_kv, w_uk)
        v = torch.einsum("bkc,chd->bhkd", c_kv, w_uv)
        scores = torch.einsum("bhqd,bhkd->bhqk", q, k) * (D ** -0.5)
        off = Sk - Sq
        qi = torch.arange(Sq)[:, None]
        kj = torch.arange(Sk)[None, :]
        cmask = kj <= (qi + off)
        scores = torch.where(cmask[None, None], scores, -1e9)
        p = _softmax(scores, axis=-1)
        ctx = torch.einsum("bhqk,bhkd->bhqd", p, v)
        return torch.einsum("bhqd,hdm->bqm", ctx, w_o)

    def _B_ref(x, w_gate, w_up, w_down):
        g = torch.einsum("bsd,df->bsf", x, w_gate)
        u = torch.einsum("bsd,df->bsf", x, w_up)
        h = _sigmoid(g) * u
        return torch.einsum("bsf,fd->bsd", h, w_down)

    x = A_x
    xn = _layernorm(x, axis=-1)
    return x + _A_ref(xn, A_c_kv, A_w_q, A_w_uk, A_w_uv, A_w_o) + _B_ref(xn, B_w_gate, B_w_up, B_w_down)
```

```python
import re

def _regs(tok):
    tok = tok.strip()
    neg = tok.lstrip("-")
    if neg.startswith("abs(") or neg.startswith("|"):
        neg = neg.replace("abs(", "").replace(")", "").replace("|", "")
    tok = neg
    m = re.fullmatch(r"([vas])(\d+)", tok)
    if m: return {(m.group(1), int(m.group(2)))}
    m = re.fullmatch(r"([vas])\[(\d+):(\d+)\]", tok)
    if m: return {(m.group(1), i) for i in range(int(m.group(2)), int(m.group(3)) + 1)}
    if tok == "vcc": return {("s", "vcc")}
    if tok in ("vcc_lo", "vcc_hi"): return {("s", "vcc")}
    if tok == "exec": return {("s", "exec")}
    if tok == "m0": return {("s", "m0")}
    return set()

TRANS = ("v_exp_f32", "v_log_f32", "v_rcp_f32", "v_rsq_f32", "v_sqrt_f32", "v_sin_f32", "v_cos_f32")

class I:
    def __init__(self, text):
        self.text = text
        t = text.split(";")[0].strip()
        self.label = t[:-1] if t.endswith(":") else None
        self.directive = t.startswith(".")
        self.mn = ""; self.w = set(); self.r = set(); self.kind = "other"
        self.dpp = False; self.mf = None; self.store_data = set(); self.lds_dma = False; self.target = None
        if self.label or self.directive or not t: return
        parts = t.split(None, 1)
        mn = self.mn = parts[0]
        rest = parts[1] if len(parts) > 1 else ""
        ops = []; depth = 0; cur = ""
        for ch in rest:
            if ch == "[": depth += 1
            if ch == "]": depth -= 1
            if ch == "," and depth == 0: ops.append(cur.strip()); cur = ""
            else: cur += ch
        if cur.strip(): ops.append(cur.strip())
        mods = ""
        if ops:
            last = ops[-1].split(None, 1)
            ops[-1] = last[0]; mods = last[1] if len(last) > 1 else ""
        self.ops = ops; self.mods = mods
        R = [_regs(o) for o in ops]
        U = lambda l: set().union(*l) if l else set()
        if mn.startswith("v_mfma"):
            self.kind = "mfma"; self.w = R[0]; self.r = U(R[1:]); self.mf = (R[0], R[1], R[2], R[3])
        elif mn.startswith("v_"):
            self.kind = "valu"; self.dpp = "_dpp" in mn
            if mn.startswith("v_permlane"):
                self.w = R[0] | R[1]; self.r = R[0] | R[1]
            elif mn.startswith(("v_add_co", "v_addc_co", "v_sub_co", "v_subb_co")):
                self.w = R[0] | R[1]; self.r = U(R[2:])
            else:
                self.w = R[0]; self.r = U(R[1:])
                if mn.startswith(("v_fmac", "v_dot2c")) or self.dpp: self.r |= R[0]
                if mn.startswith("v_cndmask") and len(ops) == 3: self.r |= {("s", "vcc")}
        elif mn.startswith("ds_"):
            self.kind = "ds"
            if mn.startswith(("ds_read", "ds_bpermute", "ds_permute", "ds_swizzle")): self.w = R[0]; self.r = U(R[1:])
            else: self.r = U(R)
        elif mn.startswith(("buffer_", "global_")):
            self.kind = "vmem"
            islds = " lds" in (" " + mods) or "_lds_" in mn
            if "load" in mn and not islds: self.w = R[0]; self.r = U(R[1:])
            elif "atomic" in mn: self.r = U(R); self.w = R[0] if "sc0" in mods else set()
            else:
                self.r = U(R)
                if islds: self.lds_dma = True; self.r |= {("s", "m0")}
                if "store" in mn and ("x3" in mn or "x4" in mn):
                    self.store_data = R[0] if mn.startswith("buffer_") else R[1]
        elif mn.startswith("s_"):
            self.kind = "salu"
            if mn.startswith(("s_cbranch", "s_branch")): self.target = ops[0]
            elif mn.startswith(("s_cmp", "s_bitcmp", "s_waitcnt", "s_nop", "s_barrier", "s_endpgm", "s_sleep", "s_setprio")): self.r = U(R)
            else:
                self.w = R[0]; self.r = U(R[1:])
                if "saveexec" in mn: self.w |= {("s", "exec")}
    def states(self):
        if self.label or self.directive or not self.mn: return 0
        if self.mn == "s_nop": return int(self.ops[0], 0) + 1
        return 1

def need(p, c):
    n = 0
    vg = lambda s: {x for x in s if x[0] in "va"}
    sg = lambda s: {x for x in s if x[0] == "s"}
    if p.kind == "valu":
        pw = vg(p.w); ps = sg(p.w)
        if c.kind == "mfma" and pw & c.r: n = max(n, 2)
        if c.kind == "valu":
            if (c.dpp or c.mn.startswith("v_permlane")) and pw & c.r: n = max(n, 2)
            if c.mn.startswith(("v_readlane", "v_readfirstlane")) and pw & c.r: n = max(n, 1)
            if p.mn.startswith(TRANS) and pw & c.r: n = max(n, 1)
            if ps & c.r: n = max(n, 4 if c.mn.startswith(("v_readlane", "v_writelane")) else 2)
        if c.kind == "vmem" and ps & c.r: n = max(n, 5)
        if c.kind == "salu" and ps & c.r: n = max(n, 1)
    if p.kind == "mfma":
        D = p.mf[0]
        assert "16x16" in p.mn, "hazard table covers 4-pass MFMA only"
        if c.kind == "mfma":
            if D & (c.mf[1] | c.mf[2]): n = max(n, 8)
            same = D == c.mf[3] and p.mn == c.mn
            if D & c.mf[3] and not same: n = max(n, 6)
            if D & c.mf[0] and not (D == c.mf[3]): n = max(n, 8)
        elif c.kind in ("valu", "ds", "vmem"):
            if D & (c.r | c.w): n = max(n, 8)
            if c.kind == "valu" and p.mf[3] & c.w: n = max(n, 3)
    if p.kind == "salu" and ("s", "m0") in p.w and c.lds_dma: n = max(n, 1)
    if p.store_data and c.kind in ("valu", "mfma") and p.store_data & c.w: n = max(n, 2)
    if p.store_data and c.kind in ("ds", "vmem") and p.store_data & c.w: n = max(n, 1)
    return n

class Asm:
    def __init__(self): self.L = []; self.uid = 0
    def __call__(self, s):
        for line in s.split("\n"):
            if line.strip(): self.L.append(line.strip())
    def lab(self, base):
        self.uid += 1; return f"L_{base}_{self.uid}"
    def finish(self, verbose=False):
        out = []; state = []; snaps = {}; pads = 0
        for t in self.L:
            i = I(t)
            if i.label:
                if i.label in snaps: state = state + snaps.pop(i.label)
                out.append(t); continue
            if i.directive or not i.mn: out.append(t); continue
            req = 0
            for p, age in state: req = max(req, need(p, i) - age)
            if req > 0:
                out.append(f"s_nop {req-1}"); pads += 1
                state = [(p, a + req) for p, a in state]
            out.append(t)
            st = i.states()
            state = [(p, a + st) for p, a in state if a + st < 12] + [(i, 0)]
            if i.target:
                snaps.setdefault(i.target, []); snaps[i.target] += list(state)
                if i.mn == "s_branch": state = []
            if i.mn == "s_endpgm": state = []
        if verbose: print("hazard pads inserted:", pads)
        return "\n".join(("    " + l if not l.endswith(":") and not l.startswith(".") else l) for l in out) + "\n"
```

```python
import sys
from asmlib import Asm

NAME = "parallel_sum__compressed_kv_cla__glu_gated_glu__decode_kernel"

DEF = dict(
    nt="nt",
    stamps=False,
    prefetch_code=True,
    spin_cap=1 << 18,
    sleep=0,
    p_win1=None, p_n1=0,
    h2_pos=8,
    s_win=None,
    down_pre=5,
)

WS_R = 0
WS_QP = 0x10000
WS_QA = 0x20000
WS_CP = 0x30000
WS_ML = 0x40000
WS_OP = 0x60000
WS_GU = 0x100000
WS_PART = 0x200000
WS_ST = 0x400000
WS_SIZE = 0x500000
TAGK = 0x9E3779B9

S_XN = 0; S_ZERO = 1152; S_GUL = 1280; S_HB = 3584
S_WQ = 4608; S_WUK = 41472; S_GATE = 74240; S_UP = 115712; S_DOWN = 4608
CKS = 1056
P_CK = 0; P_QB = 135168; P_PB = 152576; P_PF = 154752; P_MX = 158848; P_FR = 159424
P_WUV = 0; P_WO = 32768; P_TB = 73728
LDS = 163840

SCALE2 = 1.4426950408889634 / (128 ** 0.5)
import struct
def f2u(x): return struct.unpack("<I", struct.pack("<f", x))[0]

class Regs:
    def __init__(self, start): self.n = start; self.d = {}
    def __call__(self, name, cnt=1, align=1):
        if cnt > 1: align = max(align, 2)
        self.n = (self.n + align - 1) // align * align
        self.d[name] = self.n; self.n += cnt
        assert self.n <= 128, f"out of arch VGPRs at {name}"
        return self.d[name]

def vr(b, n=1): return f"v{b}" if n == 1 else f"v[{b}:{b+n-1}]"
def ar(b, n=1): return f"a{b}" if n == 1 else f"a[{b}:{b+n-1}]"

def generate(**kw):
    cfg = dict(DEF); cfg.update(kw)
    NT = cfg["nt"]
    A = Asm()
    stamp_n = [0]
    def stamp(i):
        if not cfg["stamps"]: return
        A("s_memrealtime s[42:43]"); A("s_waitcnt lgkmcnt(0)"); A(f"s_mov_b32 s{86+i}, s42")
    def srd(b, p, size):
        A(f"s_mov_b32 s{b}, s{p}"); A(f"s_mov_b32 s{b+1}, s{p+1}"); A(f"s_mov_b32 s{b+2}, {size}"); A(f"s_mov_b32 s{b+3}, 0x20000")
    def dma(voff, srdb, soff, m0, flags=NT):
        A(f"s_mov_b32 m0, {m0}")
        A(f"buffer_load_dwordx4 v{voff}, s[{srdb}:{srdb+3}], {soff} offen {flags} lds")
    def check_f32(bad, regs, first=True):
        for gi, b in enumerate(regs):
            for j in range(4):
                if first and gi == 0 and j == 0: A(f"v_xor_b32 v{bad}, s8, v{b}")
                else: A(f"v_bitop3_b32 v{bad}, v{b+j}, s{8+j}, v{bad} bitop3:0xbe")
    def poll(loads, check, base_exec="-1", wqm=False, first_wait=0, between=None):
        L = A.lab("poll"); D = A.lab("got")
        if base_exec != "-1": A(f"s_mov_b64 exec, {base_exec}")
        loads()
        if between is not None:
            if base_exec != "-1": A("s_mov_b64 exec, -1")
            between()
            if base_exec != "-1": A(f"s_mov_b64 exec, {base_exec}")
        A(f"s_waitcnt vmcnt({first_wait})")
        check()
        if wqm: A("s_wqm_b64 vcc, vcc")
        A("s_and_b64 exec, exec, vcc")
        A(f"s_cbranch_scc0 {D}")
        A("s_mov_b32 s14, 0")
        A(f"{L}:")
        if cfg["sleep"]: A(f"s_sleep {cfg['sleep']}")
        loads()
        A("s_waitcnt vmcnt(0)")
        check()
        if wqm: A("s_wqm_b64 vcc, vcc")
        A("s_add_u32 s14, s14, 1"); A(f"s_cmp_lt_u32 s14, {cfg['spin_cap']}"); A(f"s_cbranch_scc0 {D}")
        A("s_and_b64 exec, exec, vcc")
        A(f"s_cbranch_scc1 {L}")
        A(f"{D}:")
        A("s_mov_b64 exec, -1")
    def allreduce_groups(v, t, op):
        A(f"v_mov_b32 v{t}, v{v}"); A(f"v_permlane16_swap_b32 v{v}, v{t}"); A(f"{op} v{v}, v{v}, v{t}")
        A(f"v_mov_b32 v{t}, v{v}"); A(f"v_permlane32_swap_b32 v{v}, v{t}"); A(f"{op} v{v}, v{v}, v{t}")
    def allreduce_row(v, op):
        for r in (8, 4, 2, 1): A(f"{op}_dpp v{v}, v{v}, v{v} row_ror:{r} row_mask:0xf bank_mask:0xf")
    def select4(d, srcs):
        for g in (1, 2, 3): A(f"v_mov_b32_dpp v{d}, v{srcs[g]} quad_perm:[0,1,2,3] row_mask:{hex(1<<g)} bank_mask:0xf")
    def write_stamps():
        if not cfg["stamps"]: return
        D = A.lab("nst")
        A("s_cmp_lg_u32 s3, 0"); A(f"s_cbranch_scc1 {D}")
        A("s_mov_b64 exec, 1"); A("v_mov_b32 v2, 0"); A("s_lshl_b32 s12, s2, 6"); A(f"s_add_u32 s12, s12, {WS_ST}")
        for q in range(4):
            for e in range(4): A(f"v_mov_b32 v{4+e}, s{86+4*q+e}")
            A(f"buffer_store_dwordx4 v[4:7], v2, s[44:47], s12 offen offset:{16*q}")
            A("s_nop 1")
        A(f"{D}:")

    A(f"{NAME}:")
    if cfg["stamps"]:
        for i in range(16): A(f"s_mov_b32 s{86+i}, 0")
        stamp(0)
    A("s_cmp_ge_u32 s2, 256"); A("s_cbranch_scc1 L_exit")
    A("s_load_dwordx16 s[16:31], s[0:1], 0"); A("s_load_dwordx8 s[32:39], s[0:1], 64"); A("s_load_dwordx2 s[40:41], s[0:1], 96")
    A("v_lshrrev_b32 v1, 6, v0"); A("s_and_b32 s4, s2, 7"); A("v_readfirstlane_b32 s3, v1")
    A("s_lshr_b32 s5, s2, 3"); A("s_and_b32 s5, s5, 15")
    A("v_and_b32 v1, 63, v0")
    A("v_and_b32 v2, 15, v1")
    A("v_lshrrev_b32 v3, 4, v1")
    LANE, N, G = 1, 2, 3
    A("s_lshr_b32 s72, s5, 2"); A("s_lshl_b32 s73, s4, 2"); A("s_add_u32 s72, s72, s73")
    A("s_and_b32 s73, s5, 3")
    A("s_cmp_ge_u32 s2, 128"); A("s_cbranch_scc1 L_P")

    def common_regs(R):
        R("tq"); R("t0"); R("t1"); R("offq"); R("trq"); R("offd")
        R("trb", 4); R("bad"); R("tagb")
    def addr_q_style(R):
        r = R.d
        A("s_and_b32 s12, s3, 1"); A("s_lshl_b32 s12, s12, 2")
        A(f"v_add_u32 v{r['t0']}, s12, v{G}"); A(f"v_lshlrev_b32 v{r['t0']}, 1, v{r['t0']}")
        A(f"v_xor_b32 v{r['t0']}, v{r['t0']}, v{N}"); A(f"v_lshlrev_b32 v{r['t0']}, 4, v{r['t0']}")
        A(f"v_lshl_add_u32 v{r['offq']}, v{G}, 13, v{r['t0']}")
    def addr_trq(R, base):
        r = R.d
        A(f"v_lshrrev_b32 v{r['t0']}, 2, v{N}")
        A(f"v_and_b32 v{r['t1']}, 1, v{G}"); A(f"v_lshl_add_u32 v{r['t1']}, v{r['t1']}, 2, v{r['t0']}")
        A(f"v_lshlrev_b32 v{r['t1']}, 1, v{r['t1']}")
        A(f"v_bfe_u32 v{r['tq']}, v{N}, 1, 1"); A("s_lshl_b32 s12, s3, 1"); A(f"v_add_u32 v{r['tq']}, s12, v{r['tq']}")
        A(f"v_xor_b32 v{r['t1']}, v{r['t1']}, v{r['tq']}"); A(f"v_lshlrev_b32 v{r['t1']}, 4, v{r['t1']}")
        A(f"v_lshl_add_u32 v{r['t1']}, v{r['t0']}, 8, v{r['t1']}")
        A(f"v_lshl_add_u32 v{r['t1']}, v{G}, 10, v{r['t1']}")
        A(f"v_and_b32 v{r['t0']}, 1, v{N}"); A(f"v_lshl_add_u32 v{r['trq']}, v{r['t0']}, 3, v{r['t1']}")
        if base: A(f"v_add_u32 v{r['trq']}, {base}, v{r['trq']}")
    def addr_lc_src(dst, R, stride):
        r = R.d
        A(f"v_lshrrev_b32 v{r['t0']}, 3, v{LANE}"); A(f"v_and_b32 v{r['t1']}, 6, v{r['t0']}")
        A(f"v_and_b32 v{dst}, 7, v{LANE}"); A(f"v_xor_b32 v{dst}, v{dst}, v{r['t1']}"); A(f"v_lshlrev_b32 v{dst}, 4, v{dst}")
        A(f"v_mul_u32_u24 v{r['t0']}, {stride}, v{r['t0']}"); A(f"v_add_u32 v{dst}, v{dst}, v{r['t0']}")
    def addr_lc_tr(R, trb, trc=None):
        r = R.d
        A(f"v_lshrrev_b32 v{r['t0']}, 2, v{N}")
        A(f"v_bfe_u32 v{r['tq']}, v{N}, 1, 1")
        if trc is not None:
            A(f"v_and_b32 v{r['t1']}, 6, v{r['t0']}"); A(f"v_xor_b32 v{r['t1']}, v{r['t1']}, v{r['tq']}")
            A(f"v_lshlrev_b32 v{r['t1']}, 4, v{r['t1']}"); A(f"v_lshl_add_u32 v{r['t1']}, v{r['t0']}, 7, v{r['t1']}")
            A(f"v_and_b32 v{trc}, 1, v{N}"); A(f"v_lshl_add_u32 v{trc}, v{trc}, 3, v{r['t1']}")
            A(f"v_add_u32 v{trc}, 4096, v{trc}")
        A(f"v_and_b32 v{r['t1']}, 1, v{G}"); A(f"v_lshl_add_u32 v{r['t0']}, v{r['t1']}, 2, v{r['t0']}")
        A(f"v_and_b32 v{r['t1']}, 6, v{r['t0']}"); A(f"v_xor_b32 v{r['t1']}, v{r['t1']}, v{r['tq']}")
        A(f"v_lshlrev_b32 v{r['t1']}, 4, v{r['t1']}"); A(f"v_lshl_add_u32 v{r['t1']}, v{r['t0']}, 7, v{r['t1']}")
        A(f"v_lshrrev_b32 v{r['t0']}, 1, v{G}"); A(f"v_lshl_add_u32 v{r['t1']}, v{r['t0']}, 10, v{r['t1']}")
        A(f"v_and_b32 v{trb}, 1, v{N}"); A(f"v_lshl_add_u32 v{trb}, v{trb}, 3, v{r['t1']}")
    def tags(R):
        r = R.d
        A(f"s_add_u32 s6, s6, {hex(TAGK)}")
        for j in range(4): A(f"s_bfe_u32 s{8+j}, s6, {hex((8 << 16) | (8*j))}")
        A(f"v_and_b32 v{r['tagb']}, 3, v{LANE}"); A(f"v_lshlrev_b32 v{r['tagb']}, 3, v{r['tagb']}")
        A(f"v_lshrrev_b32 v{r['tagb']}, v{r['tagb']}, s6"); A(f"v_and_b32 v{r['tagb']}, 0xff, v{r['tagb']}")
        A("s_mov_b32 s7, 0xffffff00")
    def tag_dword(v, R): A(f"v_and_or_b32 v{v}, v{v}, s7, v{R.d['tagb']}")
    def code_prefetch(lab0, lab1, dst, t):
        if not cfg["prefetch_code"]: return
        D = A.lab("npf"); PC = A.lab("pc")
        A("s_cmp_lg_u32 s3, 7"); A(f"s_cbranch_scc1 {D}")
        A("s_getpc_b64 s[12:13]"); A(f"{PC}:")
        A(f"s_add_u32 s12, s12, {lab0}-{PC}"); A("s_addc_u32 s13, s13, 0")
        A("s_lshl_b32 s15, s5, 10"); A(f"v_lshl_add_u32 v{t}, v{LANE}, 4, s15")
        A(f"v_min_u32 v{t}, {lab1}-{lab0}-16, v{t}")
        A(f"global_load_dwordx4 v[{dst}:{dst+3}], v{t}, s[12:13]")
        A(f"{D}:")

    R = Regs(4); common_regs(R); r = R.d
    R("offk"); R("offg"); R("trc", 4); R("xa"); R("xg"); R("xz")
    R("acc"); R("acc2")
    R("fa", 18, 2); R("fb", 24, 4); R("d", 16, 4); R("q", 8, 4); R("qa", 4, 4); R("kf", 16, 4)
    R("sa"); R("sb"); R("sc")
    r["x"] = r["kf"]; r["xf"] = r["kf"] + 5
    addr_q_style(R)
    A(f"v_lshlrev_b32 v{r['sa']}, 2, v{LANE}")
    A("s_waitcnt lgkmcnt(0)")
    A("s_load_dword s6, s[40:41], 0")
    srd(48, 16, 1152); srd(52, 20, 576*8192)
    code_prefetch("L_S0", "L_S1", r['d'], r['t0'])
    A("L_S0:")
    A("s_mul_i32 s74, s73, 144"); A("s_lshl_b32 s12, s3, 2"); A("s_add_u32 s74, s74, s12"); A("s_lshl_b32 s74, s74, 13")
    A("s_lshl_b32 s75, s72, 8"); A("s_add_u32 s74, s74, s75")
    A("s_lshl_b32 s76, s3, 10")
    sk = A.lab("sk")
    A("s_cmp_ge_u32 s3, 4"); A(f"s_cbranch_scc1 {sk}")
    A(f"s_add_u32 s12, s74, {4*32*8192}"); A(f"s_add_u32 s13, s76, {S_WQ + 32*1024}")
    dma(r['offq'], 52, "s12", "s13")
    A(f"{sk}:")
    for i in range(5): A(f"buffer_load_dword v{r['x']+i}, v{r['sa']}, s[48:51], 0 offen offset:{256*i}")
    for i in range(4):
        A(f"s_add_u32 s13, s76, {S_WQ + i*8192}")
        dma(r['offq'], 52, "s74", "s13")
        if i < 3: A(f"s_add_u32 s74, s74, {32*8192}")
    srd(44, 40, WS_SIZE); srd(56, 22, 512*8192); srd(60, 30, 576*9216); srd(64, 32, 576*9216); srd(68, 34, 4608*1152)
    addr_trq(R, S_WQ)
    A("s_waitcnt vmcnt(4)")
    xf = r['xf']
    for i in range(5):
        A(f"v_lshlrev_b32 v{xf+2*i}, 16, v{r['x']+i}"); A(f"v_and_b32 v{xf+2*i+1}, 0xffff0000, v{r['x']+i}")
    A(f"v_add_f32 v{r['acc']}, v{xf}, v{xf+1}")
    for i in range(2, 10): A(f"v_add_f32 v{r['acc']}, v{r['acc']}, v{xf+i}")
    allreduce_row(r['acc'], "v_add_f32"); allreduce_groups(r['acc'], r['t0'], "v_add_f32")
    A(f"v_mul_f32 v{r['acc']}, {hex(f2u(1.0/576))}, v{r['acc']}")
    for i in range(10): A(f"v_sub_f32 v{xf+i}, v{xf+i}, v{r['acc']}")
    A(f"v_cmp_gt_u32 vcc, 32, v{LANE}")
    A(f"v_cndmask_b32 v{xf+8}, 0, v{xf+8}, vcc"); A(f"v_cndmask_b32 v{xf+9}, 0, v{xf+9}, vcc")
    A(f"v_mul_f32 v{r['acc2']}, v{xf}, v{xf}")
    for i in range(1, 10): A(f"v_fmac_f32 v{r['acc2']}, v{xf+i}, v{xf+i}")
    allreduce_row(r['acc2'], "v_add_f32"); allreduce_groups(r['acc2'], r['t0'], "v_add_f32")
    A(f"v_mov_b32 v{r['t0']}, {hex(f2u(1e-5))}")
    A(f"v_fmac_f32 v{r['t0']}, {hex(f2u(1.0/576))}, v{r['acc2']}")
    A(f"v_rsq_f32 v{r['t0']}, v{r['t0']}")
    for i in range(10): A(f"v_mul_f32 v{xf+i}, v{xf+i}, v{r['t0']}")
    for i in range(5): A(f"v_cvt_pk_bf16_f32 v{r['x']+i}, v{xf+2*i}, v{xf+2*i+1}")
    for i in range(5): A(f"ds_write_b32 v{r['sa']}, v{r['x']+i} offset:{S_XN + 256*i}")
    A(f"v_xor_b32 v{r['t0']}, v{G}, v{N}"); A(f"v_lshlrev_b32 v{r['t0']}, 4, v{r['t0']}")
    A(f"v_lshl_add_u32 v{r['offk']}, v{G}, 13, v{r['t0']}")
    A("s_lshl_b32 s74, s73, 7"); A("s_lshl_b32 s12, s3, 4"); A("s_add_u32 s74, s74, s12"); A("s_lshl_b32 s74, s74, 13"); A("s_add_u32 s74, s74, s75")
    A("s_lshl_b32 s77, s3, 12")
    for i in range(4):
        A(f"s_add_u32 s13, s77, {S_WUK + i*1024}")
        dma(r['offk'], 56, "s74", "s13")
        if i < 3:
            A(f"s_add_u32 s74, s74, {4*8192}")
            A(f"v_xor_b32 v{r['offk']}, {((i ^ (i+1)) << 6)}, v{r['offk']}")
    A("s_waitcnt lgkmcnt(0)")
    tags(R)
    A("s_mul_i32 s12, s73, 288"); A(f"v_lshl_add_u32 v{r['xa']}, v{G}, 3, s12")
    for q in range(9): A(f"ds_read_b64 {vr(r['fa']+2*q, 2)}, v{r['xa']} offset:{S_XN + 32*q}")
    addr_lc_src(r['offg'], R, 9216); addr_lc_src(r['offd'], R, 1152)
    addr_lc_tr(R, r['trb'], r['trc'])
    stamp(1)
    A("s_waitcnt vmcnt(4)"); A("s_barrier")
    stamp(2)
    for q in range(9): A(f"ds_read_b64_tr_b16 {vr(r['fb']+2*q, 2)}, v{r['trq']} offset:{4096*q}")
    d = r['d']
    for v in range(4):
        A(f"s_waitcnt lgkmcnt({7-2*v})")
        A(f"v_mfma_f32_16x16x32_bf16 {vr(d,4)}, {vr(r['fa']+4*v,4)}, {vr(r['fb']+4*v,4)}, {'0' if v == 0 else vr(d,4)}")
    A("s_waitcnt lgkmcnt(0)")
    A(f"v_mfma_f32_16x16x16_bf16 {vr(d+4,4)}, {vr(r['fa']+16,2)}, {vr(r['fb']+16,2)}, 0")
    A("s_lshl_b32 s78, s72, 11"); A("s_lshl_b32 s12, s73, 9"); A("s_add_u32 s12, s12, s78"); A("s_lshl_b32 s13, s3, 6"); A("s_add_u32 s12, s12, s13")
    A(f"s_add_u32 s12, s12, {WS_QP}")
    A(f"v_add_f32 v{d}, v{d}, v{d+4}")
    tag_dword(d, R)
    A("s_mov_b64 exec, 0xffff")
    A(f"buffer_store_dword v{d}, v{r['sa']}, s[44:47], s12 offen sc1")
    A("s_mov_b64 exec, -1")
    stamp(3)
    A(f"v_and_b32 v{r['t0']}, 3, v{N}"); A(f"v_lshlrev_b32 v{r['t0']}, 9, v{r['t0']}")
    A(f"v_lshrrev_b32 v{r['t1']}, 2, v{N}"); A(f"v_lshl_add_u32 v{r['t0']}, v{r['t1']}, 7, v{r['t0']}")
    A(f"v_lshl_add_u32 v{r['sb']}, v{G}, 5, v{r['t0']}")
    A(f"s_add_u32 s79, s78, {WS_QP}")
    def ld():
        A(f"buffer_load_dwordx4 {vr(r['q'],4)}, v{r['sb']}, s[44:47], s79 offen sc1")
        A(f"buffer_load_dwordx4 {vr(r['q']+4,4)}, v{r['sb']}, s[44:47], s79 offen offset:16 sc1")
    def ck():
        check_f32(r['bad'], [r['q'], r['q']+4]); A(f"v_and_b32 v{r['bad']}, 0xff, v{r['bad']}"); A(f"v_cmp_ne_u32 vcc, 0, v{r['bad']}")
    def bt():
        A(f"v_xor_b32 v{r['t0']}, v{G}, v{N}"); A(f"v_lshlrev_b32 v{r['t0']}, 4, v{r['t0']}")
        A(f"v_lshl_add_u32 v{r['t0']}, v{N}, 8, v{r['t0']}"); A(f"v_add_u32 v{r['t0']}, s77, v{r['t0']}")
        A("s_waitcnt vmcnt(3)")
        for v in range(4):
            A(f"ds_read_b128 {vr(r['kf']+4*v,4)}, v{r['t0']} offset:{S_WUK}")
            if v < 3: A(f"v_xor_b32 v{r['t0']}, {((v ^ (v+1)) << 6)}, v{r['t0']}")
    poll(ld, ck, between=bt)
    stamp(4)
    for e in range(8): A(f"v_and_b32 v{r['q']+e}, s7, v{r['q']+e}")
    for e in range(4): A(f"v_cvt_pk_bf16_f32 v{r['qa']+e}, v{r['q']+2*e}, v{r['q']+2*e+1}")
    A("s_waitcnt lgkmcnt(0)")
    for v in range(4): A(f"v_mfma_f32_16x16x32_bf16 {vr(d+4*v,4)}, {vr(r['qa'],4)}, {vr(r['kf']+4*v,4)}, 0")
    A("s_lshl_b32 s12, s73, 9"); A("s_add_u32 s12, s12, s78"); A("s_lshl_b32 s13, s3, 6"); A("s_add_u32 s12, s12, s13"); A(f"s_add_u32 s12, s12, {WS_QA}")
    for v in range(4):
        A(f"v_add_f32 v{d+4*v}, v{d+4*v}, v{d+4*v+1}"); A(f"v_add_f32 v{d+4*v+2}, v{d+4*v+2}, v{d+4*v+3}"); A(f"v_add_f32 v{d+4*v}, v{d+4*v}, v{d+4*v+2}")
    select4(d, [d, d+4, d+8, d+12])
    allreduce_groups(d, r['t0'], "v_add_f32")
    tag_dword(d, R)
    A("s_mov_b64 exec, 0xffff")
    A(f"buffer_store_dword v{d}, v{r['sa']}, s[44:47], s12 offen sc1")
    A("s_mov_b64 exec, -1")
    stamp(5)
    A("s_mul_i32 s74, s5, 36*9216"); A("s_mul_i32 s12, s4, 1152"); A("s_add_u32 s74, s74, s12")
    A("s_and_b32 s80, s3, 3"); A("s_lshr_b32 s81, s3, 2")
    A("s_mul_i32 s82, s81, 41472"); A(f"s_add_u32 s82, s82, {S_GATE + 8*4608}")
    up9 = A.lab("up9"); j9 = A.lab("j9")
    A("s_mul_i32 s12, s80, 8*9216"); A("s_add_u32 s12, s12, s74"); A("s_add_u32 s12, s12, 1024")
    A("s_lshl_b32 s13, s80, 10"); A("s_add_u32 s13, s13, s82")
    A(f"s_add_u32 s15, s74, {32*9216 + 1024}"); A("s_add_u32 s83, s82, 4096")
    A("s_cmp_lg_u32 s81, 0"); A(f"s_cbranch_scc1 {up9}")
    for sb_, nxt in ((60, j9), (64, None)):
        sk = A.lab("sk")
        dma(r['offg'], sb_, "s12", "s13")
        A("s_cmp_lg_u32 s80, 0"); A(f"s_cbranch_scc1 {sk}")
        A("s_mov_b32 exec_hi, 0"); dma(r['offg'], sb_, "s15", "s83"); A("s_mov_b64 exec, -1")
        A(f"{sk}:")
        if nxt: A(f"s_branch {nxt}"); A(f"{up9}:")
    A(f"{j9}:")
    A("s_lshl_b32 s12, s3, 7"); A("s_add_u32 s74, s74, s12")
    A("s_mul_i32 s76, s3, 4608")
    cnt = 0
    for mat, (sb_, base) in enumerate(((60, S_GATE), (64, S_UP))):
        for b in range(5):
            if cfg["s_win"] is not None and cnt >= cfg["s_win"]: A(f"s_waitcnt vmcnt({cfg['s_win']-1})")
            A(f"s_add_u32 s12, s74, {b*8*9216}"); A(f"s_add_u32 s13, s76, {base + b*1024}")
            if b == 4: A("s_mov_b32 exec_hi, 0")
            dma(r['offg'], sb_, "s12", "s13")
            if b == 4: A("s_mov_b64 exec, -1")
            cnt += 1
    A("s_mul_i32 s12, s5, 72"); A(f"v_lshl_add_u32 v{r['xg']}, v{G}, 3, s12")
    A(f"v_mov_b32 v{r['xz']}, {S_ZERO - S_XN}"); A("s_add_u32 s12, s12, 64"); A(f"v_mov_b32 v{r['t0']}, s12")
    A(f"v_cmp_gt_u32 vcc, 16, v{LANE}"); A(f"v_cndmask_b32 v{r['xz']}, v{r['xz']}, v{r['t0']}, vcc")
    A(f"ds_read_b64 {vr(r['fa'],2)}, v{r['xg']} offset:{S_XN}"); A(f"ds_read_b64 {vr(r['fa']+2,2)}, v{r['xg']} offset:{S_XN+32}")
    A(f"ds_read_b64 {vr(r['fa']+4,2)}, v{r['xz']} offset:{S_XN}")
    def gu_addr(dst, fexpr_s):
        A(f"v_add_u32 v{r['t0']}, {fexpr_s}, v{LANE}")
        A(f"v_mul_u32_u24 v{r['t1']}, 1821, v{r['t0']}"); A(f"v_lshrrev_b32 v{r['t1']}, 16, v{r['t1']}")
        A(f"v_mul_u32_u24 v{dst}, 36, v{r['t1']}"); A(f"v_sub_u32 v{r['t0']}, v{r['t0']}, v{dst}")
        A(f"v_lshlrev_b32 v{r['t0']}, 2, v{r['t0']}"); A(f"v_lshl_add_u32 v{dst}, v{r['t1']}, 13, v{r['t0']}")
    A("s_lshl_b32 s12, s3, 6"); gu_addr(r['sb'], "s12")
    A("s_lshl_b32 s12, s80, 4"); A("s_add_u32 s12, s12, 512"); gu_addr(r['sc'], "s12")
    A("s_lshl_b32 s79, s4, 17"); A("s_lshl_b32 s12, s5, 9"); A("s_add_u32 s79, s79, s12"); A(f"s_add_u32 s79, s79, {WS_GU}")
    A(f"s_add_u32 s77, s76, {S_GATE}")
    for b_ in (r['trb'], r['trc']):
        A(f"v_add_u32 v{b_}, s77, v{b_}")
        for t in (1, 2, 3): A(f"v_xor_b32 v{b_+t}, {t << 5}, v{b_}")
    fb = r['fb']; fa = r['fa']
    def lc_column(base, extra_k):
        for t in range(4):
            A(f"ds_read_b64_tr_b16 {vr(fb+4*t,2)}, v{r['trb']+t} offset:{base}")
            A(f"ds_read_b64_tr_b16 {vr(fb+4*t+2,2)}, v{r['trb']+t} offset:{base+2048}")
            if extra_k: A(f"ds_read_b64_tr_b16 {vr(fb+16+2*t,2)}, v{r['trc']+t} offset:{base}")
        per = 3 if extra_k else 2
        for t in range(4):
            A(f"s_waitcnt lgkmcnt({per*(3-t)})")
            A(f"v_mfma_f32_16x16x32_bf16 {vr(d+4*t,4)}, {vr(fa,4)}, {vr(fb+4*t,4)}, 0")
        if extra_k:
            for t in range(4): A(f"v_mfma_f32_16x16x16_bf16 {vr(d+4*t,4)}, {vr(fa+4,2)}, {vr(fb+16+2*t,2)}, {vr(d+4*t,4)}")
    def lc_tile9(sbase, extra_k, ta, tb):
        A("s_lshl_b32 s12, s80, 5"); A(f"s_sub_u32 s13, {sbase}, s77")
        A(f"v_xor_b32 v{ta}, s12, v{r['trb']}"); A(f"v_add_u32 v{ta}, s13, v{ta}")
        A(f"ds_read_b64_tr_b16 {vr(fb,2)}, v{ta}"); A(f"ds_read_b64_tr_b16 {vr(fb+2,2)}, v{ta} offset:2048")
        if extra_k:
            A(f"v_xor_b32 v{tb}, s12, v{r['trc']}"); A(f"v_add_u32 v{tb}, s13, v{tb}")
            A(f"ds_read_b64_tr_b16 {vr(fb+16,2)}, v{tb}")
        A("s_waitcnt lgkmcnt(0)")
        A(f"v_mfma_f32_16x16x32_bf16 {vr(d,4)}, {vr(fa,4)}, {vr(fb,4)}, 0")
        if extra_k: A(f"v_mfma_f32_16x16x16_bf16 {vr(d,4)}, {vr(fa+4,2)}, {vr(fb+16,2)}, {vr(d,4)}")
    A("s_waitcnt vmcnt(5)"); A("s_barrier")
    stamp(6)
    lc_column(0, True)
    select4(d, [d, d+4, d+8, d+12]); tag_dword(d, R)
    A(f"buffer_store_dword v{d}, v{r['sb']}, s[44:47], s79 offen sc1")
    lc_tile9("s82", True, r['t0'], r['t1'])
    A("s_mul_i32 s12, s81, 144"); A("s_add_u32 s12, s12, s79")
    tag_dword(d, R)
    A("s_mov_b64 exec, 0xffff"); A(f"buffer_store_dword v{d}, v{r['sc']}, s[44:47], s12 offen sc1"); A("s_mov_b64 exec, -1")
    A("s_mul_i32 s74, s4, 576"); A("s_mul_i32 s12, s5, 36"); A("s_add_u32 s74, s74, s12"); A("s_mul_i32 s74, s74, 1152")
    sk = A.lab("sk"); sk2 = A.lab("sk")
    A("s_cmp_ge_u32 s3, 5"); A(f"s_cbranch_scc1 {sk}")
    A("s_mul_i32 s12, s3, 8*1152"); A("s_add_u32 s12, s12, s74"); A("s_add_u32 s12, s12, 1024")
    A("s_lshl_b32 s13, s3, 10"); A(f"s_add_u32 s13, s13, {S_DOWN + 8*4608}")
    A("s_cmp_lg_u32 s3, 4"); A(f"s_cbranch_scc1 {sk2}"); A("s_mov_b32 exec_hi, 0"); A(f"{sk2}:")
    dma(r['offd'], 68, "s12", "s13")
    A("s_mov_b64 exec, -1")
    A(f"{sk}:")
    A("s_lshl_b32 s12, s3, 7"); A("s_add_u32 s74, s74, s12")
    def down_dma(b):
        A(f"s_add_u32 s12, s74, {b*8*1152}"); A(f"s_add_u32 s13, s76, {S_DOWN + b*1024}")
        if b == 4: A("s_mov_b32 exec_hi, 0")
        dma(r['offd'], 68, "s12", "s13")
        if b == 4: A("s_mov_b64 exec, -1")
    npre = cfg["down_pre"]
    for b in range(npre): down_dma(b)
    A(f"s_waitcnt vmcnt({npre + 2})")
    stamp(7)
    lc_column(S_UP - S_GATE, True)
    for b_ in (r['trb'], r['trc']):
        for t in range(4): A(f"v_subrev_u32 v{b_+t}, {S_GATE - S_DOWN}, v{b_+t}")
    A(f"s_add_u32 s77, s76, {S_DOWN}")
    select4(d, [d, d+4, d+8, d+12]); tag_dword(d, R)
    A(f"buffer_store_dword v{d}, v{r['sb']}, s[44:47], s79 offen offset:144 sc1")
    stamp(8)
    A(f"v_and_b32 v{r['t0']}, 31, v{LANE}"); A(f"v_lshrrev_b32 v{r['t1']}, 5, v{LANE}")
    A(f"v_lshlrev_b32 v{r['sb']}, 4, v{r['t0']}"); A(f"v_lshl_add_u32 v{r['sc']}, v{r['t1']}, 3, v{r['sb']}")
    A(f"v_lshl_add_u32 v{r['sb']}, v{r['t1']}, 9, v{r['sb']}")
    A("s_lshl_b32 s79, s4, 17"); A("s_lshl_b32 s12, s5, 13"); A("s_add_u32 s79, s79, s12"); A("s_lshl_b32 s12, s3, 10"); A("s_add_u32 s79, s79, s12")
    A(f"s_add_u32 s79, s79, {WS_GU}")
    A("s_mov_b32 s84, 0x3ffff"); A("s_mov_b32 s85, 0x3ffff")
    def ld(): A(f"buffer_load_dwordx4 {vr(r['q'],4)}, v{r['sb']}, s[44:47], s79 offen sc1")
    def ck():
        check_f32(r['bad'], [r['q']]); A(f"v_and_b32 v{r['bad']}, 0xff, v{r['bad']}"); A(f"v_cmp_ne_u32 vcc, 0, v{r['bad']}")
    def bt():
        for b in range(npre, 5): down_dma(b)
    poll(ld, ck, base_exec="s[84:85]", first_wait=5 - npre, between=bt if npre < 5 else None)
    stamp(9)
    q = r['q']
    for e in range(4): A(f"v_and_b32 v{q+e}, s7, v{q+e}")
    A(f"v_permlane32_swap_b32 v{q}, v{q+2}"); A(f"v_permlane32_swap_b32 v{q+1}, v{q+3}")
    A(f"v_add_f32 v{q}, v{q}, v{q+2}"); A(f"v_add_f32 v{q+1}, v{q+1}, v{q+3}")
    A("s_mul_i32 s12, s3, 288"); A(f"v_add_u32 v{r['sc']}, s12, v{r['sc']}")
    A("s_mov_b64 exec, s[84:85]")
    A(f"v_add_u32 v{r['sc']}, {S_GUL}, v{r['sc']}")
    A(f"ds_write_b64 v{r['sc']}, {vr(q,2)}")
    A("s_mov_b64 exec, -1")
    A("s_waitcnt lgkmcnt(0)"); A("s_barrier")
    A(f"v_min_u32 v{r['t0']}, 35, v{LANE}"); A(f"v_lshlrev_b32 v{r['t1']}, 2, v{r['t0']}"); A(f"v_add_u32 v{r['t1']}, {S_GUL}, v{r['t1']}")
    kf = r['kf']
    for w_ in range(8):
        A(f"ds_read_b32 v{kf+w_}, v{r['t1']} offset:{288*w_}"); A(f"ds_read_b32 v{kf+8+w_}, v{r['t1']} offset:{288*w_+144}")
    A("s_lshl_b32 s12, s3, 7"); A(f"s_add_u32 s12, s12, {S_HB}")
    A(f"v_lshl_add_u32 v{r['sb']}, v{r['t0']}, 1, s12")
    A(f"v_lshl_add_u32 v{r['xg']}, v{G}, 3, s12")
    A(f"v_mov_b32 v{r['xz']}, {S_ZERO}"); A("s_add_u32 s12, s12, 64"); A(f"v_mov_b32 v{r['t0']}, s12")
    A(f"v_cmp_gt_u32 vcc, 16, v{LANE}"); A(f"v_cndmask_b32 v{r['xz']}, v{r['xz']}, v{r['t0']}, vcc")
    A("s_waitcnt lgkmcnt(0)")
    for st in (4, 2, 1):
        for e in range(st):
            A(f"v_add_f32 v{kf+e}, v{kf+e}, v{kf+e+st}"); A(f"v_add_f32 v{kf+8+e}, v{kf+8+e}, v{kf+8+e+st}")
    A(f"v_mul_f32 v{kf}, {hex(f2u(-1.4426950408889634))}, v{kf}")
    A(f"v_exp_f32 v{kf}, v{kf}"); A(f"v_add_f32 v{kf}, 1.0, v{kf}"); A(f"v_rcp_f32 v{kf}, v{kf}")
    A(f"v_mul_f32 v{kf}, v{kf}, v{kf+8}"); A(f"v_cvt_pk_bf16_f32 v{kf}, v{kf}, v{kf}")
    A(f"ds_write_b16 v{r['sb']}, v{kf}")
    A("s_waitcnt lgkmcnt(0)")
    A(f"ds_read_b64 {vr(fa,2)}, v{r['xg']}"); A(f"ds_read_b64 {vr(fa+2,2)}, v{r['xg']} offset:32"); A(f"ds_read_b64 {vr(fa+4,2)}, v{r['xz']}")
    A("s_mul_i32 s79, s2, 2304"); A(f"s_add_u32 s79, s79, {WS_OP}")
    stamp(10)
    sk = A.lab("sk")
    A("s_cmp_ge_u32 s3, 4"); A(f"s_cbranch_scc1 {sk}")
    A(f"s_mov_b32 s82, {S_DOWN + 8*4608}")
    lc_tile9("s82", True, r['t0'], r['t1'])
    A("s_lshl_b32 s12, s3, 6"); A("s_add_u32 s12, s12, s79")
    tag_dword(d, R)
    A("s_mov_b64 exec, 0xffff"); A(f"buffer_store_dword v{d}, v{r['sa']}, s[44:47], s12 offen offset:2048 sc1"); A("s_mov_b64 exec, -1")
    A("s_waitcnt vmcnt(1)")
    jn = A.lab("jn"); A(f"s_branch {jn}")
    A(f"{sk}:")
    A("s_waitcnt vmcnt(0)")
    A(f"{jn}:")
    stamp(11)
    lc_column(0, True)
    A("s_lshl_b32 s12, s3, 8"); A("s_add_u32 s12, s12, s79")
    select4(d, [d, d+4, d+8, d+12]); tag_dword(d, R)
    A(f"buffer_store_dword v{d}, v{r['sa']}, s[44:47], s12 offen sc1")
    stamp(12)
    write_stamps()
    A("s_endpgm")
    A("L_S1:")

    A("L_P:")
    R = Regs(4); common_regs(R); r = R.d
    R("l16"); R("sa"); R("sb"); R("sc"); R("qkb"); R("pva"); R("pvb"); R("qbw"); R("qbr")
    R("tl", 4); R("xres"); R("m"); R("ms")
    R("h2", 16, 4); R("bq", 16, 4); R("s", 4, 4); R("acc", 16, 4); R("accl", 4, 4)
    R("uvf", 16, 4); R("wof", 20, 4)
    A(f"v_lshlrev_b32 v{r['l16']}, 4, v{LANE}")
    A("s_lshr_b32 s74, s5, 1"); A("s_lshl_b32 s12, s4, 3"); A("s_add_u32 s74, s74, s12")
    A("s_and_b32 s75, s5, 1")
    A("s_lshl_b32 s76, s74, 7"); A("s_add_u32 s76, s76, s3")
    A("s_lshl_b32 s12, s75, 6"); A("s_xor_b32 s13, s12, 64")
    A("s_add_u32 s77, s76, s13"); A("s_add_u32 s76, s76, s12")
    A("s_lshl_b32 s76, s76, 10"); A("s_lshl_b32 s77, s77, 10")
    A(f"s_mul_i32 s78, s3, {CKS}")
    A("s_waitcnt lgkmcnt(0)")
    A("s_load_dword s6, s[40:41], 0")
    srd(52, 18, 8192*1024)
    code_prefetch("L_P0", "L_P1", r['h2'], r['t0'])
    A("L_P0:")
    def ck_dma(i):
        sreg = "s76" if i < 8 else "s77"
        if cfg["p_win1"] is not None and cfg["p_win1"] <= i < cfg["p_n1"]: A(f"s_waitcnt vmcnt({cfg['p_win1']-1})")
        A(f"s_add_u32 s13, s78, {P_CK + i*8*CKS}")
        dma(r['l16'], 52, sreg, "s13")
        if i % 8 < 7: A(f"s_add_u32 {sreg}, {sreg}, 8192")
    ck_dma(0)
    srd(44, 40, WS_SIZE); srd(56, 24, 512*8192); srd(60, 26, 4096*1152); srd(48, 16, 1152); srd(64, 36, 1152)
    A(f"v_lshlrev_b32 v{r['sa']}, 2, v{LANE}")
    A("s_lshl_b32 s12, s3, 4"); A(f"v_add_u32 v{r['t0']}, s12, v{N}"); A(f"v_mul_u32_u24 v{r['t0']}, {CKS}, v{r['t0']}")
    A(f"v_lshl_add_u32 v{r['qkb']}, v{G}, 4, v{r['t0']}")
    A(f"v_lshrrev_b32 v{r['t0']}, 2, v{N}"); A(f"v_lshl_add_u32 v{r['t0']}, v{G}, 2, v{r['t0']}"); A(f"v_mul_u32_u24 v{r['t0']}, {CKS}, v{r['t0']}")
    A(f"v_and_b32 v{r['t1']}, 3, v{N}"); A(f"v_lshl_add_u32 v{r['t0']}, v{r['t1']}, 3, v{r['t0']}")
    A("s_lshl_b32 s12, s3, 7"); A(f"v_add_u32 v{r['pva']}, s12, v{r['t0']}"); A(f"v_add_u32 v{r['pvb']}, {64*CKS}, v{r['pva']}")
    A(f"v_bfe_u32 v{r['t0']}, v{LANE}, 1, 2"); A("s_lshl_b32 s12, s3, 1"); A(f"v_xor_b32 v{r['t1']}, s12, v{r['t0']}")
    A(f"v_lshlrev_b32 v{r['t1']}, 4, v{r['t1']}"); A(f"v_lshl_add_u32 v{r['t1']}, v{r['t0']}, 8, v{r['t1']}")
    A(f"v_lshrrev_b32 v{r['t0']}, 3, v{LANE}"); A(f"v_mul_u32_u24 v{r['t0']}, 1088, v{r['t0']}"); A(f"v_add_u32 v{r['t1']}, v{r['t1']}, v{r['t0']}")
    A(f"v_and_b32 v{r['t0']}, 1, v{LANE}"); A(f"v_lshl_add_u32 v{r['t1']}, v{r['t0']}, 3, v{r['t1']}"); A(f"v_add_u32 v{r['qbw']}, {P_QB}, v{r['t1']}")
    A(f"v_xor_b32 v{r['t0']}, v{N}, v{G}"); A(f"v_lshlrev_b32 v{r['t0']}, 4, v{r['t0']}"); A(f"v_lshl_add_u32 v{r['t0']}, v{G}, 8, v{r['t0']}")
    A(f"v_add_u32 v{r['qbr']}, {P_QB}, v{r['t0']}")
    h2pos = cfg["h2_pos"]
    assert 8 <= h2pos <= 16
    for i in range(1, 8): ck_dma(i)
    addr_q_style(R); addr_trq(R, P_WUV); addr_lc_src(r['offd'], R, 1152); addr_lc_tr(R, r['trb'])
    A("s_waitcnt lgkmcnt(0)")
    tags(R)
    for j in range(4):
        A(f"v_bfe_u32 v{r['t0']}, v{r['tagb']}, {2*j}, 1"); A(f"v_bfe_u32 v{r['t1']}, v{r['tagb']}, {2*j+1}, 1")
        A(f"v_lshl_or_b32 v{r['tl']+j}, v{r['t1']}, 16, v{r['t0']}")
    for i in range(8, h2pos): ck_dma(i)
    A("s_lshl_b32 s79, s75, 4"); A("s_lshl_b32 s12, s3, 1"); A("s_add_u32 s79, s79, s12"); A("s_lshl_b32 s79, s79, 11"); A(f"s_add_u32 s79, s79, {WS_QA}")
    h2 = r['h2']
    def pv_frags(v0, v1):
        for v in range(v0, v1):
            for u in range(4):
                for rd in range(2):
                    b_ = r['pva'] if v < 2 else r['pvb']
                    A(f"ds_read_b64_tr_b16 {ar(64 + (v*4+u)*4 + 2*rd, 2)}, v{b_} offset:{(32*(v%2) + 16*rd)*CKS + 32*u}")
    def qk_frags():
        for t in range(16): A(f"ds_read_b128 {ar(4*t,4)}, v{r['qkb']} offset:{64*t}")
    def ld():
        for e in range(4): A(f"buffer_load_dwordx4 {vr(h2+4*e,4)}, v{r['l16']}, s[44:47], s79 offen offset:{1024*e} sc1")
    def ck():
        check_f32(r['bad'], [h2, h2+4, h2+8, h2+12]); A(f"v_and_b32 v{r['bad']}, 0xff, v{r['bad']}"); A(f"v_cmp_ne_u32 vcc, 0, v{r['bad']}")
    def bt():
        for i in range(h2pos, 16): ck_dma(i)
        stamp(1)
        A("s_waitcnt vmcnt(12)"); A("s_barrier")
        stamp(2)
        sk = A.lab("sk"); A("s_cmp_ge_u32 s3, 4"); A(f"s_cbranch_scc1 {sk}"); qk_frags(); A(f"{sk}:")
        pv_frags(0, 2)
    poll(ld, ck, first_wait=16 - h2pos, between=bt)
    stamp(3)
    for e in range(16): A(f"v_and_b32 v{h2+e}, s7, v{h2+e}")
    for e in range(8): A(f"v_cvt_pk_bf16_f32 v{h2+e}, v{h2+2*e}, v{h2+2*e+1}")
    A(f"v_xor_b32 v{r['t0']}, 16, v{r['qbw']}")
    A(f"ds_write_b64 v{r['qbw']}, {vr(h2,2)}"); A(f"ds_write_b64 v{r['qbw']}, {vr(h2+2,2)} offset:{8*1088}")
    A(f"ds_write_b64 v{r['t0']}, {vr(h2+4,2)}"); A(f"ds_write_b64 v{r['t0']}, {vr(h2+6,2)} offset:{8*1088}")
    A("s_waitcnt vmcnt(0) lgkmcnt(0)"); A("s_barrier")
    stamp(4)
    sk = A.lab("sk"); A("s_cmp_lt_u32 s3, 4"); A(f"s_cbranch_scc1 {sk}"); qk_frags(); A(f"{sk}:")
    bq = r['bq']; s_ = r['s']
    for t in range(4): A(f"ds_read_b128 {vr(bq+4*t,4)}, v{r['qbr']} offset:{1088*t}")
    for t in range(16):
        A(f"s_waitcnt lgkmcnt({min(3, 15-t)})")
        A(f"v_mfma_f32_16x16x32_bf16 {vr(s_,4)}, {ar(4*t,4)}, {vr(bq+4*(t%4),4)}, {'0' if t == 0 else vr(s_,4)}")
        if t + 4 < 16: A(f"ds_read_b128 {vr(bq+4*(t%4),4)}, v{r['qbr']} offset:{1088*(t+4)}")
    pv_frags(2, 4)
    m = r['m']
    A(f"v_lshlrev_b32 v{r['sc']}, 5, v{N}")
    A("s_lshl_b32 s12, s3, 2"); A(f"v_add_u32 v{r['sb']}, s12, v{r['sc']}")
    A(f"v_max3_f32 v{m}, v{s_}, v{s_+1}, v{s_+2}"); A(f"v_max_f32 v{m}, v{m}, v{s_+3}")
    allreduce_groups(m, r['t0'], "v_max_f32")
    A(f"v_add_u32 v{r['sb']}, {P_MX}, v{r['sb']}"); A(f"v_add_u32 v{r['sc']}, {P_MX}, v{r['sc']}")
    A("s_mov_b64 exec, 0xffff"); A(f"ds_write_b32 v{r['sb']}, v{m}"); A("s_mov_b64 exec, -1")
    A("s_waitcnt lgkmcnt(0)"); A("s_barrier")
    stamp(5)
    A(f"ds_read_b128 {vr(bq,4)}, v{r['sc']}"); A(f"ds_read_b128 {vr(bq+4,4)}, v{r['sc']} offset:16")
    A("s_lshr_b32 s12, s3, 1"); A("s_lshl_b32 s12, s12, 10"); A("s_and_b32 s13, s3, 1"); A("s_lshl_b32 s13, s13, 3"); A("s_add_u32 s12, s12, s13")
    A(f"s_add_u32 s12, s12, {P_PF}"); A(f"v_add_u32 v{r['sb']}, s12, v{r['l16']}"); A(f"v_add_u32 v{r['sc']}, {P_PF}, v{r['l16']}")
    A(f"s_mov_b32 s15, {hex(f2u(SCALE2))}")
    A("s_waitcnt lgkmcnt(0)")
    A(f"v_max3_f32 v{m}, v{bq}, v{bq+1}, v{bq+2}"); A(f"v_max3_f32 v{r['t0']}, v{bq+3}, v{bq+4}, v{bq+5}")
    A(f"v_max3_f32 v{m}, v{m}, v{bq+6}, v{bq+7}"); A(f"v_max_f32 v{m}, v{m}, v{r['t0']}")
    A(f"v_mul_f32 v{r['ms']}, s15, v{m}")
    for e in range(4): A(f"v_fma_f32 v{s_+e}, v{s_+e}, s15, -v{r['ms']}")
    for e in range(4): A(f"v_exp_f32 v{s_+e}, v{s_+e}")
    A(f"v_cvt_pk_bf16_f32 v{s_}, v{s_}, v{s_+1}"); A(f"v_cvt_pk_bf16_f32 v{s_+1}, v{s_+2}, v{s_+3}")
    A(f"ds_write_b64 v{r['sb']}, {vr(s_,2)}")
    A("s_waitcnt lgkmcnt(0)"); A("s_barrier")
    for v in range(4): A(f"ds_read_b128 {vr(bq+4*v,4)}, v{r['sc']} offset:{1024*v}")
    stamp(6)
    A("s_lshl_b32 s80, s73, 7"); A("s_lshl_b32 s12, s3, 2"); A("s_add_u32 s80, s80, s12"); A("s_lshl_b32 s80, s80, 13")
    A("s_lshl_b32 s12, s72, 8"); A("s_add_u32 s80, s80, s12"); A("s_lshl_b32 s81, s3, 10")
    A("s_lshl_b32 s82, s72, 7"); A("s_lshl_b32 s12, s73, 5"); A("s_add_u32 s82, s82, s12"); A("s_mul_i32 s82, s82, 1152")
    A("s_lshl_b32 s83, s3, 12")
    pend = []
    for i in range(4):
        pend.append(lambda i=i: (A(f"s_add_u32 s12, s80, {i*32*8192}"), A(f"s_add_u32 s13, s81, {P_WUV + i*8192}"), dma(r['offq'], 56, "s12", "s13")))
    def wo9():
        sk = A.lab("sk"); A("s_cmp_ge_u32 s3, 4"); A(f"s_cbranch_scc1 {sk}")
        A("s_mul_i32 s12, s3, 8*1152"); A("s_add_u32 s12, s12, s82"); A("s_add_u32 s12, s12, 1024"); A(f"s_add_u32 s13, s81, {P_WO + 8*4096}")
        dma(r['offd'], 60, "s12", "s13"); A(f"{sk}:")
        A("s_lshl_b32 s12, s3, 7"); A("s_add_u32 s82, s82, s12")
    pend.append(wo9)
    for b in range(4):
        pend.append(lambda b=b: (A(f"s_add_u32 s12, s82, {b*8*1152}"), A(f"s_add_u32 s13, s83, {P_WO + b*1024}"), dma(r['offd'], 60, "s12", "s13")))
    acc = r['acc']
    for v in range(4):
        A(f"s_waitcnt lgkmcnt({3-v})")
        for u in range(4):
            A(f"v_mfma_f32_16x16x32_bf16 {vr(acc+4*u,4)}, {ar(64+(v*4+u)*4,4)}, {vr(bq+4*v,4)}, {'0' if v == 0 else vr(acc+4*u,4)}")
            if u % 2 == 1 and pend: pend.pop(0)()
    while pend: pend.pop(0)()
    sk = A.lab("sk"); A("s_cmp_lg_u32 s3, 0"); A(f"s_cbranch_scc1 {sk}")
    for e in range(4): A(f"v_mov_b32 v{h2+e}, 0x3f803f80")
    for v in range(4): A(f"v_mfma_f32_16x16x32_bf16 {vr(r['accl'],4)}, {vr(h2,4)}, {vr(bq+4*v,4)}, {'0' if v == 0 else vr(r['accl'],4)}")
    A(f"{sk}:")
    A("s_mul_i32 s12, s3, 2304"); A(f"s_add_u32 s12, s12, {P_TB}")
    A(f"v_mul_u32_u24 v{r['t0']}, 144, v{N}"); A(f"v_lshl_add_u32 v{r['t0']}, v{G}, 3, v{r['t0']}"); A(f"v_add_u32 v{r['sb']}, s12, v{r['t0']}")
    A(f"v_lshrrev_b32 v{r['t0']}, 3, v{LANE}"); A(f"v_and_b32 v{r['t1']}, 7, v{LANE}"); A(f"v_lshlrev_b32 v{r['t1']}, 4, v{r['t1']}")
    A(f"v_lshl_add_u32 v{r['m']}, v{r['t0']}, 16, v{r['t1']}")
    A(f"v_mul_u32_u24 v{r['t0']}, 144, v{r['t0']}"); A(f"v_add3_u32 v{r['sc']}, v{r['t0']}, v{r['t1']}, s12")
    A("s_mov_b32 s15, 0x07060302")
    for u in range(4):
        A(f"v_perm_b32 v{acc+4*u}, v{acc+4*u+1}, v{acc+4*u}, s15"); A(f"v_perm_b32 v{acc+4*u+1}, v{acc+4*u+3}, v{acc+4*u+2}, s15")
        A(f"ds_write_b64 v{r['sb']}, {vr(acc+4*u,2)} offset:{32*u}")
    A("s_lshl_b32 s79, s75, 20"); A("s_lshl_b32 s12, s74, 10"); A("s_add_u32 s79, s79, s12"); A("s_lshl_b32 s12, s3, 7"); A("s_add_u32 s79, s79, s12")
    A(f"s_add_u32 s79, s79, {WS_PART}"); A(f"s_add_u32 s84, s79, {8 << 16}")
    A("s_mov_b32 s15, 0xfffefffe")
    A("s_waitcnt lgkmcnt(0)")
    A(f"ds_read_b128 {vr(bq,4)}, v{r['sc']}"); A(f"ds_read_b128 {vr(bq+4,4)}, v{r['sc']} offset:{8*144}")
    for hh in range(2):
        A(f"s_waitcnt lgkmcnt({1-hh})")
        for j in range(4): A(f"v_and_or_b32 v{bq+4*hh+j}, v{bq+4*hh+j}, s15, v{r['tl']+j}")
        A(f"buffer_store_dwordx4 {vr(bq+4*hh,4)}, v{r['m']}, s[44:47], {'s79' if hh == 0 else 's84'} offen sc1")
    sk = A.lab("sk"); A("s_cmp_lg_u32 s3, 0"); A(f"s_cbranch_scc1 {sk}")
    A(f"v_mov_b32 v{h2}, v{r['ms']}"); A(f"v_mov_b32 v{h2+1}, v{r['accl']}"); A(f"v_mov_b32 v{h2+2}, s6"); A(f"v_mov_b32 v{h2+3}, s6")
    A(f"v_lshlrev_b32 v{r['t0']}, 10, v{N}")
    A("s_lshl_b32 s12, s75, 14"); A("s_lshl_b32 s13, s74, 4"); A("s_add_u32 s12, s12, s13"); A(f"s_add_u32 s12, s12, {WS_ML}")
    A("s_mov_b64 exec, 0xffff"); A(f"buffer_store_dwordx4 {vr(h2,4)}, v{r['t0']}, s[44:47], s12 offen sc1"); A("s_mov_b64 exec, -1")
    A(f"{sk}:")
    stamp(7)
    A(f"v_lshlrev_b32 v{r['t0']}, 4, v{N}"); A(f"v_lshl_add_u32 v{r['sb']}, v{G}, 10, v{r['t0']}")
    A(f"v_lshlrev_b32 v{r['sc']}, 4, v{G}")
    A("s_lshl_b32 s79, s72, 16"); A("s_lshl_b32 s12, s3, 13"); A("s_add_u32 s79, s79, s12"); A("s_lshl_b32 s12, s73, 8"); A("s_add_u32 s79, s79, s12")
    A(f"s_add_u32 s79, s79, {WS_PART}"); A("s_add_u32 s84, s79, 4096")
    A("s_lshl_b32 s85, s72, 10"); A(f"s_add_u32 s85, s85, {WS_ML}"); A("s_lshl_b32 s12, s3, 7"); A("s_add_u32 s74, s85, s12")
    mlw = acc; mla = acc + 4; mlb = acc + 8
    def ld():
        A(f"buffer_load_dwordx4 {vr(mlw,4)}, v{r['l16']}, s[44:47], s85 offen sc1")
        A(f"buffer_load_dwordx4 {vr(mla,4)}, v{r['sc']}, s[44:47], s74 offen sc1")
        A(f"buffer_load_dwordx4 {vr(mlb,4)}, v{r['sc']}, s[44:47], s74 offen offset:64 sc1")
        A(f"buffer_load_dwordx4 {vr(bq,4)}, v{r['sb']}, s[44:47], s79 offen sc1")
        A(f"buffer_load_dwordx4 {vr(bq+4,4)}, v{r['sb']}, s[44:47], s84 offen sc1")
    def ck():
        A(f"v_xor_b32 v{r['bad']}, v{bq}, v{r['tl']}")
        for e in range(1, 8): A(f"v_bitop3_b32 v{r['bad']}, v{bq+e}, v{r['tl']+e%4}, v{r['bad']} bitop3:0xbe")
        A(f"v_and_b32 v{r['bad']}, 0x10001, v{r['bad']}")
        for b_ in (mlw, mla, mlb): A(f"v_bitop3_b32 v{r['bad']}, v{b_+2}, s6, v{r['bad']} bitop3:0xbe")
        A(f"v_cmp_ne_u32 vcc, 0, v{r['bad']}")
    uvf = r['uvf']; wof = r['wof']
    poll(ld, ck, wqm=True)
    stamp(8)
    A("s_barrier")
    for q in range(8): A(f"ds_read_b64_tr_b16 {vr(uvf+2*q,2)}, v{r['trq']} offset:{4096*q}")
    A(f"v_mov_b32 v{m}, v{mlw}")
    un = h2
    def unpack(e):
        A(f"v_lshl_or_b32 v{un+2*e}, v{bq+e}, 16, s15"); A(f"v_and_or_b32 v{un+2*e+1}, v{bq+e}, s13, v{r['t1']}")
    A("s_mov_b32 s15, 0x10000"); A("s_mov_b32 s13, 0xfffe0000"); A(f"v_mov_b32 v{r['t1']}, 0x10000")
    for k_, rr in enumerate((8, 4, 2, 1)):
        A(f"v_max_f32_dpp v{m}, v{m}, v{m} row_ror:{rr} row_mask:0xf bank_mask:0xf")
        unpack(2*k_); unpack(2*k_+1)
    allreduce_groups(m, r['t0'], "v_max_f32")
    A(f"v_sub_f32 v{mla}, v{mla}, v{m}"); A(f"v_sub_f32 v{mlb}, v{mlb}, v{m}"); A(f"v_sub_f32 v{mlw}, v{mlw}, v{m}")
    A(f"v_exp_f32 v{mla}, v{mla}"); A(f"v_exp_f32 v{mlb}, v{mlb}"); A(f"v_exp_f32 v{mlw}, v{mlw}")
    for e in range(8): A(f"v_mul_f32 v{un+e}, v{un+e}, v{mla}")
    for e in range(8): A(f"v_fmac_f32 v{un+e}, v{un+8+e}, v{mlb}")
    A(f"v_mul_f32 v{mlw}, v{mlw}, v{mlw+1}")
    for e in range(4): A(f"v_permlane32_swap_b32 v{un+e}, v{un+4+e}")
    for e in range(4): A(f"v_add_f32 v{un+e}, v{un+e}, v{un+4+e}")
    A(f"v_lshrrev_b32 v{r['t0']}, 2, v{N}"); A(f"v_lshlrev_b32 v{r['t0']}, 4, v{r['t0']}")
    for e in range(2): A(f"v_permlane16_swap_b32 v{un+e}, v{un+2+e}")
    for e in range(2): A(f"v_add_f32 v{un+e}, v{un+e}, v{un+2+e}")
    A(f"v_and_b32 v{r['t1']}, 1, v{N}"); A(f"v_lshl_add_u32 v{r['t0']}, v{r['t1']}, 3, v{r['t0']}")
    A(f"v_cvt_pk_bf16_f32 v{un}, v{un}, v{un+1}")
    A(f"v_bfe_u32 v{r['t1']}, v{N}, 1, 1"); A(f"v_lshl_add_u32 v{r['t0']}, v{r['t1']}, 1, v{r['t0']}")
    A(f"v_lshrrev_b32 v{r['t1']}, 1, v{G}"); A(f"v_lshl_add_u32 v{r['t0']}, v{r['t1']}, 2, v{r['t0']}")
    A(f"v_and_b32 v{r['t1']}, 1, v{G}"); A(f"v_add_u32 v{r['t0']}, v{r['t0']}, v{r['t1']}")
    A("s_mul_i32 s12, s3, 272"); A(f"s_add_u32 s12, s12, {P_PB}"); A(f"v_lshl_add_u32 v{r['t0']}, v{r['t0']}, 2, s12")
    A(f"ds_write_b32 v{r['t0']}, v{un}")
    A(f"v_and_b32 v{r['t0']}, 7, v{N}"); A(f"v_mul_u32_u24 v{r['t0']}, 272, v{r['t0']}"); A(f"v_lshl_add_u32 v{r['t0']}, v{G}, 4, v{r['t0']}")
    A(f"v_add_u32 v{r['t0']}, {P_PB}, v{r['t0']}")
    A("s_waitcnt lgkmcnt(0)"); A("s_barrier")
    for v in range(4): A(f"ds_read_b128 {vr(bq+4*v,4)}, v{r['t0']} offset:{64*v}")
    allreduce_row(mlw, "v_add_f32"); allreduce_groups(mlw, r['t1'], "v_add_f32")
    A(f"v_rcp_f32 v{mlw}, v{mlw}")
    dd = acc + 4
    for v in range(4):
        A(f"s_waitcnt lgkmcnt({3-v})")
        A(f"v_mfma_f32_16x16x32_bf16 {vr(dd,4)}, {vr(bq+4*v,4)}, {vr(uvf+4*v,4)}, {'0' if v == 0 else vr(dd,4)}")
    A("s_lshl_b32 s78, s72, 11"); A("s_lshl_b32 s12, s73, 9"); A("s_add_u32 s12, s12, s78"); A("s_lshl_b32 s13, s3, 6"); A("s_add_u32 s12, s12, s13")
    A(f"s_add_u32 s12, s12, {WS_CP}")
    A(f"v_add_f32 v{dd}, v{dd}, v{dd+1}"); A(f"v_add_f32 v{dd+2}, v{dd+2}, v{dd+3}"); A(f"v_add_f32 v{dd}, v{dd}, v{dd+2}")
    A(f"v_mov_b32 v{r['t0']}, v{dd}"); A(f"v_permlane16_swap_b32 v{dd}, v{r['t0']}"); A(f"v_add_f32 v{dd}, v{dd}, v{r['t0']}")
    A(f"v_mul_f32 v{dd}, v{dd}, v{mlw}")
    tag_dword(dd, R)
    A("s_mov_b64 exec, 0xffff"); A(f"buffer_store_dword v{dd}, v{r['sa']}, s[44:47], s12 offen sc1"); A("s_mov_b64 exec, -1")
    stamp(9)
    A(f"v_and_b32 v{r['t0']}, 3, v{N}"); A(f"v_lshlrev_b32 v{r['t0']}, 9, v{r['t0']}"); A(f"v_lshl_add_u32 v{r['sb']}, v{G}, 4, v{r['t0']}")
    A("s_lshl_b32 s12, s73, 7"); A("s_add_u32 s79, s78, s12"); A(f"s_add_u32 s79, s79, {WS_CP}")
    def ld():
        A(f"buffer_load_dwordx4 {vr(h2,4)}, v{r['sb']}, s[44:47], s79 offen sc1")
        A(f"buffer_load_dwordx4 {vr(h2+4,4)}, v{r['sb']}, s[44:47], s79 offen offset:64 sc1")
    def ck():
        check_f32(r['bad'], [h2, h2+4]); A(f"v_and_b32 v{r['bad']}, 0xff, v{r['bad']}"); A(f"v_cmp_ne_u32 vcc, 0, v{r['bad']}")
    def bt():
        A(f"s_add_u32 s12, s83, {P_WO}"); A(f"v_add_u32 v{r['t0']}, s12, v{r['trb']}")
        for t in range(4):
            A(f"ds_read_b64_tr_b16 {vr(wof+4*t,2)}, v{r['t0']}"); A(f"ds_read_b64_tr_b16 {vr(wof+4*t+2,2)}, v{r['t0']} offset:2048")
            if t < 3: A(f"v_xor_b32 v{r['t0']}, {(t ^ (t+1)) << 5}, v{r['t0']}")
        A("s_and_b32 s12, s3, 3"); A("s_lshl_b32 s12, s12, 5"); A(f"v_xor_b32 v{r['t0']}, s12, v{r['trb']}")
        A(f"v_add_u32 v{r['t0']}, {P_WO + 8*4096}, v{r['t0']}")
        A(f"ds_read_b64_tr_b16 {vr(wof+16,2)}, v{r['t0']}"); A(f"ds_read_b64_tr_b16 {vr(wof+18,2)}, v{r['t0']} offset:2048")
    poll(ld, ck, between=bt)
    stamp(10)
    for e in range(8): A(f"v_and_b32 v{h2+e}, s7, v{h2+e}")
    for e in range(4): A(f"v_cvt_pk_bf16_f32 v{h2+8+e}, v{h2+2*e}, v{h2+2*e+1}")
    A("s_waitcnt lgkmcnt(0)")
    for t in range(4): A(f"v_mfma_f32_16x16x32_bf16 {vr(acc+4*t,4)}, {vr(h2+8,4)}, {vr(wof+4*t,4)}, 0")
    A(f"v_mfma_f32_16x16x32_bf16 {vr(r['accl'],4)}, {vr(h2+8,4)}, {vr(wof+16,4)}, 0")
    A("s_mul_i32 s79, s2, 2304"); A(f"s_add_u32 s79, s79, {WS_OP}")
    A("s_lshl_b32 s12, s3, 8"); A("s_add_u32 s12, s12, s79"); A("s_lshl_b32 s13, s3, 6"); A("s_add_u32 s13, s13, s79")
    al = r['accl']
    for b_ in (acc, acc+4, acc+8, acc+12):
        A(f"v_add_f32 v{b_}, v{b_}, v{b_+1}"); A(f"v_add_f32 v{b_+2}, v{b_+2}, v{b_+3}"); A(f"v_add_f32 v{b_}, v{b_}, v{b_+2}")
    select4(acc, [acc, acc+4, acc+8, acc+12]); tag_dword(acc, R)
    A(f"buffer_store_dword v{acc}, v{r['sa']}, s[44:47], s12 offen sc1")
    sk = A.lab("sk"); A("s_cmp_ge_u32 s3, 4"); A(f"s_cbranch_scc1 {sk}")
    A(f"v_add_f32 v{al}, v{al}, v{al+1}"); A(f"v_add_f32 v{al+2}, v{al+2}, v{al+3}"); A(f"v_add_f32 v{al}, v{al}, v{al+2}")
    tag_dword(al, R)
    A("s_mov_b64 exec, 0xffff"); A(f"buffer_store_dword v{al}, v{r['sa']}, s[44:47], s13 offen offset:2048 sc1"); A("s_mov_b64 exec, -1")
    A(f"{sk}:")
    stamp(11)
    A("s_lshr_b32 s12, s5, 2"); A("s_lshl_b32 s12, s12, 3"); A("s_add_u32 s12, s12, s4")
    A("s_cmp_ge_u32 s12, 18"); A("s_cbranch_scc1 L_Pend")
    A("s_lshl_b32 s74, s12, 2"); A("s_add_u32 s74, s74, s73")
    A(f"v_lshrrev_b32 v{r['t0']}, 1, v{LANE}"); A(f"v_mul_u32_u24 v{r['t0']}, 2304, v{r['t0']}")
    A(f"v_and_b32 v{r['t1']}, 1, v{LANE}"); A(f"v_lshl_add_u32 v{r['sb']}, v{r['t1']}, 4, v{r['t0']}")
    A("s_mul_i32 s79, s3, 32*2304"); A("s_lshl_b32 s12, s74, 5"); A("s_add_u32 s79, s79, s12"); A(f"s_add_u32 s79, s79, {WS_OP}")
    A(f"v_and_b32 v{r['sc']}, 7, v{LANE}"); A(f"v_lshlrev_b32 v{r['sc']}, 1, v{r['sc']}"); A("s_lshl_b32 s75, s74, 4")
    A(f"buffer_load_ushort v{r['xres']}, v{r['sc']}, s[48:51], s75 offen")
    def ld(): A(f"buffer_load_dwordx4 {vr(h2,4)}, v{r['sb']}, s[44:47], s79 offen sc1")
    def ck():
        check_f32(r['bad'], [h2]); A(f"v_and_b32 v{r['bad']}, 0xff, v{r['bad']}"); A(f"v_cmp_ne_u32 vcc, 0, v{r['bad']}")
    poll(ld, ck)
    stamp(12)
    for e in range(4): A(f"v_and_b32 v{h2+e}, s7, v{h2+e}")
    A(f"v_permlane32_swap_b32 v{h2}, v{h2+2}"); A(f"v_permlane32_swap_b32 v{h2+1}, v{h2+3}")
    A(f"v_add_f32 v{h2}, v{h2}, v{h2+2}"); A(f"v_add_f32 v{h2+1}, v{h2+1}, v{h2+3}")
    A(f"v_lshrrev_b32 v{r['t0']}, 5, v{LANE}"); A(f"v_lshl_add_u32 v{r['t1']}, v{r['t1']}, 1, v{r['t0']}")
    A(f"v_permlane16_swap_b32 v{h2}, v{h2+1}"); A(f"v_add_f32 v{h2}, v{h2}, v{h2+1}")
    A(f"v_bfe_u32 v{r['t0']}, v{LANE}, 4, 1"); A(f"v_lshl_add_u32 v{r['t1']}, v{r['t1']}, 1, v{r['t0']}")
    for rr in (8, 4, 2): A(f"v_add_f32_dpp v{h2}, v{h2}, v{h2} row_ror:{rr} row_mask:0xf bank_mask:0xf")
    A("s_lshl_b32 s12, s3, 2"); A(f"s_add_u32 s12, s12, {P_FR}"); A(f"v_lshl_add_u32 v{r['t1']}, v{r['t1']}, 5, s12")
    A("s_mov_b32 s84, 0x00030003"); A("s_mov_b32 s85, 0x00030003"); A("s_mov_b64 exec, s[84:85]")
    A(f"ds_write_b32 v{r['t1']}, v{h2}")
    A("s_mov_b64 exec, -1")
    A(f"v_lshlrev_b32 v{r['t0']}, 4, v{r['sc']}"); A(f"v_add_u32 v{r['t0']}, {P_FR}, v{r['t0']}")
    A("s_waitcnt lgkmcnt(0)"); A("s_barrier")
    A("s_cmp_lg_u32 s3, 0"); A("s_cbranch_scc1 L_Pend")
    A(f"ds_read_b128 {vr(h2,4)}, v{r['t0']}"); A(f"ds_read_b128 {vr(h2+4,4)}, v{r['t0']} offset:16")
    A(f"v_lshlrev_b32 v{r['xres']}, 16, v{r['xres']}")
    A("s_waitcnt lgkmcnt(0)")
    for st in (4, 2, 1):
        for e in range(st): A(f"v_add_f32 v{h2+e}, v{h2+e}, v{h2+e+st}")
    A(f"v_add_f32 v{h2}, v{h2}, v{r['xres']}"); A(f"v_cvt_pk_bf16_f32 v{h2}, v{h2}, v{h2}")
    A("s_mov_b64 exec, 0xff")
    A(f"buffer_store_short v{h2}, v{r['sc']}, s[64:67], s75 offen")
    A("s_cmp_lg_u32 s74, 0"); A("s_cbranch_scc1 L_Pend")
    A("s_mov_b64 exec, 1"); A(f"v_mov_b32 v{r['t0']}, s6")
    A(f"buffer_store_dword v{r['t0']}, v{r['sa']}, s[44:47], 0 offen sc1")
    A("L_Pend:")
    stamp(13)
    write_stamps()
    A("L_exit:")
    A("s_endpgm")
    A("L_P1:")
    body = A.finish(verbose=cfg.get("verbose", False))
    head = open("parallel_sum__compressed_kv_cla__glu_gated_glu__decode.s.ref").read().split("; Override launch")[0]
    head += f"; @launch grid=(256,1,1) block=(512,1,1) lds={LDS}\n"
    head += '.amdgcn_target "amdgcn-amd-amdhsa--gfx950"\n.text\n' + f".globl {NAME}\n.p2align 8\n.type {NAME},@function\n"
    tail = f""".section .rodata,"a"
.p2align 6
.amdhsa_kernel {NAME}
  .amdhsa_next_free_vgpr 256
  .amdhsa_next_free_sgpr 102
  .amdhsa_accum_offset 128
  .amdhsa_group_segment_fixed_size 0
  .amdhsa_kernarg_size 104
  .amdhsa_user_sgpr_count 2
  .amdhsa_user_sgpr_kernarg_segment_ptr 1
  .amdhsa_system_sgpr_workgroup_id_x 1
  .amdhsa_float_denorm_mode_32 3
.end_amdhsa_kernel
"""
    return head + body + tail

if __name__ == "__main__":
    out = sys.argv[1] if len(sys.argv) > 1 else "k.s"
    kw = eval("dict(" + (sys.argv[2] if len(sys.argv) > 2 else "") + ")")
    open(out, "w").write(generate(verbose=True, **kw))
```

```python
import sys
from asmlib import Asm

NAME = "parallel_sum__compressed_kv_cla__glu_gated_glu__decode_kernel"

DEF = dict(
    nt="nt",
    stamps=False,
    prefetch_code=True,
    spin_cap=1 << 18,
    local=True, k0=24,
    h3_ack=True,
    sleep=0,
    p_win1=None, p_n1=0,
    h2_pos=16,
    dma_in_qk=4, dma_in_pv=5,
    s_win=None,
    wuk_pre=4,
    down_pre=5,
)

WS_R = 0
WS_QP = 0x10000
WS_QA = 0x20000
WS_CP = 0x30000
WS_ML = 0x40000
WS_OP = 0x60000
WS_GU = 0x100000
WS_PART = 0x200000
WS_ST = 0x400000
WS_SIZE = 0x500000
LOC = 0x40000
WS_QP = 0x10000; WS_CP = 0x18000 + 0x8000; WS_QA = 0x30000; WS_ML = 0x40000
WS_QPL = 0x50000; WS_CPL = 0x60000; WS_OP = 0x70000
WS_GU = 0x100000; WS_GUL = 0x480000 - 0x80000 + 0x100000
WS_SIZE = 0x600000
TAGK = 0x9E3779B9

S_XN = 0; S_ZERO = 1152; S_GUL = 1280; S_HB = 3584
S_WQ = 4608; S_WUK = 41472; S_GATE = 74240; S_UP = 115712; S_DOWN = 4608
CKS = 1056
P_CK = 0; P_QB = 135168; P_PB = 152576; P_PF = 154752; P_MX = 158848; P_FR = 159424
P_WUV = 0; P_WO = 32768; P_WO9 = 159744; P_TB = 73728
LDS = 163840

SCALE2 = 1.4426950408889634 / (128 ** 0.5)
import struct
def f2u(x): return struct.unpack("<I", struct.pack("<f", x))[0]

class Regs:
    def __init__(self, start): self.n = start; self.d = {}
    def __call__(self, name, cnt=1, align=1):
        if cnt > 1: align = max(align, 2)
        self.n = (self.n + align - 1) // align * align
        self.d[name] = self.n; self.n += cnt
        assert self.n <= 128, f"out of arch VGPRs at {name}"
        return self.d[name]

def vr(b, n=1): return f"v{b}" if n == 1 else f"v[{b}:{b+n-1}]"
def ar(b, n=1): return f"a{b}" if n == 1 else f"a[{b}:{b+n-1}]"

def generate(**kw):
    cfg = dict(DEF); cfg.update(kw)
    NT = cfg["nt"]
    A = Asm()
    stamp_n = [0]
    def stamp(i):
        if not cfg["stamps"]: return
        A("s_memrealtime s[42:43]"); A("s_waitcnt lgkmcnt(0)"); A(f"v_writelane_b32 v0, s42, {i}")
    def srd(b, p, size):
        A(f"s_mov_b32 s{b}, s{p}"); A(f"s_mov_b32 s{b+1}, s{p+1}"); A(f"s_mov_b32 s{b+2}, {size}"); A(f"s_mov_b32 s{b+3}, 0x20000")
    def dma(voff, srdb, soff, m0, flags=NT):
        A(f"s_mov_b32 m0, {m0}")
        A(f"buffer_load_dwordx4 v{voff}, s[{srdb}:{srdb+3}], {soff} offen {flags} lds")
    def check_f32(bad, regs, first=True):
        for gi, b in enumerate(regs):
            for j in range(4):
                if first and gi == 0 and j == 0: A(f"v_xor_b32 v{bad}, s8, v{b}")
                else: A(f"v_bitop3_b32 v{bad}, v{b+j}, s{8+j}, v{bad} bitop3:0xbe")
    def poll(loads, check, base_exec="-1", wqm=False, first_wait=0, between=None, sid=None, alt=None, deferred=None):
        L = A.lab("poll"); D = A.lab("got"); K0 = cfg["k0"]
        if alt: A(f"s_mov_b32 {alt[0]}, {alt[1]}")
        if base_exec != "-1": A(f"s_mov_b64 exec, {base_exec}")
        loads()
        if between is not None:
            if base_exec != "-1": A("s_mov_b64 exec, -1")
            between()
            if base_exec != "-1": A(f"s_mov_b64 exec, {base_exec}")
        A(f"s_waitcnt vmcnt({first_wait})")
        if sid is not None: stamp(16 + sid)
        check()
        if wqm: A("s_wqm_b64 vcc, vcc")
        A("s_mov_b32 s14, 0")
        A("s_and_b64 exec, exec, vcc")
        A(f"s_cbranch_scc0 {D}")
        A(f"{L}:")
        if cfg["sleep"]: A(f"s_sleep {cfg['sleep']}")
        if alt:
            A("s_bitcmp1_b32 s14, 0"); A(f"s_cselect_b32 {alt[0]}, {alt[2]}, {alt[1]}")
            A(f"s_cmp_lt_u32 s14, {K0}"); A(f"s_cselect_b32 {alt[0]}, {alt[1]}, {alt[0]}")
        if deferred:
            sk = A.lab("sk"); A(f"s_cmp_lg_u32 s14, {K0}"); A(f"s_cbranch_scc1 {sk}")
            A("s_mov_b64 s[86:87], exec"); deferred(); A("s_mov_b64 exec, s[86:87]"); A(f"{sk}:")
        loads()
        A("s_waitcnt vmcnt(0)")
        check()
        if wqm: A("s_wqm_b64 vcc, vcc")
        A("s_add_u32 s14, s14, 1"); A(f"s_cmp_lt_u32 s14, {cfg['spin_cap']}"); A(f"s_cbranch_scc0 {D}")
        A("s_and_b64 exec, exec, vcc")
        A(f"s_cbranch_scc1 {L}")
        A(f"{D}:")
        if deferred:
            sk = A.lab("sk"); A(f"s_cmp_gt_u32 s14, {K0}"); A(f"s_cbranch_scc1 {sk}"); deferred(); A(f"{sk}:")
        A("s_mov_b64 exec, -1")
        if sid is not None and cfg["stamps"]: A("s_add_u32 s14, s14, 1"); A(f"v_writelane_b32 v0, s14, {24 + sid}")
    def store2(v, voff, soff, off, dist):
        o = f" offset:{off}" if off else ""
        if cfg["local"]:
            A(f"s_add_u32 s15, {soff}, {dist}"); A(f"buffer_store_dword v{v}, v{voff}, s[44:47], s15 offen{o}")
        A(f"buffer_store_dword v{v}, v{voff}, s[44:47], {soff} offen{o} sc1")
    def allreduce_groups(v, t, op):
        A(f"v_mov_b32 v{t}, v{v}"); A(f"v_permlane16_swap_b32 v{v}, v{t}"); A(f"{op} v{v}, v{v}, v{t}")
        A(f"v_mov_b32 v{t}, v{v}"); A(f"v_permlane32_swap_b32 v{v}, v{t}"); A(f"{op} v{v}, v{v}, v{t}")
    def allreduce_row(v, op):
        for r in (8, 4, 2, 1): A(f"{op}_dpp v{v}, v{v}, v{v} row_ror:{r} row_mask:0xf bank_mask:0xf")
    def select4(d, srcs):
        for g in (1, 2, 3): A(f"v_mov_b32_dpp v{d}, v{srcs[g]} quad_perm:[0,1,2,3] row_mask:{hex(1<<g)} bank_mask:0xf")
    def write_stamps():
        if not cfg["stamps"]: return
        A("s_mov_b64 exec, -1"); A("s_lshl_b32 s12, s2, 3"); A("s_add_u32 s12, s12, s3"); A("s_lshl_b32 s12, s12, 8"); A(f"s_add_u32 s12, s12, {WS_ST}")
        A("v_lshlrev_b32 v4, 2, v1")
        A("buffer_store_dword v0, v4, s[44:47], s12 offen")

    A(f"{NAME}:")
    if cfg["stamps"]:
        A("s_memrealtime s[86:87]")
    A("s_cmp_ge_u32 s2, 256"); A("s_cbranch_scc1 L_exit")
    A("s_load_dwordx16 s[16:31], s[0:1], 0"); A("s_load_dwordx8 s[32:39], s[0:1], 64"); A("s_load_dwordx2 s[40:41], s[0:1], 96")
    A("v_lshrrev_b32 v1, 6, v0"); A("s_and_b32 s4, s2, 7"); A("v_readfirstlane_b32 s3, v1")
    A("s_lshr_b32 s5, s2, 3"); A("s_and_b32 s5, s5, 15")
    A("v_and_b32 v1, 63, v0")
    A("v_and_b32 v2, 15, v1")
    A("v_lshrrev_b32 v3, 4, v1")
    LANE, N, G = 1, 2, 3
    if cfg["stamps"]: A("s_waitcnt lgkmcnt(0)"); A("v_mov_b32 v0, 0"); A("v_writelane_b32 v0, s86, 0")
    A("s_lshr_b32 s72, s5, 2"); A("s_lshl_b32 s73, s4, 2"); A("s_add_u32 s72, s72, s73")
    A("s_and_b32 s73, s5, 3")
    A("s_cmp_ge_u32 s2, 128"); A("s_cbranch_scc1 L_P")

    def common_regs(R):
        R("tq"); R("t0"); R("t1"); R("offq"); R("trq"); R("offd")
        R("trb", 4); R("bad"); R("tagb")
    def addr_q_style(R):
        r = R.d
        A("s_and_b32 s12, s3, 1"); A("s_lshl_b32 s12, s12, 2")
        A(f"v_add_u32 v{r['t0']}, s12, v{G}"); A(f"v_lshlrev_b32 v{r['t0']}, 1, v{r['t0']}")
        A(f"v_xor_b32 v{r['t0']}, v{r['t0']}, v{N}"); A(f"v_lshlrev_b32 v{r['t0']}, 4, v{r['t0']}")
        A(f"v_lshl_add_u32 v{r['offq']}, v{G}, 13, v{r['t0']}")
    def addr_trq(R, base, sh=1):
        r = R.d
        A(f"v_lshrrev_b32 v{r['t0']}, 2, v{N}")
        A(f"v_and_b32 v{r['t1']}, 1, v{G}"); A(f"v_lshl_add_u32 v{r['t1']}, v{r['t1']}, 2, v{r['t0']}")
        A(f"v_lshlrev_b32 v{r['t1']}, 1, v{r['t1']}")
        A(f"v_bfe_u32 v{r['tq']}, v{N}, 1, 1"); A("s_and_b32 s12, s3, 3" if sh == 2 else "s_mov_b32 s12, s3"); A(f"s_lshl_b32 s12, s12, {sh}"); A(f"v_add_u32 v{r['tq']}, s12, v{r['tq']}")
        A(f"v_xor_b32 v{r['t1']}, v{r['t1']}, v{r['tq']}"); A(f"v_lshlrev_b32 v{r['t1']}, 4, v{r['t1']}")
        A(f"v_lshl_add_u32 v{r['t1']}, v{r['t0']}, 8, v{r['t1']}")
        A(f"v_lshl_add_u32 v{r['t1']}, v{G}, 10, v{r['t1']}")
        A(f"v_and_b32 v{r['t0']}, 1, v{N}"); A(f"v_lshl_add_u32 v{r['trq']}, v{r['t0']}, 3, v{r['t1']}")
        if base: A(f"v_add_u32 v{r['trq']}, {base}, v{r['trq']}")
    def addr_lc_src(dst, R, stride):
        r = R.d
        A(f"v_lshrrev_b32 v{r['t0']}, 3, v{LANE}"); A(f"v_and_b32 v{r['t1']}, 6, v{r['t0']}")
        A(f"v_and_b32 v{dst}, 7, v{LANE}"); A(f"v_xor_b32 v{dst}, v{dst}, v{r['t1']}"); A(f"v_lshlrev_b32 v{dst}, 4, v{dst}")
        A(f"v_mul_u32_u24 v{r['t0']}, {stride}, v{r['t0']}"); A(f"v_add_u32 v{dst}, v{dst}, v{r['t0']}")
    def addr_lc_tr(R, trb, trc=None):
        r = R.d
        A(f"v_lshrrev_b32 v{r['t0']}, 2, v{N}")
        A(f"v_bfe_u32 v{r['tq']}, v{N}, 1, 1")
        if trc is not None:
            A(f"v_and_b32 v{r['t1']}, 6, v{r['t0']}"); A(f"v_xor_b32 v{r['t1']}, v{r['t1']}, v{r['tq']}")
            A(f"v_lshlrev_b32 v{r['t1']}, 4, v{r['t1']}"); A(f"v_lshl_add_u32 v{r['t1']}, v{r['t0']}, 7, v{r['t1']}")
            A(f"v_and_b32 v{trc}, 1, v{N}"); A(f"v_lshl_add_u32 v{trc}, v{trc}, 3, v{r['t1']}")
            A(f"v_add_u32 v{trc}, 4096, v{trc}")
        A(f"v_and_b32 v{r['t1']}, 1, v{G}"); A(f"v_lshl_add_u32 v{r['t0']}, v{r['t1']}, 2, v{r['t0']}")
        A(f"v_and_b32 v{r['t1']}, 6, v{r['t0']}"); A(f"v_xor_b32 v{r['t1']}, v{r['t1']}, v{r['tq']}")
        A(f"v_lshlrev_b32 v{r['t1']}, 4, v{r['t1']}"); A(f"v_lshl_add_u32 v{r['t1']}, v{r['t0']}, 7, v{r['t1']}")
        A(f"v_lshrrev_b32 v{r['t0']}, 1, v{G}"); A(f"v_lshl_add_u32 v{r['t1']}, v{r['t0']}, 10, v{r['t1']}")
        A(f"v_and_b32 v{trb}, 1, v{N}"); A(f"v_lshl_add_u32 v{trb}, v{trb}, 3, v{r['t1']}")
    def tags(R):
        r = R.d
        A(f"s_add_u32 s6, s6, {hex(TAGK)}")
        for j in range(4): A(f"s_bfe_u32 s{8+j}, s6, {hex((8 << 16) | (8*j))}")
        A(f"v_and_b32 v{r['tagb']}, 3, v{LANE}"); A(f"v_lshlrev_b32 v{r['tagb']}, 3, v{r['tagb']}")
        A(f"v_lshrrev_b32 v{r['tagb']}, v{r['tagb']}, s6"); A(f"v_and_b32 v{r['tagb']}, 0xff, v{r['tagb']}")
        A("s_mov_b32 s7, 0xffffff00")
    def tag_dword(v, R): A(f"v_and_or_b32 v{v}, v{v}, s7, v{R.d['tagb']}")
    def code_prefetch(lab0, lab1, dst, t):
        if not cfg["prefetch_code"]: return
        D = A.lab("npf"); PC = A.lab("pc")
        A("s_cmp_lg_u32 s3, 7"); A(f"s_cbranch_scc1 {D}")
        A("s_getpc_b64 s[12:13]"); A(f"{PC}:")
        A(f"s_add_u32 s12, s12, {lab0}-{PC}"); A("s_addc_u32 s13, s13, 0")
        A("s_lshl_b32 s15, s5, 10"); A(f"v_lshl_add_u32 v{t}, v{LANE}, 4, s15")
        A(f"v_min_u32 v{t}, {lab1}-{lab0}-16, v{t}")
        A(f"global_load_dwordx4 v[{dst}:{dst+3}], v{t}, s[12:13]")
        A(f"{D}:")

    R = Regs(4); common_regs(R); r = R.d
    R("offk"); R("offg"); R("trc", 4); R("xa"); R("xg"); R("xz")
    R("acc"); R("acc2")
    R("fa", 8, 4); R("fb", 24, 4); R("d", 32, 4); R("q", 8, 4); R("qa", 4, 4); R("kf", 16, 4)
    R("sa"); R("sb"); R("sc")
    r["x"] = r["kf"]; r["xf"] = r["kf"] + 5
    d = r['d']
    addr_q_style(R)
    A(f"v_lshlrev_b32 v{r['sa']}, 2, v{LANE}")
    A("s_waitcnt lgkmcnt(0)")
    A("s_load_dword s6, s[40:41], 0")
    srd(48, 16, 1152); srd(52, 20, 576*8192)
    code_prefetch("L_S0", "L_S1", r['d'], r['t0'])
    A("L_S0:")
    A("s_mul_i32 s74, s73, 144"); A("s_lshl_b32 s12, s3, 2"); A("s_add_u32 s74, s74, s12"); A("s_lshl_b32 s74, s74, 13")
    A("s_lshl_b32 s75, s72, 8"); A("s_add_u32 s74, s74, s75")
    A("s_lshl_b32 s76, s3, 10")
    def wq_dma(i):
        A(f"s_add_u32 s12, s74, {i*32*8192}"); A(f"s_add_u32 s13, s76, {S_WQ + i*8192}")
        dma(r['offq'], 52, "s12", "s13")
    A("s_lshl_b32 s78, s72, 11")
    A("s_cmp_ge_u32 s3, 4"); A("s_cbranch_scc1 L_S_hi")
    for i in range(5): A(f"buffer_load_dword v{r['x']+i}, v{r['sa']}, s[48:51], 0 offen offset:{256*i}")
    for i in range(5): wq_dma(i)
    srd(44, 40, WS_SIZE)
    addr_trq(R, S_WQ, 2)
    A("s_waitcnt vmcnt(5)")
    xf = r['xf']
    for i in range(5):
        A(f"v_lshlrev_b32 v{xf+2*i}, 16, v{r['x']+i}"); A(f"v_and_b32 v{xf+2*i+1}, 0xffff0000, v{r['x']+i}")
    A(f"v_add_f32 v{r['acc']}, v{xf}, v{xf+1}")
    for i in range(2, 10): A(f"v_add_f32 v{r['acc']}, v{r['acc']}, v{xf+i}")
    allreduce_row(r['acc'], "v_add_f32"); allreduce_groups(r['acc'], r['t0'], "v_add_f32")
    A(f"v_mul_f32 v{r['acc']}, {hex(f2u(1.0/576))}, v{r['acc']}")
    for i in range(10): A(f"v_sub_f32 v{xf+i}, v{xf+i}, v{r['acc']}")
    A(f"v_cmp_gt_u32 vcc, 32, v{LANE}")
    A(f"v_cndmask_b32 v{xf+8}, 0, v{xf+8}, vcc"); A(f"v_cndmask_b32 v{xf+9}, 0, v{xf+9}, vcc")
    A(f"v_mul_f32 v{r['acc2']}, v{xf}, v{xf}")
    for i in range(1, 10): A(f"v_fmac_f32 v{r['acc2']}, v{xf+i}, v{xf+i}")
    allreduce_row(r['acc2'], "v_add_f32"); allreduce_groups(r['acc2'], r['t0'], "v_add_f32")
    A(f"v_mov_b32 v{r['t0']}, {hex(f2u(1e-5))}")
    A(f"v_fmac_f32 v{r['t0']}, {hex(f2u(1.0/576))}, v{r['acc2']}")
    A(f"v_rsq_f32 v{r['t0']}, v{r['t0']}")
    for i in range(10): A(f"v_mul_f32 v{xf+i}, v{xf+i}, v{r['t0']}")
    for i in range(5): A(f"v_cvt_pk_bf16_f32 v{r['x']+i}, v{xf+2*i}, v{xf+2*i+1}")
    for i in range(5): A(f"ds_write_b32 v{r['sa']}, v{r['x']+i} offset:{S_XN + 256*i}")
    A("s_waitcnt lgkmcnt(0)")
    tags(R)
    A("s_mul_i32 s12, s73, 288"); A(f"v_lshl_add_u32 v{r['xa']}, v{G}, 3, s12")
    for q in range(9): A(f"ds_read_b64 {ar(2*q, 2)}, v{r['xa']} offset:{S_XN + 32*q}")
    A(f"v_xor_b32 v{r['t0']}, 32, v{r['trq']}")
    A("s_lshl_b32 s12, s73, 9"); A("s_add_u32 s12, s12, s78"); A("s_lshl_b32 s13, s3, 7"); A("s_add_u32 s12, s12, s13")
    A(f"s_add_u32 s79, s12, {WS_QP}")
    stamp(1)
    A("s_waitcnt vmcnt(0)"); A("s_barrier")
    stamp(2)
    for q in range(9):
        A(f"ds_read_b64_tr_b16 {ar(20+2*q, 2)}, v{r['trq']} offset:{4096*q}")
        A(f"ds_read_b64_tr_b16 {ar(40+2*q, 2)}, v{r['t0']} offset:{4096*q}")
    for v in range(4):
        A(f"s_waitcnt lgkmcnt({14-4*v})")
        for t in range(2): A(f"v_mfma_f32_16x16x32_bf16 {vr(d+4*t,4)}, {ar(4*v,4)}, {ar(20+20*t+4*v,4)}, {'0' if v == 0 else vr(d+4*t,4)}")
    A("s_waitcnt lgkmcnt(0)")
    for t in range(2): A(f"v_mfma_f32_16x16x16_bf16 {vr(d+8+4*t,4)}, {ar(16,2)}, {ar(36+20*t,2)}, 0")
    A(f"v_add_f32 v{d}, v{d}, v{d+8}"); A(f"v_add_f32 v{d+4}, v{d+4}, v{d+12}")
    A(f"v_mov_b32_dpp v{d}, v{d+4} quad_perm:[0,1,2,3] row_mask:0x2 bank_mask:0xf")
    tag_dword(d, R)
    A("s_mov_b32 exec_hi, 0")
    store2(d, r['sa'], "s79", 0, WS_QPL - WS_QP)
    A("s_mov_b64 exec, -1")
    stamp(3)
    srd(60, 30, 576*9216); srd(64, 32, 576*9216); srd(68, 34, 4608*1152)
    addr_lc_src(r['offg'], R, 9216); addr_lc_src(r['offd'], R, 1152)
    addr_lc_tr(R, r['trb'], r['trc'])
    A("s_barrier")
    A("s_branch L_S_ffn")
    A("L_S_hi:")
    for i in range(4): wq_dma(i)
    srd(56, 22, 512*8192)
    A(f"v_xor_b32 v{r['t0']}, v{G}, v{N}"); A(f"v_lshlrev_b32 v{r['t0']}, 4, v{r['t0']}")
    A(f"v_lshl_add_u32 v{r['offk']}, v{G}, 13, v{r['t0']}")
    A("s_sub_u32 s80, s3, 4")
    A("s_lshl_b32 s74, s73, 7"); A("s_lshl_b32 s12, s80, 5"); A("s_add_u32 s74, s74, s12"); A("s_lshl_b32 s74, s74, 13"); A("s_add_u32 s74, s74, s75")
    A("s_lshl_b32 s77, s80, 13")
    nk0 = cfg["wuk_pre"]
    def wuk_dma(i):
        A(f"s_add_u32 s12, s74, {i*4*8192}"); A(f"s_add_u32 s13, s77, {S_WUK + i*1024}")
        dma(r['offk'], 56, "s12", "s13")
        if i < 7: A(f"v_xor_b32 v{r['offk']}, {(((i%4) ^ ((i+1)%4)) << 6)}, v{r['offk']}")
    for i in range(nk0): wuk_dma(i)
    srd(44, 40, WS_SIZE); srd(60, 30, 576*9216); srd(64, 32, 576*9216); srd(68, 34, 4608*1152)
    stamp(1)
    A(f"s_waitcnt vmcnt({nk0})"); A("s_barrier")
    stamp(2)
    for i in range(nk0, 8): wuk_dma(i)
    addr_lc_src(r['offg'], R, 9216); addr_lc_src(r['offd'], R, 1152)
    addr_lc_tr(R, r['trb'], r['trc'])
    A("s_waitcnt lgkmcnt(0)")
    tags(R)
    A(f"v_and_b32 v{r['t0']}, 3, v{N}"); A(f"v_lshlrev_b32 v{r['t0']}, 9, v{r['t0']}")
    A(f"v_lshrrev_b32 v{r['t1']}, 2, v{N}"); A(f"v_lshl_add_u32 v{r['t0']}, v{r['t1']}, 7, v{r['t0']}")
    A(f"v_lshl_add_u32 v{r['sb']}, v{G}, 5, v{r['t0']}")
    A(f"s_add_u32 s79, s78, {WS_QP}"); A(f"s_add_u32 s84, s78, {WS_QPL}"); A("s_mov_b32 s85, s79")
    def ld():
        A(f"buffer_load_dwordx4 {vr(r['q'],4)}, v{r['sb']}, s[44:47], s79 offen sc1")
        A(f"buffer_load_dwordx4 {vr(r['q']+4,4)}, v{r['sb']}, s[44:47], s79 offen offset:16 sc1")
    def ck():
        check_f32(r['bad'], [r['q'], r['q']+4]); A(f"v_and_b32 v{r['bad']}, 0xff, v{r['bad']}"); A(f"v_cmp_ne_u32 vcc, 0, v{r['bad']}")
    def bt():
        A(f"v_xor_b32 v{r['t0']}, v{G}, v{N}"); A(f"v_lshlrev_b32 v{r['t0']}, 4, v{r['t0']}")
        A(f"v_lshl_add_u32 v{r['t0']}, v{N}, 8, v{r['t0']}"); A(f"v_add_u32 v{r['t0']}, s77, v{r['t0']}")
        A("s_waitcnt vmcnt(2)")
        stamp(3)
        for v in range(4):
            for t in range(2): A(f"ds_read_b128 {ar(16*t+4*v,4)}, v{r['t0']} offset:{S_WUK + 4096*t}")
            if v < 3: A(f"v_xor_b32 v{r['t0']}, {((v ^ (v+1)) << 6)}, v{r['t0']}")
    poll(ld, ck, between=bt, sid=0, alt=("s79", "s84", "s85") if cfg["local"] else None)
    stamp(4)
    for e in range(8): A(f"v_and_b32 v{r['q']+e}, s7, v{r['q']+e}")
    for e in range(4): A(f"v_cvt_pk_bf16_f32 v{r['qa']+e}, v{r['q']+2*e}, v{r['q']+2*e+1}")
    A("s_waitcnt lgkmcnt(0)")
    for t in range(2):
        for v in range(4): A(f"v_mfma_f32_16x16x32_bf16 {vr(d+16*t+4*v,4)}, {vr(r['qa'],4)}, {ar(16*t+4*v,4)}, 0")
    A("s_lshl_b32 s12, s73, 9"); A("s_add_u32 s12, s12, s78"); A("s_lshl_b32 s13, s80, 7"); A("s_add_u32 s12, s12, s13"); A(f"s_add_u32 s12, s12, {WS_QA}")
    for t in range(2):
        for v in range(4):
            b_ = d + 16*t + 4*v
            A(f"v_add_f32 v{b_}, v{b_}, v{b_+1}"); A(f"v_add_f32 v{b_+2}, v{b_+2}, v{b_+3}"); A(f"v_add_f32 v{b_}, v{b_}, v{b_+2}")
        select4(d+16*t, [d+16*t, d+16*t+4, d+16*t+8, d+16*t+12])
    A(f"v_permlane16_swap_b32 v{d}, v{d+16}"); A(f"v_add_f32 v{d}, v{d}, v{d+16}")
    A(f"v_mov_b32 v{r['t0']}, v{d}"); A(f"v_permlane32_swap_b32 v{d}, v{r['t0']}"); A(f"v_add_f32 v{d}, v{d}, v{r['t0']}")
    tag_dword(d, R)
    A("s_mov_b32 exec_hi, 0")
    A(f"buffer_store_dword v{d}, v{r['sa']}, s[44:47], s12 offen sc1")
    A("s_mov_b64 exec, -1")
    A("s_barrier")
    A("L_S_ffn:")
    stamp(5)
    A("s_mul_i32 s74, s5, 36*9216"); A("s_mul_i32 s12, s4, 1152"); A("s_add_u32 s74, s74, s12")
    A("s_and_b32 s80, s3, 3"); A("s_lshr_b32 s81, s3, 2")
    A("s_mul_i32 s82, s81, 41472"); A(f"s_add_u32 s82, s82, {S_GATE + 8*4608}")
    up9 = A.lab("up9"); j9 = A.lab("j9")
    A("s_mul_i32 s12, s80, 8*9216"); A("s_add_u32 s12, s12, s74"); A("s_add_u32 s12, s12, 1024")
    A("s_lshl_b32 s13, s80, 10"); A("s_add_u32 s13, s13, s82")
    A(f"s_add_u32 s15, s74, {32*9216 + 1024}"); A("s_add_u32 s83, s82, 4096")
    A("s_cmp_lg_u32 s81, 0"); A(f"s_cbranch_scc1 {up9}")
    for sb_, nxt in ((60, j9), (64, None)):
        sk = A.lab("sk")
        dma(r['offg'], sb_, "s12", "s13")
        A("s_cmp_lg_u32 s80, 0"); A(f"s_cbranch_scc1 {sk}")
        A("s_mov_b32 exec_hi, 0"); dma(r['offg'], sb_, "s15", "s83"); A("s_mov_b64 exec, -1")
        A(f"{sk}:")
        if nxt: A(f"s_branch {nxt}"); A(f"{up9}:")
    A(f"{j9}:")
    A("s_lshl_b32 s12, s3, 7"); A("s_add_u32 s74, s74, s12")
    A("s_mul_i32 s76, s3, 4608")
    cnt = 0
    for mat, (sb_, base) in enumerate(((60, S_GATE), (64, S_UP))):
        for b in range(5):
            if cfg["s_win"] is not None and cnt >= cfg["s_win"]: A(f"s_waitcnt vmcnt({cfg['s_win']-1})")
            A(f"s_add_u32 s12, s74, {b*8*9216}"); A(f"s_add_u32 s13, s76, {base + b*1024}")
            if b == 4: A("s_mov_b32 exec_hi, 0")
            dma(r['offg'], sb_, "s12", "s13")
            if b == 4: A("s_mov_b64 exec, -1")
            cnt += 1
    A("s_mul_i32 s12, s5, 72"); A(f"v_lshl_add_u32 v{r['xg']}, v{G}, 3, s12")
    A(f"v_mov_b32 v{r['xz']}, {S_ZERO - S_XN}"); A("s_add_u32 s12, s12, 64"); A(f"v_mov_b32 v{r['t0']}, s12")
    A(f"v_cmp_gt_u32 vcc, 16, v{LANE}"); A(f"v_cndmask_b32 v{r['xz']}, v{r['xz']}, v{r['t0']}, vcc")
    A(f"ds_read_b64 {vr(r['fa'],2)}, v{r['xg']} offset:{S_XN}"); A(f"ds_read_b64 {vr(r['fa']+2,2)}, v{r['xg']} offset:{S_XN+32}")
    A(f"ds_read_b64 {vr(r['fa']+4,2)}, v{r['xz']} offset:{S_XN}")
    A("s_lshl_b32 s79, s4, 4"); A("s_add_u32 s79, s79, s5"); A("s_mul_i32 s79, s79, 4608"); A(f"s_add_u32 s79, s79, {WS_GU}")
    A(f"s_add_u32 s77, s76, {S_GATE}")
    for b_ in (r['trb'], r['trc']):
        A(f"v_add_u32 v{b_}, s77, v{b_}")
        for t in (1, 2, 3): A(f"v_xor_b32 v{b_+t}, {t << 5}, v{b_}")
    fb = r['fb']; fa = r['fa']
    def lc_column(base, extra_k):
        for t in range(4):
            A(f"ds_read_b64_tr_b16 {vr(fb+4*t,2)}, v{r['trb']+t} offset:{base}")
            A(f"ds_read_b64_tr_b16 {vr(fb+4*t+2,2)}, v{r['trb']+t} offset:{base+2048}")
            if extra_k: A(f"ds_read_b64_tr_b16 {vr(fb+16+2*t,2)}, v{r['trc']+t} offset:{base}")
        per = 3 if extra_k else 2
        for t in range(4):
            A(f"s_waitcnt lgkmcnt({per*(3-t)})")
            A(f"v_mfma_f32_16x16x32_bf16 {vr(d+4*t,4)}, {vr(fa,4)}, {vr(fb+4*t,4)}, 0")
        if extra_k:
            for t in range(4): A(f"v_mfma_f32_16x16x16_bf16 {vr(d+4*t,4)}, {vr(fa+4,2)}, {vr(fb+16+2*t,2)}, {vr(d+4*t,4)}")
    def lc_pair9(sbase, spair, ta, tb):
        A(f"s_lshl_b32 s12, {spair}, 6"); A(f"s_sub_u32 s13, {sbase}, s77")
        for t in range(2):
            A(f"v_xor_b32 v{ta}, s12, v{r['trb']+t}"); A(f"v_add_u32 v{ta}, s13, v{ta}")
            A(f"v_xor_b32 v{tb}, s12, v{r['trc']+t}"); A(f"v_add_u32 v{tb}, s13, v{tb}")
            A(f"ds_read_b64_tr_b16 {vr(fb+4*t,2)}, v{ta}"); A(f"ds_read_b64_tr_b16 {vr(fb+4*t+2,2)}, v{ta} offset:2048")
            A(f"ds_read_b64_tr_b16 {vr(fb+16+2*t,2)}, v{tb}")
        A("s_waitcnt lgkmcnt(0)")
        for t in range(2): A(f"v_mfma_f32_16x16x32_bf16 {vr(d+4*t,4)}, {vr(fa,4)}, {vr(fb+4*t,4)}, 0")
        for t in range(2): A(f"v_mfma_f32_16x16x16_bf16 {vr(d+8+4*t,4)}, {vr(fa+4,2)}, {vr(fb+16+2*t,2)}, 0")
        A(f"v_add_f32 v{d}, v{d}, v{d+8}"); A(f"v_add_f32 v{d+4}, v{d+4}, v{d+12}")
        A(f"v_mov_b32_dpp v{d}, v{d+4} quad_perm:[0,1,2,3] row_mask:0x2 bank_mask:0xf")
        tag_dword(d, R)
    A("s_waitcnt vmcnt(5)"); A("s_barrier")
    stamp(6)
    lc_column(0, True)
    select4(d, [d, d+4, d+8, d+12]); tag_dword(d, R)
    A("s_lshl_b32 s83, s3, 8"); A("s_add_u32 s83, s83, s79")
    store2(d, r['sa'], "s83", 0, WS_GUL - WS_GU)
    sk = A.lab("sk")
    A("s_cmp_ge_u32 s80, 2"); A(f"s_cbranch_scc1 {sk}")
    lc_pair9("s82", "s80", r['t0'], r['t1'])
    A("s_mul_i32 s12, s81, 2304"); A("s_add_u32 s12, s12, s79"); A("s_lshl_b32 s13, s80, 7"); A("s_add_u32 s12, s12, s13")
    A("s_mov_b32 exec_hi, 0"); store2(d, r['sa'], "s12", 2048, WS_GUL - WS_GU); A("s_mov_b64 exec, -1")
    A(f"{sk}:")
    A("s_mul_i32 s74, s4, 576"); A("s_mul_i32 s12, s5, 36"); A("s_add_u32 s74, s74, s12"); A("s_mul_i32 s74, s74, 1152")
    sk = A.lab("sk"); sk2 = A.lab("sk")
    A("s_cmp_ge_u32 s3, 5"); A(f"s_cbranch_scc1 {sk}")
    A("s_mul_i32 s12, s3, 8*1152"); A("s_add_u32 s12, s12, s74"); A("s_add_u32 s12, s12, 1024")
    A("s_lshl_b32 s13, s3, 10"); A(f"s_add_u32 s13, s13, {S_DOWN + 8*4608}")
    A("s_cmp_lg_u32 s3, 4"); A(f"s_cbranch_scc1 {sk2}"); A("s_mov_b32 exec_hi, 0"); A(f"{sk2}:")
    dma(r['offd'], 68, "s12", "s13")
    A("s_mov_b64 exec, -1")
    A(f"{sk}:")
    A("s_lshl_b32 s12, s3, 7"); A("s_add_u32 s74, s74, s12")
    def down_dma(b):
        A(f"s_add_u32 s12, s74, {b*8*1152}"); A(f"s_add_u32 s13, s76, {S_DOWN + b*1024}")
        if b == 4: A("s_mov_b32 exec_hi, 0")
        dma(r['offd'], 68, "s12", "s13")
        if b == 4: A("s_mov_b64 exec, -1")
    npre = cfg["down_pre"]
    for b in range(npre): down_dma(b)
    A(f"s_waitcnt vmcnt({npre + (2 if cfg['local'] else 1)})")
    stamp(7)
    lc_column(S_UP - S_GATE, True)
    for b_ in (r['trb'], r['trc']):
        for t in range(4): A(f"v_subrev_u32 v{b_+t}, {S_GATE - S_DOWN}, v{b_+t}")
    A(f"s_add_u32 s77, s76, {S_DOWN}")
    select4(d, [d, d+4, d+8, d+12]); tag_dword(d, R)
    store2(d, r['sa'], "s83", 2304, WS_GUL - WS_GU)
    stamp(8)
    A(f"v_and_b32 v{r['t0']}, 31, v{LANE}"); A(f"v_lshrrev_b32 v{r['t1']}, 5, v{LANE}")
    A(f"v_lshlrev_b32 v{r['sb']}, 4, v{r['t0']}"); A(f"v_lshl_add_u32 v{r['sc']}, v{r['t1']}, 3, v{r['sb']}")
    A(f"v_mul_u32_u24 v{r['t1']}, 4608, v{r['t1']}"); A(f"v_add_u32 v{r['sb']}, v{r['sb']}, v{r['t1']}")
    A(f"v_add_u32 v{r['t1']}, {2304 - 144}, v{r['sb']}"); A(f"v_cmp_lt_u32 vcc, 8, v{r['t0']}"); A(f"v_cndmask_b32 v{r['sb']}, v{r['sb']}, v{r['t1']}, vcc")
    A("s_lshl_b32 s79, s4, 4"); A("s_lshl_b32 s12, s3, 1"); A("s_add_u32 s79, s79, s12"); A("s_mul_i32 s79, s79, 4608")
    A("s_mul_i32 s12, s5, 144"); A("s_add_u32 s79, s79, s12"); A(f"s_add_u32 s79, s79, {WS_GU}")
    A("s_mov_b32 s84, 0x3ffff"); A("s_mov_b32 s85, 0x3ffff")
    def ld(): A(f"buffer_load_dwordx4 {vr(r['q'],4)}, v{r['sb']}, s[44:47], s79 offen sc1")
    def ck():
        check_f32(r['bad'], [r['q']]); A(f"v_and_b32 v{r['bad']}, 0xff, v{r['bad']}"); A(f"v_cmp_ne_u32 vcc, 0, v{r['bad']}")
    def bt():
        for b in range(npre, 5): down_dma(b)
    A(f"s_add_u32 s82, s79, {WS_GUL - WS_GU}"); A("s_mov_b32 s83, s79")
    poll(ld, ck, base_exec="s[84:85]", first_wait=5 - npre, between=bt if npre < 5 else None, sid=1, alt=("s79", "s82", "s83") if cfg["local"] else None)
    stamp(9)
    q = r['q']
    for e in range(4): A(f"v_and_b32 v{q+e}, s7, v{q+e}")
    A(f"v_permlane32_swap_b32 v{q}, v{q+2}"); A(f"v_permlane32_swap_b32 v{q+1}, v{q+3}")
    A(f"v_add_f32 v{q}, v{q}, v{q+2}"); A(f"v_add_f32 v{q+1}, v{q+1}, v{q+3}")
    A("s_mul_i32 s12, s3, 288"); A(f"v_add_u32 v{r['sc']}, s12, v{r['sc']}")
    A("s_mov_b64 exec, s[84:85]")
    A(f"v_add_u32 v{r['sc']}, {S_GUL}, v{r['sc']}")
    A(f"ds_write_b64 v{r['sc']}, {vr(q,2)}")
    A("s_mov_b64 exec, -1")
    A("s_waitcnt lgkmcnt(0)"); A("s_barrier")
    A(f"v_min_u32 v{r['t0']}, 35, v{LANE}"); A(f"v_lshlrev_b32 v{r['t1']}, 2, v{r['t0']}"); A(f"v_add_u32 v{r['t1']}, {S_GUL}, v{r['t1']}")
    kf = r['kf']
    for w_ in range(8):
        A(f"ds_read_b32 v{kf+w_}, v{r['t1']} offset:{288*w_}"); A(f"ds_read_b32 v{kf+8+w_}, v{r['t1']} offset:{288*w_+144}")
    A("s_lshl_b32 s12, s3, 7"); A(f"s_add_u32 s12, s12, {S_HB}")
    A(f"v_lshl_add_u32 v{r['sb']}, v{r['t0']}, 1, s12")
    A(f"v_lshl_add_u32 v{r['xg']}, v{G}, 3, s12")
    A(f"v_mov_b32 v{r['xz']}, {S_ZERO}"); A("s_add_u32 s12, s12, 64"); A(f"v_mov_b32 v{r['t0']}, s12")
    A(f"v_cmp_gt_u32 vcc, 16, v{LANE}"); A(f"v_cndmask_b32 v{r['xz']}, v{r['xz']}, v{r['t0']}, vcc")
    A("s_waitcnt lgkmcnt(0)")
    for st in (4, 2, 1):
        for e in range(st):
            A(f"v_add_f32 v{kf+e}, v{kf+e}, v{kf+e+st}"); A(f"v_add_f32 v{kf+8+e}, v{kf+8+e}, v{kf+8+e+st}")
    A(f"v_mul_f32 v{kf}, {hex(f2u(-1.4426950408889634))}, v{kf}")
    A(f"v_exp_f32 v{kf}, v{kf}"); A(f"v_add_f32 v{kf}, 1.0, v{kf}"); A(f"v_rcp_f32 v{kf}, v{kf}")
    A(f"v_mul_f32 v{kf}, v{kf}, v{kf+8}"); A(f"v_cvt_pk_bf16_f32 v{kf}, v{kf}, v{kf}")
    A(f"ds_write_b16 v{r['sb']}, v{kf}")
    A("s_waitcnt lgkmcnt(0)")
    A(f"ds_read_b64 {vr(fa,2)}, v{r['xg']}"); A(f"ds_read_b64 {vr(fa+2,2)}, v{r['xg']} offset:32"); A(f"ds_read_b64 {vr(fa+4,2)}, v{r['xz']}")
    A("s_mul_i32 s79, s2, 2304"); A(f"s_add_u32 s79, s79, {WS_OP}")
    stamp(10)
    sk = A.lab("sk")
    A("s_cmp_ge_u32 s3, 2"); A(f"s_cbranch_scc1 {sk}")
    A(f"s_mov_b32 s82, {S_DOWN + 8*4608}")
    lc_pair9("s82", "s3", r['t0'], r['t1'])
    A("s_lshl_b32 s12, s3, 7"); A("s_add_u32 s12, s12, s79")
    A("s_mov_b32 exec_hi, 0"); A(f"buffer_store_dword v{d}, v{r['sa']}, s[44:47], s12 offen offset:2048 sc1"); A("s_mov_b64 exec, -1")
    A("s_waitcnt vmcnt(1)")
    jn = A.lab("jn"); A(f"s_branch {jn}")
    A(f"{sk}:")
    A("s_waitcnt vmcnt(0)")
    A(f"{jn}:")
    stamp(11)
    lc_column(0, True)
    A("s_lshl_b32 s12, s3, 8"); A("s_add_u32 s12, s12, s79")
    select4(d, [d, d+4, d+8, d+12]); tag_dword(d, R)
    A(f"buffer_store_dword v{d}, v{r['sa']}, s[44:47], s12 offen sc1")
    stamp(12)
    write_stamps()
    A("s_endpgm")
    A("L_S1:")

    A("L_P:")
    R = Regs(4); common_regs(R); r = R.d
    R("l16"); R("sa"); R("sb"); R("sc"); R("qkb"); R("pva"); R("pvb"); R("qbw"); R("qbr")
    R("tl", 4); R("xres"); R("m"); R("ms")
    R("mxw"); R("mxr"); R("pfw"); R("pfr"); R("tbw"); R("tbr"); R("pst"); R("h3d"); R("h3m"); R("pbw"); R("pbr")
    R("h4a"); R("wmr"); R("wmo"); R("wob"); R("wo9")
    R("h2", 16, 4); R("bq", 16, 4); R("s", 4, 4); R("acc", 16, 4); R("accl", 8, 4); R("fm", 12, 4)
    UVF = 0; WOF = 32
    A(f"v_lshlrev_b32 v{r['l16']}, 4, v{LANE}")
    A("s_lshr_b32 s74, s5, 1"); A("s_lshl_b32 s12, s4, 3"); A("s_add_u32 s74, s74, s12")
    A("s_and_b32 s75, s5, 1")
    A("s_lshl_b32 s76, s74, 7"); A("s_add_u32 s76, s76, s3")
    A("s_lshl_b32 s12, s75, 6"); A("s_xor_b32 s13, s12, 64")
    A("s_add_u32 s77, s76, s13"); A("s_add_u32 s76, s76, s12")
    A("s_lshl_b32 s76, s76, 10"); A("s_lshl_b32 s77, s77, 10")
    A(f"s_mul_i32 s78, s3, {CKS}")
    A("s_waitcnt lgkmcnt(0)")
    A("s_load_dword s6, s[40:41], 0")
    srd(52, 18, 8192*1024)
    code_prefetch("L_P0", "L_P1", r['h2'], r['t0'])
    A("L_P0:")
    def ck_dma(i):
        sreg = "s76" if i < 8 else "s77"
        if cfg["p_win1"] is not None and cfg["p_win1"] <= i < cfg["p_n1"]: A(f"s_waitcnt vmcnt({cfg['p_win1']-1})")
        A(f"s_add_u32 s13, s78, {P_CK + i*8*CKS}")
        dma(r['l16'], 52, sreg, "s13")
        if i % 8 < 7: A(f"s_add_u32 {sreg}, {sreg}, 8192")
    ck_dma(0)
    srd(44, 40, WS_SIZE); srd(56, 24, 512*8192); srd(60, 26, 4096*1152); srd(48, 16, 1152); srd(64, 36, 1152)
    A(f"v_lshlrev_b32 v{r['sa']}, 2, v{LANE}")
    A("s_lshl_b32 s12, s3, 4"); A(f"v_add_u32 v{r['t0']}, s12, v{N}"); A(f"v_mul_u32_u24 v{r['t0']}, {CKS}, v{r['t0']}")
    A(f"v_lshl_add_u32 v{r['qkb']}, v{G}, 4, v{r['t0']}")
    A(f"v_lshrrev_b32 v{r['t0']}, 2, v{N}"); A(f"v_lshl_add_u32 v{r['t0']}, v{G}, 2, v{r['t0']}"); A(f"v_mul_u32_u24 v{r['t0']}, {CKS}, v{r['t0']}")
    A(f"v_and_b32 v{r['t1']}, 3, v{N}"); A(f"v_lshl_add_u32 v{r['t0']}, v{r['t1']}, 3, v{r['t0']}")
    A("s_lshl_b32 s12, s3, 7"); A(f"v_add_u32 v{r['pva']}, s12, v{r['t0']}"); A(f"v_add_u32 v{r['pvb']}, {64*CKS}, v{r['pva']}")
    A(f"v_bfe_u32 v{r['t0']}, v{LANE}, 1, 2"); A("s_lshl_b32 s12, s3, 1"); A(f"v_xor_b32 v{r['t1']}, s12, v{r['t0']}")
    A(f"v_lshlrev_b32 v{r['t1']}, 4, v{r['t1']}"); A(f"v_lshl_add_u32 v{r['t1']}, v{r['t0']}, 8, v{r['t1']}")
    A(f"v_lshrrev_b32 v{r['t0']}, 3, v{LANE}"); A(f"v_mul_u32_u24 v{r['t0']}, 1088, v{r['t0']}"); A(f"v_add_u32 v{r['t1']}, v{r['t1']}, v{r['t0']}")
    A(f"v_and_b32 v{r['t0']}, 1, v{LANE}"); A(f"v_lshl_add_u32 v{r['t1']}, v{r['t0']}, 3, v{r['t1']}"); A(f"v_add_u32 v{r['qbw']}, {P_QB}, v{r['t1']}")
    A(f"v_xor_b32 v{r['t0']}, v{N}, v{G}"); A(f"v_lshlrev_b32 v{r['t0']}, 4, v{r['t0']}"); A(f"v_lshl_add_u32 v{r['t0']}, v{G}, 8, v{r['t0']}")
    A(f"v_add_u32 v{r['qbr']}, {P_QB}, v{r['t0']}")
    h2pos = cfg["h2_pos"]
    assert 8 <= h2pos <= 16
    for i in range(1, 8): ck_dma(i)
    addr_q_style(R); addr_trq(R, P_WUV, 2); addr_lc_src(r['offd'], R, 1152); addr_lc_tr(R, r['trb'])
    A("s_waitcnt lgkmcnt(0)")
    tags(R)
    for j in range(4):
        A(f"v_bfe_u32 v{r['t0']}, v{r['tagb']}, {2*j}, 1"); A(f"v_bfe_u32 v{r['t1']}, v{r['tagb']}, {2*j+1}, 1")
        A(f"v_lshl_or_b32 v{r['tl']+j}, v{r['t1']}, 16, v{r['t0']}")
    t0 = r['t0']; t1 = r['t1']
    A(f"v_lshlrev_b32 v{t0}, 5, v{N}"); A(f"v_add_u32 v{r['mxr']}, {P_MX}, v{t0}"); A("s_lshl_b32 s12, s3, 2"); A(f"v_add_u32 v{r['mxw']}, s12, v{r['mxr']}")
    A("s_lshr_b32 s12, s3, 1"); A("s_lshl_b32 s12, s12, 10"); A("s_and_b32 s13, s3, 1"); A("s_lshl_b32 s13, s13, 3"); A("s_add_u32 s12, s12, s13")
    A(f"v_add_u32 v{r['pfr']}, {P_PF}, v{r['l16']}"); A(f"v_add_u32 v{r['pfw']}, s12, v{r['pfr']}")
    A("s_mul_i32 s12, s3, 2304"); A(f"s_add_u32 s12, s12, {P_TB}")
    A(f"v_mul_u32_u24 v{t0}, 144, v{N}"); A(f"v_lshl_add_u32 v{t0}, v{G}, 3, v{t0}"); A(f"v_add_u32 v{r['tbw']}, s12, v{t0}")
    A(f"v_lshrrev_b32 v{t0}, 3, v{LANE}"); A(f"v_and_b32 v{t1}, 7, v{LANE}"); A(f"v_lshlrev_b32 v{t1}, 4, v{t1}")
    A(f"v_lshl_add_u32 v{r['pst']}, v{t0}, 16, v{t1}")
    A(f"v_mul_u32_u24 v{t0}, 144, v{t0}"); A(f"v_add3_u32 v{r['tbr']}, v{t0}, v{t1}, s12")
    A(f"v_lshlrev_b32 v{t0}, 4, v{N}"); A(f"v_lshl_add_u32 v{r['h3d']}, v{G}, 10, v{t0}"); A(f"v_lshlrev_b32 v{r['h3m']}, 9, v{G}")
    A(f"v_lshrrev_b32 v{t0}, 2, v{N}"); A(f"v_lshlrev_b32 v{t0}, 4, v{t0}")
    A(f"v_and_b32 v{t1}, 1, v{N}"); A(f"v_lshl_add_u32 v{t0}, v{t1}, 3, v{t0}")
    A(f"v_bfe_u32 v{t1}, v{N}, 1, 1"); A(f"v_lshl_add_u32 v{t0}, v{t1}, 1, v{t0}")
    A(f"v_lshrrev_b32 v{t1}, 1, v{G}"); A(f"v_lshl_add_u32 v{t0}, v{t1}, 2, v{t0}")
    A(f"v_and_b32 v{t1}, 1, v{G}"); A(f"v_add_u32 v{t0}, v{t0}, v{t1}")
    A("s_mul_i32 s12, s3, 272"); A(f"s_add_u32 s12, s12, {P_PB}"); A(f"v_lshl_add_u32 v{r['pbw']}, v{t0}, 2, s12")
    A(f"v_lshlrev_b32 v{t1}, 4, v{t1}"); A(f"v_add_u32 v{r['wmr']}, {P_MX}, v{t1}"); A(f"v_xor_b32 v{r['wmo']}, 16, v{r['wmr']}")
    A(f"v_and_b32 v{t0}, 7, v{N}"); A(f"v_mul_u32_u24 v{t0}, 272, v{t0}"); A(f"v_lshl_add_u32 v{t0}, v{G}, 4, v{t0}"); A(f"v_add_u32 v{r['pbr']}, {P_PB}, v{t0}")
    A(f"v_and_b32 v{t0}, 3, v{N}"); A(f"v_lshlrev_b32 v{t0}, 9, v{t0}"); A(f"v_lshl_add_u32 v{r['h4a']}, v{G}, 4, v{t0}")
    A("s_lshl_b32 s83, s3, 12"); A(f"s_add_u32 s12, s83, {P_WO}"); A(f"v_add_u32 v{r['wob']}, s12, v{r['trb']}")
    A("s_and_b32 s12, s3, 1"); A("s_lshl_b32 s12, s12, 6"); A(f"v_xor_b32 v{t0}, s12, v{r['trb']}"); A(f"v_add_u32 v{r['wo9']}, {P_WO9}, v{t0}")
    A("s_lshl_b32 s80, s73, 7"); A("s_lshl_b32 s12, s3, 2"); A("s_add_u32 s80, s80, s12"); A("s_lshl_b32 s80, s80, 13")
    A("s_lshl_b32 s12, s72, 8"); A("s_add_u32 s80, s80, s12"); A("s_lshl_b32 s81, s3, 10")
    A("s_lshl_b32 s82, s72, 7"); A("s_lshl_b32 s12, s73, 5"); A("s_add_u32 s82, s82, s12"); A("s_mul_i32 s82, s82, 1152")
    for i in range(8, h2pos): ck_dma(i)
    A("s_lshl_b32 s79, s75, 4"); A("s_lshl_b32 s12, s3, 1"); A("s_add_u32 s79, s79, s12"); A("s_lshl_b32 s79, s79, 11"); A(f"s_add_u32 s79, s79, {WS_QA}")
    h2 = r['h2']
    def pv_frags(v0, v1):
        for v in range(v0, v1):
            for u in range(4):
                for rd in range(2):
                    b_ = r['pva'] if v < 2 else r['pvb']
                    A(f"ds_read_b64_tr_b16 {ar(64 + (v*4+u)*4 + 2*rd, 2)}, v{b_} offset:{(32*(v%2) + 16*rd)*CKS + 32*u}")
    def qk_frags():
        for t in range(16): A(f"ds_read_b128 {ar(4*t,4)}, v{r['qkb']} offset:{64*t}")
    def ld():
        for e in range(4): A(f"buffer_load_dwordx4 {vr(h2+4*e,4)}, v{r['l16']}, s[44:47], s79 offen offset:{1024*e} sc1")
    def ck():
        check_f32(r['bad'], [h2, h2+4, h2+8, h2+12]); A(f"v_and_b32 v{r['bad']}, 0xff, v{r['bad']}"); A(f"v_cmp_ne_u32 vcc, 0, v{r['bad']}")
    def bt():
        for i in range(h2pos, 16): ck_dma(i)
        stamp(1)
        A("s_waitcnt vmcnt(12)"); A("s_barrier")
        stamp(2)
        sk = A.lab("sk"); A("s_cmp_ge_u32 s3, 4"); A(f"s_cbranch_scc1 {sk}"); qk_frags(); A(f"{sk}:")
        pv_frags(0, 2)
    poll(ld, ck, first_wait=16 - h2pos, between=bt, sid=0)
    stamp(3)
    for e in range(16): A(f"v_and_b32 v{h2+e}, s7, v{h2+e}")
    for e in range(8): A(f"v_cvt_pk_bf16_f32 v{h2+e}, v{h2+2*e}, v{h2+2*e+1}")
    A(f"v_xor_b32 v{r['t0']}, 16, v{r['qbw']}")
    A(f"ds_write_b64 v{r['qbw']}, {vr(h2,2)}"); A(f"ds_write_b64 v{r['qbw']}, {vr(h2+2,2)} offset:{8*1088}")
    A(f"ds_write_b64 v{r['t0']}, {vr(h2+4,2)}"); A(f"ds_write_b64 v{r['t0']}, {vr(h2+6,2)} offset:{8*1088}")
    A("s_waitcnt vmcnt(0) lgkmcnt(0)"); A("s_barrier")
    stamp(4)
    def wuv_dma(i):
        A(f"s_add_u32 s12, s80, {i*32*8192}"); A(f"s_add_u32 s13, s81, {P_WUV + i*8192}"); dma(r['offq'], 56, "s12", "s13")
    def wo9():
        sk = A.lab("sk"); A("s_cmp_ge_u32 s3, 4"); A(f"s_cbranch_scc1 {sk}")
        A("s_mul_i32 s12, s3, 8*1152"); A("s_add_u32 s12, s12, s82"); A("s_add_u32 s12, s12, 1024"); A(f"s_add_u32 s13, s81, {P_WO9}")
        dma(r['offd'], 60, "s12", "s13"); A(f"{sk}:")
        A("s_lshl_b32 s12, s3, 7"); A("s_add_u32 s82, s82, s12")
    def wo_dma(b):
        A(f"s_add_u32 s12, s82, {b*8*1152}"); A(f"s_add_u32 s13, s83, {P_WO + b*1024}"); dma(r['offd'], 60, "s12", "s13")
    pend = [lambda i=i: wuv_dma(i) for i in range(4)] + [wo9] + [lambda b=b: wo_dma(b) for b in range(4)]
    sk = A.lab("sk"); A("s_cmp_lt_u32 s3, 4"); A(f"s_cbranch_scc1 {sk}"); qk_frags(); A(f"{sk}:")
    bq = r['bq']; s_ = r['s']
    for t in range(4): A(f"ds_read_b128 {vr(bq+4*t,4)}, v{r['qbr']} offset:{1088*t}")
    nqk = cfg["dma_in_qk"]
    for t in range(16):
        A(f"s_waitcnt lgkmcnt({min(3, 15-t)})")
        A(f"v_mfma_f32_16x16x32_bf16 {vr(s_,4)}, {ar(4*t,4)}, {vr(bq+4*(t%4),4)}, {'0' if t == 0 else vr(s_,4)}")
        if t + 4 < 16: A(f"ds_read_b128 {vr(bq+4*(t%4),4)}, v{r['qbr']} offset:{1088*(t+4)}")
        if t % 2 == 1 and nqk > 0: pend.pop(0)(); nqk -= 1
    pv_frags(2, 4)
    m = r['m']
    A(f"v_max3_f32 v{m}, v{s_}, v{s_+1}, v{s_+2}"); A(f"v_max_f32 v{m}, v{m}, v{s_+3}")
    allreduce_groups(m, t0, "v_max_f32")
    A("s_mov_b64 exec, 0xffff"); A(f"ds_write_b32 v{r['mxw']}, v{m}"); A("s_mov_b64 exec, -1")
    A(f"s_mov_b32 s15, {hex(f2u(SCALE2))}")
    A("s_waitcnt lgkmcnt(0)"); A("s_barrier")
    stamp(5)
    A(f"ds_read_b128 {vr(bq,4)}, v{r['mxr']}"); A(f"ds_read_b128 {vr(bq+4,4)}, v{r['mxr']} offset:16")
    A("s_waitcnt lgkmcnt(0)")
    A(f"v_max3_f32 v{m}, v{bq}, v{bq+1}, v{bq+2}"); A(f"v_max3_f32 v{t0}, v{bq+3}, v{bq+4}, v{bq+5}")
    A(f"v_max3_f32 v{m}, v{m}, v{bq+6}, v{bq+7}"); A(f"v_max_f32 v{m}, v{m}, v{t0}")
    A(f"v_mul_f32 v{r['ms']}, s15, v{m}")
    for e in range(4): A(f"v_fma_f32 v{s_+e}, v{s_+e}, s15, -v{r['ms']}")
    for e in range(4): A(f"v_exp_f32 v{s_+e}, v{s_+e}")
    A(f"v_cvt_pk_bf16_f32 v{s_}, v{s_}, v{s_+1}"); A(f"v_cvt_pk_bf16_f32 v{s_+1}, v{s_+2}, v{s_+3}")
    A(f"ds_write_b64 v{r['pfw']}, {vr(s_,2)}")
    A("s_waitcnt lgkmcnt(0)"); A("s_barrier")
    for v in range(4): A(f"ds_read_b128 {vr(bq+4*v,4)}, v{r['pfr']} offset:{1024*v}")
    stamp(6)
    acc = r['acc']
    npv = cfg["dma_in_pv"]
    for v in range(4):
        A(f"s_waitcnt lgkmcnt({3-v})")
        for u in range(4):
            A(f"v_mfma_f32_16x16x32_bf16 {vr(acc+4*u,4)}, {ar(64+(v*4+u)*4,4)}, {vr(bq+4*v,4)}, {'0' if v == 0 else vr(acc+4*u,4)}")
            if u % 2 == 1 and pend and npv > 0: pend.pop(0)(); npv -= 1
    sk = A.lab("sk"); A("s_cmp_lg_u32 s3, 0"); A(f"s_cbranch_scc1 {sk}")
    for e in range(4): A(f"v_mov_b32 v{h2+e}, 0x3f803f80")
    for v in range(4): A(f"v_mfma_f32_16x16x32_bf16 {vr(r['accl'],4)}, {vr(h2,4)}, {vr(bq+4*v,4)}, {'0' if v == 0 else vr(r['accl'],4)}")
    A(f"{sk}:")
    A("s_lshl_b32 s79, s75, 20"); A("s_lshl_b32 s12, s74, 10"); A("s_add_u32 s79, s79, s12"); A("s_lshl_b32 s12, s3, 7"); A("s_add_u32 s79, s79, s12")
    A(f"s_add_u32 s79, s79, {WS_PART}"); A(f"s_add_u32 s84, s79, {8 << 16}")
    A("s_mov_b32 s15, 0x07060302")
    for u in range(4):
        A(f"v_perm_b32 v{acc+4*u}, v{acc+4*u+1}, v{acc+4*u}, s15"); A(f"v_perm_b32 v{acc+4*u+1}, v{acc+4*u+3}, v{acc+4*u+2}, s15")
        A(f"ds_write_b64 v{r['tbw']}, {vr(acc+4*u,2)} offset:{32*u}")
    A("s_mov_b32 s15, 0xfffefffe")
    A("s_waitcnt lgkmcnt(0)")
    A(f"ds_read_b128 {vr(bq,4)}, v{r['tbr']}"); A(f"ds_read_b128 {vr(bq+4,4)}, v{r['tbr']} offset:{8*144}")
    for hh in range(2):
        A(f"s_waitcnt lgkmcnt({1-hh})")
        for j in range(4): A(f"v_and_or_b32 v{bq+4*hh+j}, v{bq+4*hh+j}, s15, v{r['tl']+j}")
        A(f"buffer_store_dwordx4 {vr(bq+4*hh,4)}, v{r['pst']}, s[44:47], {'s79' if hh == 0 else 's84'} offen sc1")
    sk = A.lab("sk"); A("s_cmp_lg_u32 s3, 0"); A(f"s_cbranch_scc1 {sk}")
    A(f"v_mov_b32 v{h2}, v{r['ms']}"); A(f"v_mov_b32 v{h2+1}, v{r['accl']}"); A(f"v_mov_b32 v{h2+2}, s6"); A(f"v_mov_b32 v{h2+3}, s6")
    A("s_lshl_b32 s12, s75, 8"); A("s_lshl_b32 s13, s74, 9"); A("s_add_u32 s12, s12, s13"); A(f"s_add_u32 s12, s12, {WS_ML}")
    A("s_mov_b64 exec, 0xffff"); A(f"buffer_store_dwordx4 {vr(h2,4)}, v{r['l16']}, s[44:47], s12 offen sc1"); A("s_mov_b64 exec, -1")
    A(f"{sk}:")
    stamp(7)
    late = len(pend) > 0
    while pend: pend.pop(0)()
    A("s_lshl_b32 s79, s72, 16"); A("s_lshl_b32 s12, s3, 13"); A("s_add_u32 s79, s79, s12"); A("s_lshl_b32 s12, s73, 8"); A("s_add_u32 s79, s79, s12")
    A(f"s_add_u32 s79, s79, {WS_PART}"); A("s_add_u32 s84, s79, 4096")
    A("s_lshl_b32 s74, s72, 4"); A("s_add_u32 s74, s74, s83"); A(f"s_add_u32 s74, s74, {WS_ML}")
    mla = acc; mlb = acc + 4
    if cfg["h3_ack"]: A("s_waitcnt vmcnt(0)"); late = True
    def ld():
        A(f"buffer_load_dwordx4 {vr(mla,4)}, v{r['h3m']}, s[44:47], s74 offen sc1")
        A(f"buffer_load_dwordx4 {vr(mlb,4)}, v{r['h3m']}, s[44:47], s74 offen offset:2048 sc1")
        A(f"buffer_load_dwordx4 {vr(bq,4)}, v{r['h3d']}, s[44:47], s79 offen sc1")
        A(f"buffer_load_dwordx4 {vr(bq+4,4)}, v{r['h3d']}, s[44:47], s84 offen sc1")
    def ck():
        A(f"v_xor_b32 v{r['bad']}, v{bq}, v{r['tl']}")
        for e in range(1, 8): A(f"v_bitop3_b32 v{r['bad']}, v{bq+e}, v{r['tl']+e%4}, v{r['bad']} bitop3:0xbe")
        A(f"v_and_b32 v{r['bad']}, 0x10001, v{r['bad']}")
        for b_ in (mla, mlb): A(f"v_bitop3_b32 v{r['bad']}, v{b_+2}, s6, v{r['bad']} bitop3:0xbe")
        A(f"v_cmp_ne_u32 vcc, 0, v{r['bad']}")
    def bt():
        A(f"s_waitcnt vmcnt({4 if late else 6})"); A("s_barrier")
        sk = A.lab("sk"); A("s_cmp_ge_u32 s3, 4"); A(f"s_cbranch_scc1 {sk}")
        A(f"v_xor_b32 v{t0}, 32, v{r['trq']}")
        for q in range(8):
            A(f"ds_read_b64_tr_b16 {ar(UVF+2*q,2)}, v{r['trq']} offset:{4096*q}"); A(f"ds_read_b64_tr_b16 {ar(UVF+16+2*q,2)}, v{t0} offset:{4096*q}")
        A(f"{sk}:")
        for t in range(4):
            A(f"ds_read_b64_tr_b16 {ar(WOF+4*t,2)}, v{r['wob']}"); A(f"ds_read_b64_tr_b16 {ar(WOF+4*t+2,2)}, v{r['wob']} offset:2048")
            if t < 3: A(f"v_xor_b32 v{r['wob']}, {(t ^ (t+1)) << 5}, v{r['wob']}")
        for t in range(2):
            A(f"ds_read_b64_tr_b16 {ar(WOF+16+4*t,2)}, v{r['wo9']}"); A(f"ds_read_b64_tr_b16 {ar(WOF+18+4*t,2)}, v{r['wo9']} offset:2048")
            if t < 1: A(f"v_xor_b32 v{r['wo9']}, 32, v{r['wo9']}")
        A("s_mov_b32 s15, 0x10000"); A("s_mov_b32 s13, 0xfffe0000"); A(f"v_mov_b32 v{t1}, 0x10000")
    poll(ld, ck, wqm=True, between=bt, sid=1)
    stamp(8)
    un = h2
    def unpack(e):
        A(f"v_lshl_or_b32 v{un+2*e}, v{bq+e}, 16, s15"); A(f"v_and_or_b32 v{un+2*e+1}, v{bq+e}, s13, v{t1}")
    A(f"v_max_f32 v{m}, v{mla}, v{mlb}"); A(f"v_mov_b32 v{t0}, v{m}"); unpack(0)
    A(f"v_permlane16_swap_b32 v{m}, v{t0}"); A(f"v_max_f32 v{m}, v{m}, v{t0}"); A(f"v_mov_b32 v{t0}, v{m}"); unpack(1)
    A(f"v_permlane32_swap_b32 v{m}, v{t0}"); A(f"v_max_f32 v{m}, v{m}, v{t0}")
    A(f"v_sub_f32 v{mla}, v{mla}, v{m}"); A(f"v_sub_f32 v{mlb}, v{mlb}, v{m}")
    A(f"v_exp_f32 v{mla}, v{mla}"); A(f"v_exp_f32 v{mlb}, v{mlb}")
    for e in range(2, 8): unpack(e)
    for e in range(8): A(f"v_mul_f32 v{un+e}, v{un+e}, v{mla}")
    for e in range(8): A(f"v_fmac_f32 v{un+e}, v{un+8+e}, v{mlb}")
    lw = m + 1
    assert r['ms'] == m + 1
    A(f"v_mul_f32 v{lw}, v{mla}, v{mla+1}"); A(f"v_fmac_f32 v{lw}, v{mlb}, v{mlb+1}")
    for e in range(4): A(f"v_permlane32_swap_b32 v{un+e}, v{un+4+e}")
    A(f"v_mov_b32 v{t0}, v{lw}")
    for e in range(4): A(f"v_add_f32 v{un+e}, v{un+e}, v{un+4+e}")
    A(f"v_permlane16_swap_b32 v{lw}, v{t0}")
    for e in range(2): A(f"v_permlane16_swap_b32 v{un+e}, v{un+2+e}")
    A(f"v_add_f32 v{lw}, v{lw}, v{t0}")
    for e in range(2): A(f"v_add_f32 v{un+e}, v{un+e}, v{un+2+e}")
    A(f"v_mov_b32 v{t0}, v{lw}")
    A(f"v_cvt_pk_bf16_f32 v{un}, v{un}, v{un+1}")
    A(f"ds_write_b32 v{r['pbw']}, v{un}")
    A(f"v_permlane32_swap_b32 v{lw}, v{t0}"); A(f"v_add_f32 v{lw}, v{lw}, v{t0}")
    A("s_mov_b64 exec, 1"); A(f"ds_write2_b32 v{r['mxw']}, v{m}, v{lw} offset0:0 offset1:8"); A("s_mov_b64 exec, -1")
    A("s_lshl_b32 s78, s72, 11")
    A("s_waitcnt lgkmcnt(0)"); A("s_barrier")
    sk = A.lab("sk"); A("s_cmp_ge_u32 s3, 4"); A(f"s_cbranch_scc1 {sk}")
    fm = r['fm']
    A(f"ds_read_b128 {vr(fm,4)}, v{r['wmr']}"); A(f"ds_read_b128 {vr(fm+4,4)}, v{r['wmo']}")
    for v in range(4): A(f"ds_read_b128 {vr(bq+4*v,4)}, v{r['pbr']} offset:{64*v}")
    A(f"ds_read_b128 {vr(fm+8,4)}, v{r['wmr']} offset:32")
    A("s_lshl_b32 s12, s73, 9"); A("s_add_u32 s12, s12, s78"); A("s_lshl_b32 s13, s3, 7"); A("s_add_u32 s12, s12, s13"); A(f"s_add_u32 s76, s12, {WS_CP}"); A(f"s_add_u32 s85, s12, {WS_CPL}")
    da = acc; db = acc + 4
    def uvm(v):
        A(f"s_waitcnt lgkmcnt({4-v})")
        for t, dd in ((0, da), (1, db)): A(f"v_mfma_f32_16x16x32_bf16 {vr(dd,4)}, {vr(bq+4*v,4)}, {ar(UVF+16*t+4*v,4)}, {'0' if v == 0 else vr(dd,4)}")
    uvm(0)
    A(f"v_max3_f32 v{m}, v{fm}, v{fm+1}, v{fm+2}"); A(f"v_max3_f32 v{t0}, v{fm+3}, v{fm+4}, v{fm+5}")
    A(f"v_max3_f32 v{m}, v{m}, v{fm+6}, v{fm+7}"); A(f"v_max_f32 v{m}, v{m}, v{t0}")
    uvm(1)
    for e in range(4): A(f"v_sub_f32 v{fm+e}, v{fm+e}, v{m}")
    uvm(2)
    for e in range(4): A(f"v_exp_f32 v{fm+e}, v{fm+e}")
    uvm(3)
    A("s_waitcnt lgkmcnt(0)")
    A(f"v_mul_f32 v{lw}, v{fm}, v{fm+8}")
    for e in range(1, 4): A(f"v_fmac_f32 v{lw}, v{fm+e}, v{fm+8+e}")
    A(f"v_mov_b32 v{t0}, v{lw}"); A(f"v_permlane16_swap_b32 v{lw}, v{t0}"); A(f"v_add_f32 v{lw}, v{lw}, v{t0}"); A(f"v_rcp_f32 v{lw}, v{lw}")
    for dd in (da, db):
        A(f"v_mul_f32 v{dd}, v{dd}, v{fm}")
        for e in range(1, 4): A(f"v_fmac_f32 v{dd}, v{dd+e}, v{fm+e}")
    A(f"v_permlane16_swap_b32 v{da}, v{db}"); A(f"v_add_f32 v{da}, v{da}, v{db}")
    A(f"v_mul_f32 v{da}, v{da}, v{lw}")
    tag_dword(da, R)
    A("s_mov_b32 exec_hi, 0")
    if cfg["local"]: A(f"buffer_store_dword v{da}, v{r['sa']}, s[44:47], s85 offen")
    else: A(f"buffer_store_dword v{da}, v{r['sa']}, s[44:47], s76 offen sc1")
    A("s_mov_b64 exec, -1")
    A(f"{sk}:")
    stamp(9)
    A("s_lshl_b32 s12, s73, 7"); A("s_add_u32 s79, s78, s12"); A(f"s_add_u32 s79, s79, {WS_CP}")
    def ld():
        A(f"buffer_load_dwordx4 {vr(h2,4)}, v{r['h4a']}, s[44:47], s79 offen sc1")
        A(f"buffer_load_dwordx4 {vr(h2+4,4)}, v{r['h4a']}, s[44:47], s79 offen offset:64 sc1")
    def ck():
        check_f32(r['bad'], [h2, h2+4]); A(f"v_and_b32 v{r['bad']}, 0xff, v{r['bad']}"); A(f"v_cmp_ne_u32 vcc, 0, v{r['bad']}")
    def dfr():
        sk = A.lab("sk"); A("s_cmp_ge_u32 s3, 4"); A(f"s_cbranch_scc1 {sk}")
        A("s_mov_b64 exec, -1"); A("s_mov_b32 exec_hi, 0"); A(f"buffer_store_dword v{da}, v{r['sa']}, s[44:47], s76 offen sc1"); A(f"{sk}:")
    A(f"s_add_u32 s84, s79, {WS_CPL - WS_CP}"); A("s_mov_b32 s85, s79")
    if cfg["local"]: poll(ld, ck, sid=2, alt=("s79", "s84", "s85"), deferred=dfr)
    else: poll(ld, ck, sid=2)
    stamp(10)
    for e in range(8): A(f"v_and_b32 v{h2+e}, s7, v{h2+e}")
    for e in range(4): A(f"v_cvt_pk_bf16_f32 v{h2+8+e}, v{h2+2*e}, v{h2+2*e+1}")
    al = r['accl']
    for t in range(4): A(f"v_mfma_f32_16x16x32_bf16 {vr(acc+4*t,4)}, {vr(h2+8,4)}, {ar(WOF+4*t,4)}, 0")
    A("s_mul_i32 s79, s2, 2304"); A(f"s_add_u32 s79, s79, {WS_OP}")
    A("s_lshl_b32 s12, s3, 8"); A("s_add_u32 s12, s12, s79")
    sk = A.lab("sk"); A("s_and_b32 s13, s3, 6"); A("s_cmp_lg_u32 s13, 4"); A(f"s_cbranch_scc1 {sk}")
    for t in range(2): A(f"v_mfma_f32_16x16x32_bf16 {vr(al+4*t,4)}, {vr(h2+8,4)}, {ar(WOF+16+4*t,4)}, 0")
    A(f"{sk}:")
    for b_ in (acc, acc+4, acc+8, acc+12):
        A(f"v_add_f32 v{b_}, v{b_}, v{b_+1}"); A(f"v_add_f32 v{b_+2}, v{b_+2}, v{b_+3}"); A(f"v_add_f32 v{b_}, v{b_}, v{b_+2}")
    select4(acc, [acc, acc+4, acc+8, acc+12]); tag_dword(acc, R)
    A(f"buffer_store_dword v{acc}, v{r['sa']}, s[44:47], s12 offen sc1")
    sk = A.lab("sk"); A("s_cmp_lg_u32 s13, 4"); A(f"s_cbranch_scc1 {sk}")
    A("s_and_b32 s13, s3, 1"); A("s_lshl_b32 s13, s13, 7"); A("s_add_u32 s13, s13, s79")
    for b_ in (al, al+4):
        A(f"v_add_f32 v{b_}, v{b_}, v{b_+1}"); A(f"v_add_f32 v{b_+2}, v{b_+2}, v{b_+3}"); A(f"v_add_f32 v{b_}, v{b_}, v{b_+2}")
    A(f"v_mov_b32_dpp v{al}, v{al+4} quad_perm:[0,1,2,3] row_mask:0x2 bank_mask:0xf")
    tag_dword(al, R)
    A("s_mov_b32 exec_hi, 0"); A(f"buffer_store_dword v{al}, v{r['sa']}, s[44:47], s13 offen offset:2048 sc1"); A("s_mov_b64 exec, -1")
    A(f"{sk}:")
    stamp(11)
    A("s_lshr_b32 s12, s5, 2"); A("s_lshl_b32 s12, s12, 3"); A("s_add_u32 s12, s12, s4")
    A("s_cmp_ge_u32 s12, 18"); A("s_cbranch_scc1 L_Pend")
    A("s_lshl_b32 s74, s12, 2"); A("s_add_u32 s74, s74, s73")
    A(f"v_lshrrev_b32 v{r['t0']}, 1, v{LANE}"); A(f"v_mul_u32_u24 v{r['t0']}, 2304, v{r['t0']}")
    A(f"v_and_b32 v{r['t1']}, 1, v{LANE}"); A(f"v_lshl_add_u32 v{r['sb']}, v{r['t1']}, 4, v{r['t0']}")
    A("s_mul_i32 s79, s3, 32*2304"); A("s_lshl_b32 s12, s74, 5"); A("s_add_u32 s79, s79, s12"); A(f"s_add_u32 s79, s79, {WS_OP}")
    A(f"v_and_b32 v{r['sc']}, 7, v{LANE}"); A(f"v_lshlrev_b32 v{r['sc']}, 1, v{r['sc']}"); A("s_lshl_b32 s75, s74, 4")
    A(f"buffer_load_ushort v{r['xres']}, v{r['sc']}, s[48:51], s75 offen")
    def ld(): A(f"buffer_load_dwordx4 {vr(h2,4)}, v{r['sb']}, s[44:47], s79 offen sc1")
    def ck():
        check_f32(r['bad'], [h2]); A(f"v_and_b32 v{r['bad']}, 0xff, v{r['bad']}"); A(f"v_cmp_ne_u32 vcc, 0, v{r['bad']}")
    poll(ld, ck, sid=3)
    stamp(12)
    for e in range(4): A(f"v_and_b32 v{h2+e}, s7, v{h2+e}")
    A(f"v_permlane32_swap_b32 v{h2}, v{h2+2}"); A(f"v_permlane32_swap_b32 v{h2+1}, v{h2+3}")
    A(f"v_add_f32 v{h2}, v{h2}, v{h2+2}"); A(f"v_add_f32 v{h2+1}, v{h2+1}, v{h2+3}")
    A(f"v_lshrrev_b32 v{r['t0']}, 5, v{LANE}"); A(f"v_lshl_add_u32 v{r['t1']}, v{r['t1']}, 1, v{r['t0']}")
    A(f"v_permlane16_swap_b32 v{h2}, v{h2+1}"); A(f"v_add_f32 v{h2}, v{h2}, v{h2+1}")
    A(f"v_bfe_u32 v{r['t0']}, v{LANE}, 4, 1"); A(f"v_lshl_add_u32 v{r['t1']}, v{r['t1']}, 1, v{r['t0']}")
    for rr in (8, 4, 2): A(f"v_add_f32_dpp v{h2}, v{h2}, v{h2} row_ror:{rr} row_mask:0xf bank_mask:0xf")
    A("s_lshl_b32 s12, s3, 2"); A(f"s_add_u32 s12, s12, {P_FR}"); A(f"v_lshl_add_u32 v{r['t1']}, v{r['t1']}, 5, s12")
    A("s_mov_b32 s84, 0x00030003"); A("s_mov_b32 s85, 0x00030003"); A("s_mov_b64 exec, s[84:85]")
    A(f"ds_write_b32 v{r['t1']}, v{h2}")
    A("s_mov_b64 exec, -1")
    A(f"v_lshlrev_b32 v{r['t0']}, 4, v{r['sc']}"); A(f"v_add_u32 v{r['t0']}, {P_FR}, v{r['t0']}")
    A("s_waitcnt lgkmcnt(0)"); A("s_barrier")
    A("s_cmp_lg_u32 s3, 0"); A("s_cbranch_scc1 L_Pend")
    A(f"ds_read_b128 {vr(h2,4)}, v{r['t0']}"); A(f"ds_read_b128 {vr(h2+4,4)}, v{r['t0']} offset:16")
    A(f"v_lshlrev_b32 v{r['xres']}, 16, v{r['xres']}")
    A("s_waitcnt lgkmcnt(0)")
    for st in (4, 2, 1):
        for e in range(st): A(f"v_add_f32 v{h2+e}, v{h2+e}, v{h2+e+st}")
    A(f"v_add_f32 v{h2}, v{h2}, v{r['xres']}"); A(f"v_cvt_pk_bf16_f32 v{h2}, v{h2}, v{h2}")
    A("s_mov_b64 exec, 0xff")
    A(f"buffer_store_short v{h2}, v{r['sc']}, s[64:67], s75 offen")
    A("s_cmp_lg_u32 s74, 0"); A("s_cbranch_scc1 L_Pend")
    A("s_mov_b64 exec, 1"); A(f"v_mov_b32 v{r['t0']}, s6")
    A(f"buffer_store_dword v{r['t0']}, v{r['sa']}, s[44:47], 0 offen sc1")
    A("L_Pend:")
    stamp(13)
    write_stamps()
    A("L_exit:")
    A("s_endpgm")
    A("L_P1:")
    body = A.finish(verbose=cfg.get("verbose", False))
    head = open("parallel_sum__compressed_kv_cla__glu_gated_glu__decode.s.ref").read().split("; Override launch")[0]
    head += f"; @launch grid=(256,1,1) block=(512,1,1) lds={LDS}\n"
    head += '.amdgcn_target "amdgcn-amd-amdhsa--gfx950"\n.text\n' + f".globl {NAME}\n.p2align 8\n.type {NAME},@function\n"
    tail = f""".section .rodata,"a"
.p2align 6
.amdhsa_kernel {NAME}
  .amdhsa_next_free_vgpr 256
  .amdhsa_next_free_sgpr 102
  .amdhsa_accum_offset 128
  .amdhsa_group_segment_fixed_size 0
  .amdhsa_kernarg_size 104
  .amdhsa_user_sgpr_count 2
  .amdhsa_user_sgpr_kernarg_segment_ptr 1
  .amdhsa_system_sgpr_workgroup_id_x 1
  .amdhsa_float_denorm_mode_32 3
.end_amdhsa_kernel
"""
    return head + body + tail

if __name__ == "__main__":
    out = sys.argv[1] if len(sys.argv) > 1 else "k.s"
    kw = eval("dict(" + (sys.argv[2] if len(sys.argv) > 2 else "") + ")")
    open(out, "w").write(generate(verbose=True, **kw))
```

```python
import sys
from asmlib import Asm

NAME = "parallel_sum__compressed_kv_cla__glu_gated_glu__decode_kernel"

DEF = dict(
    nt="nt",
    stamps=False,
    prefetch_code=True,
    spin_cap=1 << 18,
    local=True, k0=24,
    h3_ack=True,
    sleep=0,
    p_win1=None, p_n1=0,
    h2_pos=16,
    dma_in_qk=4, dma_in_pv=5,
    s_win=None,
    wuk_pre=4,
    down_pre=5,
)

WS_R = 0
WS_QP = 0x10000
WS_QA = 0x20000
WS_CP = 0x30000
WS_ML = 0x40000
WS_OP = 0x60000
WS_GU = 0x100000
WS_PART = 0x200000
WS_ST = 0x400000
WS_SIZE = 0x500000
LOC = 0x40000
WS_QP = 0x10000; WS_CP = 0x18000 + 0x8000; WS_QA = 0x30000; WS_ML = 0x40000
WS_QPL = 0x50000; WS_CPL = 0x60000; WS_OP = 0x70000
WS_GU = 0x100000; WS_GUL = 0x480000 - 0x80000 + 0x100000
WS_SIZE = 0x600000
TAGK = 0x9E3779B9

S_XN = 0; S_ZERO = 1152; S_GUL = 1280; S_HB = 3584
S_WQ = 4608; S_WUK = 41472; S_GATE = 74240; S_UP = 115712; S_DOWN = 4608
CKS = 1056
P_CK = 0; P_QB = 135168; P_PB = 152576; P_PF = 154752; P_MX = 158848; P_FR = 159424
P_WUV = 0; P_WO = 32768; P_WO9 = 159744; P_TB = 73728
LDS = 163840

SCALE2 = 1.4426950408889634 / (128 ** 0.5)
import struct
def f2u(x): return struct.unpack("<I", struct.pack("<f", x))[0]

class Regs:
    def __init__(self, start): self.n = start; self.d = {}
    def __call__(self, name, cnt=1, align=1):
        if cnt > 1: align = max(align, 2)
        self.n = (self.n + align - 1) // align * align
        self.d[name] = self.n; self.n += cnt
        assert self.n <= 128, f"out of arch VGPRs at {name}"
        return self.d[name]

def vr(b, n=1): return f"v{b}" if n == 1 else f"v[{b}:{b+n-1}]"
def ar(b, n=1): return f"a{b}" if n == 1 else f"a[{b}:{b+n-1}]"

def generate(**kw):
    cfg = dict(DEF); cfg.update(kw)
    NT = cfg["nt"]
    A = Asm()
    stamp_n = [0]
    def stamp(i):
        if not cfg["stamps"]: return
        A("s_memrealtime s[42:43]"); A("s_waitcnt lgkmcnt(0)"); A(f"v_writelane_b32 v0, s42, {i}")
    def srd(b, p, size):
        A(f"s_mov_b32 s{b}, s{p}"); A(f"s_mov_b32 s{b+1}, s{p+1}"); A(f"s_mov_b32 s{b+2}, {size}"); A(f"s_mov_b32 s{b+3}, 0x20000")
    def dma(voff, srdb, soff, m0, flags=NT):
        A(f"s_mov_b32 m0, {m0}")
        A(f"buffer_load_dwordx4 v{voff}, s[{srdb}:{srdb+3}], {soff} offen {flags} lds")
    def check_f32(bad, regs, first=True):
        for gi, b in enumerate(regs):
            for j in range(4):
                if first and gi == 0 and j == 0: A(f"v_xor_b32 v{bad}, s8, v{b}")
                else: A(f"v_bitop3_b32 v{bad}, v{b+j}, s{8+j}, v{bad} bitop3:0xbe")
    def poll(loads, check, base_exec="-1", wqm=False, first_wait=0, between=None, sid=None, alt=None, deferred=None):
        L = A.lab("poll"); D = A.lab("got"); K0 = cfg["k0"]
        if alt: A(f"s_mov_b32 {alt[0]}, {alt[1]}")
        if base_exec != "-1": A(f"s_mov_b64 exec, {base_exec}")
        loads()
        if between is not None:
            if base_exec != "-1": A("s_mov_b64 exec, -1")
            between()
            if base_exec != "-1": A(f"s_mov_b64 exec, {base_exec}")
        A(f"s_waitcnt vmcnt({first_wait})")
        if sid is not None: stamp(16 + sid)
        check()
        if wqm: A("s_wqm_b64 vcc, vcc")
        A("s_mov_b32 s14, 0")
        A("s_and_b64 exec, exec, vcc")
        A(f"s_cbranch_scc0 {D}")
        A(f"{L}:")
        if cfg["sleep"]: A(f"s_sleep {cfg['sleep']}")
        if alt:
            A("s_bitcmp1_b32 s14, 0"); A(f"s_cselect_b32 {alt[0]}, {alt[2]}, {alt[1]}")
            A(f"s_cmp_lt_u32 s14, {K0}"); A(f"s_cselect_b32 {alt[0]}, {alt[1]}, {alt[0]}")
        if deferred:
            sk = A.lab("sk"); A(f"s_cmp_lg_u32 s14, {K0}"); A(f"s_cbranch_scc1 {sk}")
            A("s_mov_b64 s[86:87], exec"); deferred(); A("s_mov_b64 exec, s[86:87]"); A(f"{sk}:")
        loads()
        A("s_waitcnt vmcnt(0)")
        check()
        if wqm: A("s_wqm_b64 vcc, vcc")
        A("s_add_u32 s14, s14, 1"); A(f"s_cmp_lt_u32 s14, {cfg['spin_cap']}"); A(f"s_cbranch_scc0 {D}")
        A("s_and_b64 exec, exec, vcc")
        A(f"s_cbranch_scc1 {L}")
        A(f"{D}:")
        if deferred:
            sk = A.lab("sk"); A(f"s_cmp_gt_u32 s14, {K0}"); A(f"s_cbranch_scc1 {sk}"); deferred(); A(f"{sk}:")
        A("s_mov_b64 exec, -1")
        if sid is not None and cfg["stamps"]: A("s_add_u32 s14, s14, 1"); A(f"v_writelane_b32 v0, s14, {24 + sid}")
    def store2(v, voff, soff, off, dist):
        o = f" offset:{off}" if off else ""
        if cfg["local"]:
            A(f"s_add_u32 s15, {soff}, {dist}"); A(f"buffer_store_dword v{v}, v{voff}, s[44:47], s15 offen{o}")
        A(f"buffer_store_dword v{v}, v{voff}, s[44:47], {soff} offen{o} sc1")
    def allreduce_groups(v, t, op):
        A(f"v_mov_b32 v{t}, v{v}"); A(f"v_permlane16_swap_b32 v{v}, v{t}"); A(f"{op} v{v}, v{v}, v{t}")
        A(f"v_mov_b32 v{t}, v{v}"); A(f"v_permlane32_swap_b32 v{v}, v{t}"); A(f"{op} v{v}, v{v}, v{t}")
    def allreduce_row(v, op):
        for r in (8, 4, 2, 1): A(f"{op}_dpp v{v}, v{v}, v{v} row_ror:{r} row_mask:0xf bank_mask:0xf")
    def select4(d, srcs):
        for g in (1, 2, 3): A(f"v_mov_b32_dpp v{d}, v{srcs[g]} quad_perm:[0,1,2,3] row_mask:{hex(1<<g)} bank_mask:0xf")
    def write_stamps():
        if not cfg["stamps"]: return
        if cfg.get("expose"):
            wg, wv, idx = cfg["expose"]; D = A.lab("nex"); L = A.lab("ex")
            A(f"s_cmp_lg_u32 s2, {wg}"); A(f"s_cbranch_scc1 {D}"); A(f"s_cmp_lg_u32 s3, {wv}"); A(f"s_cbranch_scc1 {D}")
            A(f"v_readlane_b32 s12, v0, {idx}"); A("v_readlane_b32 s13, v0, 0"); A("s_nop 4"); A("s_sub_u32 s12, s12, s13"); A("s_mul_i32 s12, s12, 10")
            A("s_min_u32 s12, s12, 100000")
            A("s_memrealtime s[86:87]"); A("s_waitcnt lgkmcnt(0)")
            A(f"{L}:"); A("s_memrealtime s[42:43]"); A("s_waitcnt lgkmcnt(0)"); A("s_sub_u32 s13, s42, s86"); A("s_cmp_lt_u32 s13, s12"); A(f"s_cbranch_scc1 {L}")
            A(f"{D}:")
            return
        A("s_mov_b64 exec, -1"); A("s_lshl_b32 s12, s2, 3"); A("s_add_u32 s12, s12, s3"); A("s_lshl_b32 s12, s12, 8"); A(f"s_add_u32 s12, s12, {WS_ST}")
        A("v_lshlrev_b32 v4, 2, v1")
        A("buffer_store_dword v0, v4, s[44:47], s12 offen")

    A(f"{NAME}:")
    if cfg["stamps"]:
        A("s_memrealtime s[86:87]")
    A("s_cmp_ge_u32 s2, 256"); A("s_cbranch_scc1 L_exit")
    A("s_load_dwordx16 s[16:31], s[0:1], 0"); A("s_load_dwordx8 s[32:39], s[0:1], 64"); A("s_load_dwordx2 s[40:41], s[0:1], 96")
    A("v_lshrrev_b32 v1, 6, v0"); A("s_and_b32 s4, s2, 7"); A("v_readfirstlane_b32 s3, v1")
    A("s_lshr_b32 s5, s2, 3"); A("s_and_b32 s5, s5, 15")
    A("v_and_b32 v1, 63, v0")
    A("v_and_b32 v2, 15, v1")
    A("v_lshrrev_b32 v3, 4, v1")
    LANE, N, G = 1, 2, 3
    if cfg["stamps"]: A("s_waitcnt lgkmcnt(0)"); A("v_mov_b32 v0, 0"); A("v_writelane_b32 v0, s86, 0")
    A("s_lshr_b32 s72, s5, 2"); A("s_lshl_b32 s73, s4, 2"); A("s_add_u32 s72, s72, s73")
    A("s_and_b32 s73, s5, 3")
    A("s_cmp_ge_u32 s2, 128"); A("s_cbranch_scc1 L_P")

    def common_regs(R):
        R("tq"); R("t0"); R("t1"); R("offq"); R("trq"); R("offd")
        R("trb", 4); R("bad"); R("tagb")
    def addr_q_style(R):
        r = R.d
        A("s_and_b32 s12, s3, 1"); A("s_lshl_b32 s12, s12, 2")
        A(f"v_add_u32 v{r['t0']}, s12, v{G}"); A(f"v_lshlrev_b32 v{r['t0']}, 1, v{r['t0']}")
        A(f"v_xor_b32 v{r['t0']}, v{r['t0']}, v{N}"); A(f"v_lshlrev_b32 v{r['t0']}, 4, v{r['t0']}")
        A(f"v_lshl_add_u32 v{r['offq']}, v{G}, 13, v{r['t0']}")
    def addr_trq(R, base, sh=1):
        r = R.d
        A(f"v_lshrrev_b32 v{r['t0']}, 2, v{N}")
        A(f"v_and_b32 v{r['t1']}, 1, v{G}"); A(f"v_lshl_add_u32 v{r['t1']}, v{r['t1']}, 2, v{r['t0']}")
        A(f"v_lshlrev_b32 v{r['t1']}, 1, v{r['t1']}")
        A(f"v_bfe_u32 v{r['tq']}, v{N}, 1, 1"); A("s_and_b32 s12, s3, 3" if sh == 2 else "s_mov_b32 s12, s3"); A(f"s_lshl_b32 s12, s12, {sh}"); A(f"v_add_u32 v{r['tq']}, s12, v{r['tq']}")
        A(f"v_xor_b32 v{r['t1']}, v{r['t1']}, v{r['tq']}"); A(f"v_lshlrev_b32 v{r['t1']}, 4, v{r['t1']}")
        A(f"v_lshl_add_u32 v{r['t1']}, v{r['t0']}, 8, v{r['t1']}")
        A(f"v_lshl_add_u32 v{r['t1']}, v{G}, 10, v{r['t1']}")
        A(f"v_and_b32 v{r['t0']}, 1, v{N}"); A(f"v_lshl_add_u32 v{r['trq']}, v{r['t0']}, 3, v{r['t1']}")
        if base: A(f"v_add_u32 v{r['trq']}, {base}, v{r['trq']}")
    def addr_lc_src(dst, R, stride):
        r = R.d
        A(f"v_lshrrev_b32 v{r['t0']}, 3, v{LANE}"); A(f"v_and_b32 v{r['t1']}, 6, v{r['t0']}")
        A(f"v_and_b32 v{dst}, 7, v{LANE}"); A(f"v_xor_b32 v{dst}, v{dst}, v{r['t1']}"); A(f"v_lshlrev_b32 v{dst}, 4, v{dst}")
        A(f"v_mul_u32_u24 v{r['t0']}, {stride}, v{r['t0']}"); A(f"v_add_u32 v{dst}, v{dst}, v{r['t0']}")
    def addr_lc_tr(R, trb, trc=None):
        r = R.d
        A(f"v_lshrrev_b32 v{r['t0']}, 2, v{N}")
        A(f"v_bfe_u32 v{r['tq']}, v{N}, 1, 1")
        if trc is not None:
            A(f"v_and_b32 v{r['t1']}, 6, v{r['t0']}"); A(f"v_xor_b32 v{r['t1']}, v{r['t1']}, v{r['tq']}")
            A(f"v_lshlrev_b32 v{r['t1']}, 4, v{r['t1']}"); A(f"v_lshl_add_u32 v{r['t1']}, v{r['t0']}, 7, v{r['t1']}")
            A(f"v_and_b32 v{trc}, 1, v{N}"); A(f"v_lshl_add_u32 v{trc}, v{trc}, 3, v{r['t1']}")
            A(f"v_add_u32 v{trc}, 4096, v{trc}")
        A(f"v_and_b32 v{r['t1']}, 1, v{G}"); A(f"v_lshl_add_u32 v{r['t0']}, v{r['t1']}, 2, v{r['t0']}")
        A(f"v_and_b32 v{r['t1']}, 6, v{r['t0']}"); A(f"v_xor_b32 v{r['t1']}, v{r['t1']}, v{r['tq']}")
        A(f"v_lshlrev_b32 v{r['t1']}, 4, v{r['t1']}"); A(f"v_lshl_add_u32 v{r['t1']}, v{r['t0']}, 7, v{r['t1']}")
        A(f"v_lshrrev_b32 v{r['t0']}, 1, v{G}"); A(f"v_lshl_add_u32 v{r['t1']}, v{r['t0']}, 10, v{r['t1']}")
        A(f"v_and_b32 v{trb}, 1, v{N}"); A(f"v_lshl_add_u32 v{trb}, v{trb}, 3, v{r['t1']}")
    def tags(R):
        r = R.d
        A(f"s_add_u32 s6, s6, {hex(TAGK)}")
        for j in range(4): A(f"s_bfe_u32 s{8+j}, s6, {hex((8 << 16) | (8*j))}")
        A(f"v_and_b32 v{r['tagb']}, 3, v{LANE}"); A(f"v_lshlrev_b32 v{r['tagb']}, 3, v{r['tagb']}")
        A(f"v_lshrrev_b32 v{r['tagb']}, v{r['tagb']}, s6"); A(f"v_and_b32 v{r['tagb']}, 0xff, v{r['tagb']}")
        A("s_mov_b32 s7, 0xffffff00")
    def tag_dword(v, R): A(f"v_and_or_b32 v{v}, v{v}, s7, v{R.d['tagb']}")
    def code_prefetch(lab0, lab1, dst, t):
        if not cfg["prefetch_code"]: return
        D = A.lab("npf"); PC = A.lab("pc")
        A("s_cmp_lg_u32 s3, 7"); A(f"s_cbranch_scc1 {D}")
        A("s_getpc_b64 s[12:13]"); A(f"{PC}:")
        A(f"s_add_u32 s12, s12, {lab0}-{PC}"); A("s_addc_u32 s13, s13, 0")
        A("s_lshl_b32 s15, s5, 10"); A(f"v_lshl_add_u32 v{t}, v{LANE}, 4, s15")
        A(f"v_min_u32 v{t}, {lab1}-{lab0}-16, v{t}")
        A(f"global_load_dwordx4 v[{dst}:{dst+3}], v{t}, s[12:13]")
        A(f"{D}:")

    R = Regs(4); common_regs(R); r = R.d
    R("offk"); R("offg"); R("trc", 4); R("xa"); R("xg"); R("xz")
    R("acc"); R("acc2")
    R("fa", 8, 4); R("fb", 24, 4); R("d", 32, 4); R("q", 8, 4); R("qa", 4, 4); R("kf", 16, 4)
    R("sa"); R("sb"); R("sc")
    r["x"] = r["kf"]; r["xf"] = r["kf"] + 5
    d = r['d']
    addr_q_style(R)
    A(f"v_lshlrev_b32 v{r['sa']}, 2, v{LANE}")
    A("s_waitcnt lgkmcnt(0)")
    A("s_load_dword s6, s[40:41], 0")
    srd(48, 16, 1152); srd(52, 20, 576*8192)
    code_prefetch("L_S0", "L_S1", r['d'], r['t0'])
    A("L_S0:")
    A("s_mul_i32 s74, s73, 144"); A("s_lshl_b32 s12, s3, 2"); A("s_add_u32 s74, s74, s12"); A("s_lshl_b32 s74, s74, 13")
    A("s_lshl_b32 s75, s72, 8"); A("s_add_u32 s74, s74, s75")
    A("s_lshl_b32 s76, s3, 10")
    def wq_dma(i):
        A(f"s_add_u32 s12, s74, {i*32*8192}"); A(f"s_add_u32 s13, s76, {S_WQ + i*8192}")
        dma(r['offq'], 52, "s12", "s13")
    A("s_lshl_b32 s78, s72, 11")
    A("s_cmp_ge_u32 s3, 4"); A("s_cbranch_scc1 L_S_hi")
    for i in range(5): A(f"buffer_load_dword v{r['x']+i}, v{r['sa']}, s[48:51], 0 offen offset:{256*i}")
    for i in range(5): wq_dma(i)
    srd(44, 40, WS_SIZE)
    addr_trq(R, S_WQ, 2)
    A("s_waitcnt vmcnt(5)")
    xf = r['xf']
    for i in range(5):
        A(f"v_lshlrev_b32 v{xf+2*i}, 16, v{r['x']+i}"); A(f"v_and_b32 v{xf+2*i+1}, 0xffff0000, v{r['x']+i}")
    A(f"v_add_f32 v{r['acc']}, v{xf}, v{xf+1}")
    for i in range(2, 10): A(f"v_add_f32 v{r['acc']}, v{r['acc']}, v{xf+i}")
    allreduce_row(r['acc'], "v_add_f32"); allreduce_groups(r['acc'], r['t0'], "v_add_f32")
    A(f"v_mul_f32 v{r['acc']}, {hex(f2u(1.0/576))}, v{r['acc']}")
    for i in range(10): A(f"v_sub_f32 v{xf+i}, v{xf+i}, v{r['acc']}")
    A(f"v_cmp_gt_u32 vcc, 32, v{LANE}")
    A(f"v_cndmask_b32 v{xf+8}, 0, v{xf+8}, vcc"); A(f"v_cndmask_b32 v{xf+9}, 0, v{xf+9}, vcc")
    A(f"v_mul_f32 v{r['acc2']}, v{xf}, v{xf}")
    for i in range(1, 10): A(f"v_fmac_f32 v{r['acc2']}, v{xf+i}, v{xf+i}")
    allreduce_row(r['acc2'], "v_add_f32"); allreduce_groups(r['acc2'], r['t0'], "v_add_f32")
    A(f"v_mov_b32 v{r['t0']}, {hex(f2u(1e-5))}")
    A(f"v_fmac_f32 v{r['t0']}, {hex(f2u(1.0/576))}, v{r['acc2']}")
    A(f"v_rsq_f32 v{r['t0']}, v{r['t0']}")
    for i in range(10): A(f"v_mul_f32 v{xf+i}, v{xf+i}, v{r['t0']}")
    for i in range(5): A(f"v_cvt_pk_bf16_f32 v{r['x']+i}, v{xf+2*i}, v{xf+2*i+1}")
    for i in range(5): A(f"ds_write_b32 v{r['sa']}, v{r['x']+i} offset:{S_XN + 256*i}")
    A("s_waitcnt lgkmcnt(0)")
    tags(R)
    A("s_mul_i32 s12, s73, 288"); A(f"v_lshl_add_u32 v{r['xa']}, v{G}, 3, s12")
    for q in range(9): A(f"ds_read_b64 {ar(2*q, 2)}, v{r['xa']} offset:{S_XN + 32*q}")
    A(f"v_xor_b32 v{r['t0']}, 32, v{r['trq']}")
    A("s_lshl_b32 s12, s73, 9"); A("s_add_u32 s12, s12, s78"); A("s_lshl_b32 s13, s3, 7"); A("s_add_u32 s12, s12, s13")
    A(f"s_add_u32 s79, s12, {WS_QP}")
    stamp(1)
    A("s_waitcnt vmcnt(0)"); A("s_barrier")
    stamp(2)
    for q in range(9):
        A(f"ds_read_b64_tr_b16 {ar(20+2*q, 2)}, v{r['trq']} offset:{4096*q}")
        A(f"ds_read_b64_tr_b16 {ar(40+2*q, 2)}, v{r['t0']} offset:{4096*q}")
    for v in range(4):
        A(f"s_waitcnt lgkmcnt({14-4*v})")
        for t in range(2): A(f"v_mfma_f32_16x16x32_bf16 {vr(d+4*t,4)}, {ar(4*v,4)}, {ar(20+20*t+4*v,4)}, {'0' if v == 0 else vr(d+4*t,4)}")
    A("s_waitcnt lgkmcnt(0)")
    for t in range(2): A(f"v_mfma_f32_16x16x16_bf16 {vr(d+8+4*t,4)}, {ar(16,2)}, {ar(36+20*t,2)}, 0")
    A(f"v_add_f32 v{d}, v{d}, v{d+8}"); A(f"v_add_f32 v{d+4}, v{d+4}, v{d+12}")
    A(f"v_mov_b32_dpp v{d}, v{d+4} quad_perm:[0,1,2,3] row_mask:0x2 bank_mask:0xf")
    tag_dword(d, R)
    A("s_mov_b32 exec_hi, 0")
    store2(d, r['sa'], "s79", 0, WS_QPL - WS_QP)
    A("s_mov_b64 exec, -1")
    stamp(3)
    srd(60, 30, 576*9216); srd(64, 32, 576*9216); srd(68, 34, 4608*1152)
    addr_lc_src(r['offg'], R, 9216); addr_lc_src(r['offd'], R, 1152)
    addr_lc_tr(R, r['trb'], r['trc'])
    A("s_barrier")
    A("s_branch L_S_ffn")
    A("L_S_hi:")
    for i in range(4): wq_dma(i)
    srd(56, 22, 512*8192)
    A(f"v_xor_b32 v{r['t0']}, v{G}, v{N}"); A(f"v_lshlrev_b32 v{r['t0']}, 4, v{r['t0']}")
    A(f"v_lshl_add_u32 v{r['offk']}, v{G}, 13, v{r['t0']}")
    A("s_sub_u32 s80, s3, 4")
    A("s_lshl_b32 s74, s73, 7"); A("s_lshl_b32 s12, s80, 5"); A("s_add_u32 s74, s74, s12"); A("s_lshl_b32 s74, s74, 13"); A("s_add_u32 s74, s74, s75")
    A("s_lshl_b32 s77, s80, 13")
    nk0 = cfg["wuk_pre"]
    def wuk_dma(i):
        A(f"s_add_u32 s12, s74, {i*4*8192}"); A(f"s_add_u32 s13, s77, {S_WUK + i*1024}")
        dma(r['offk'], 56, "s12", "s13")
        if i < 7: A(f"v_xor_b32 v{r['offk']}, {(((i%4) ^ ((i+1)%4)) << 6)}, v{r['offk']}")
    for i in range(nk0): wuk_dma(i)
    srd(44, 40, WS_SIZE); srd(60, 30, 576*9216); srd(64, 32, 576*9216); srd(68, 34, 4608*1152)
    stamp(1)
    A(f"s_waitcnt vmcnt({nk0})"); A("s_barrier")
    stamp(2)
    for i in range(nk0, 8): wuk_dma(i)
    addr_lc_src(r['offg'], R, 9216); addr_lc_src(r['offd'], R, 1152)
    addr_lc_tr(R, r['trb'], r['trc'])
    A("s_waitcnt lgkmcnt(0)")
    tags(R)
    A(f"v_and_b32 v{r['t0']}, 3, v{N}"); A(f"v_lshlrev_b32 v{r['t0']}, 9, v{r['t0']}")
    A(f"v_lshrrev_b32 v{r['t1']}, 2, v{N}"); A(f"v_lshl_add_u32 v{r['t0']}, v{r['t1']}, 7, v{r['t0']}")
    A(f"v_lshl_add_u32 v{r['sb']}, v{G}, 5, v{r['t0']}")
    A(f"s_add_u32 s79, s78, {WS_QP}"); A(f"s_add_u32 s84, s78, {WS_QPL}"); A("s_mov_b32 s85, s79")
    def ld():
        A(f"buffer_load_dwordx4 {vr(r['q'],4)}, v{r['sb']}, s[44:47], s79 offen sc1")
        A(f"buffer_load_dwordx4 {vr(r['q']+4,4)}, v{r['sb']}, s[44:47], s79 offen offset:16 sc1")
    def ck():
        check_f32(r['bad'], [r['q'], r['q']+4]); A(f"v_and_b32 v{r['bad']}, 0xff, v{r['bad']}"); A(f"v_cmp_ne_u32 vcc, 0, v{r['bad']}")
    def bt():
        A(f"v_xor_b32 v{r['t0']}, v{G}, v{N}"); A(f"v_lshlrev_b32 v{r['t0']}, 4, v{r['t0']}")
        A(f"v_lshl_add_u32 v{r['t0']}, v{N}, 8, v{r['t0']}"); A(f"v_add_u32 v{r['t0']}, s77, v{r['t0']}")
        A("s_waitcnt vmcnt(2)")
        stamp(3)
        for v in range(4):
            for t in range(2): A(f"ds_read_b128 {ar(16*t+4*v,4)}, v{r['t0']} offset:{S_WUK + 4096*t}")
            if v < 3: A(f"v_xor_b32 v{r['t0']}, {((v ^ (v+1)) << 6)}, v{r['t0']}")
    poll(ld, ck, between=bt, sid=0, alt=("s79", "s84", "s85") if cfg["local"] else None)
    stamp(4)
    for e in range(8): A(f"v_and_b32 v{r['q']+e}, s7, v{r['q']+e}")
    for e in range(4): A(f"v_cvt_pk_bf16_f32 v{r['qa']+e}, v{r['q']+2*e}, v{r['q']+2*e+1}")
    A("s_waitcnt lgkmcnt(0)")
    for t in range(2):
        for v in range(4): A(f"v_mfma_f32_16x16x32_bf16 {vr(d+16*t+4*v,4)}, {vr(r['qa'],4)}, {ar(16*t+4*v,4)}, 0")
    A("s_lshl_b32 s12, s73, 9"); A("s_add_u32 s12, s12, s78"); A("s_lshl_b32 s13, s80, 7"); A("s_add_u32 s12, s12, s13"); A(f"s_add_u32 s12, s12, {WS_QA}")
    for t in range(2):
        for v in range(4):
            b_ = d + 16*t + 4*v
            A(f"v_add_f32 v{b_}, v{b_}, v{b_+1}"); A(f"v_add_f32 v{b_+2}, v{b_+2}, v{b_+3}"); A(f"v_add_f32 v{b_}, v{b_}, v{b_+2}")
        select4(d+16*t, [d+16*t, d+16*t+4, d+16*t+8, d+16*t+12])
    A(f"v_permlane16_swap_b32 v{d}, v{d+16}"); A(f"v_add_f32 v{d}, v{d}, v{d+16}")
    A(f"v_mov_b32 v{r['t0']}, v{d}"); A(f"v_permlane32_swap_b32 v{d}, v{r['t0']}"); A(f"v_add_f32 v{d}, v{d}, v{r['t0']}")
    tag_dword(d, R)
    A("s_mov_b32 exec_hi, 0")
    A(f"buffer_store_dword v{d}, v{r['sa']}, s[44:47], s12 offen sc1")
    A("s_mov_b64 exec, -1")
    A("s_barrier")
    A("L_S_ffn:")
    stamp(5)
    A("s_mul_i32 s74, s5, 36*9216"); A("s_mul_i32 s12, s4, 1152"); A("s_add_u32 s74, s74, s12")
    A("s_and_b32 s80, s3, 3"); A("s_lshr_b32 s81, s3, 2")
    A("s_mul_i32 s82, s81, 41472"); A(f"s_add_u32 s82, s82, {S_GATE + 8*4608}")
    up9 = A.lab("up9"); j9 = A.lab("j9")
    A("s_mul_i32 s12, s80, 8*9216"); A("s_add_u32 s12, s12, s74"); A("s_add_u32 s12, s12, 1024")
    A("s_lshl_b32 s13, s80, 10"); A("s_add_u32 s13, s13, s82")
    A(f"s_add_u32 s15, s74, {32*9216 + 1024}"); A("s_add_u32 s83, s82, 4096")
    A("s_cmp_lg_u32 s81, 0"); A(f"s_cbranch_scc1 {up9}")
    for sb_, nxt in ((60, j9), (64, None)):
        sk = A.lab("sk")
        dma(r['offg'], sb_, "s12", "s13")
        A("s_cmp_lg_u32 s80, 0"); A(f"s_cbranch_scc1 {sk}")
        A("s_mov_b32 exec_hi, 0"); dma(r['offg'], sb_, "s15", "s83"); A("s_mov_b64 exec, -1")
        A(f"{sk}:")
        if nxt: A(f"s_branch {nxt}"); A(f"{up9}:")
    A(f"{j9}:")
    A("s_lshl_b32 s12, s3, 7"); A("s_add_u32 s74, s74, s12")
    A("s_mul_i32 s76, s3, 4608")
    cnt = 0
    for mat, (sb_, base) in enumerate(((60, S_GATE), (64, S_UP))):
        for b in range(5):
            if cfg["s_win"] is not None and cnt >= cfg["s_win"]: A(f"s_waitcnt vmcnt({cfg['s_win']-1})")
            A(f"s_add_u32 s12, s74, {b*8*9216}"); A(f"s_add_u32 s13, s76, {base + b*1024}")
            if b == 4: A("s_mov_b32 exec_hi, 0")
            dma(r['offg'], sb_, "s12", "s13")
            if b == 4: A("s_mov_b64 exec, -1")
            cnt += 1
    A("s_mul_i32 s12, s5, 72"); A(f"v_lshl_add_u32 v{r['xg']}, v{G}, 3, s12")
    A(f"v_mov_b32 v{r['xz']}, {S_ZERO - S_XN}"); A("s_add_u32 s12, s12, 64"); A(f"v_mov_b32 v{r['t0']}, s12")
    A(f"v_cmp_gt_u32 vcc, 16, v{LANE}"); A(f"v_cndmask_b32 v{r['xz']}, v{r['xz']}, v{r['t0']}, vcc")
    A(f"ds_read_b64 {vr(r['fa'],2)}, v{r['xg']} offset:{S_XN}"); A(f"ds_read_b64 {vr(r['fa']+2,2)}, v{r['xg']} offset:{S_XN+32}")
    A(f"ds_read_b64 {vr(r['fa']+4,2)}, v{r['xz']} offset:{S_XN}")
    A("s_lshl_b32 s79, s4, 4"); A("s_add_u32 s79, s79, s5"); A("s_mul_i32 s79, s79, 4608"); A(f"s_add_u32 s79, s79, {WS_GU}")
    A(f"s_add_u32 s77, s76, {S_GATE}")
    for b_ in (r['trb'], r['trc']):
        A(f"v_add_u32 v{b_}, s77, v{b_}")
        for t in (1, 2, 3): A(f"v_xor_b32 v{b_+t}, {t << 5}, v{b_}")
    fb = r['fb']; fa = r['fa']
    def lc_column(base, extra_k):
        for t in range(4):
            A(f"ds_read_b64_tr_b16 {vr(fb+4*t,2)}, v{r['trb']+t} offset:{base}")
            A(f"ds_read_b64_tr_b16 {vr(fb+4*t+2,2)}, v{r['trb']+t} offset:{base+2048}")
            if extra_k: A(f"ds_read_b64_tr_b16 {vr(fb+16+2*t,2)}, v{r['trc']+t} offset:{base}")
        per = 3 if extra_k else 2
        for t in range(4):
            A(f"s_waitcnt lgkmcnt({per*(3-t)})")
            A(f"v_mfma_f32_16x16x32_bf16 {vr(d+4*t,4)}, {vr(fa,4)}, {vr(fb+4*t,4)}, 0")
        if extra_k:
            for t in range(4): A(f"v_mfma_f32_16x16x16_bf16 {vr(d+4*t,4)}, {vr(fa+4,2)}, {vr(fb+16+2*t,2)}, {vr(d+4*t,4)}")
    def lc_pair9(sbase, spair, ta, tb):
        A(f"s_lshl_b32 s12, {spair}, 6"); A(f"s_sub_u32 s13, {sbase}, s77")
        for t in range(2):
            A(f"v_xor_b32 v{ta}, s12, v{r['trb']+t}"); A(f"v_add_u32 v{ta}, s13, v{ta}")
            A(f"v_xor_b32 v{tb}, s12, v{r['trc']+t}"); A(f"v_add_u32 v{tb}, s13, v{tb}")
            A(f"ds_read_b64_tr_b16 {vr(fb+4*t,2)}, v{ta}"); A(f"ds_read_b64_tr_b16 {vr(fb+4*t+2,2)}, v{ta} offset:2048")
            A(f"ds_read_b64_tr_b16 {vr(fb+16+2*t,2)}, v{tb}")
        A("s_waitcnt lgkmcnt(0)")
        for t in range(2): A(f"v_mfma_f32_16x16x32_bf16 {vr(d+4*t,4)}, {vr(fa,4)}, {vr(fb+4*t,4)}, 0")
        for t in range(2): A(f"v_mfma_f32_16x16x16_bf16 {vr(d+8+4*t,4)}, {vr(fa+4,2)}, {vr(fb+16+2*t,2)}, 0")
        A(f"v_add_f32 v{d}, v{d}, v{d+8}"); A(f"v_add_f32 v{d+4}, v{d+4}, v{d+12}")
        A(f"v_mov_b32_dpp v{d}, v{d+4} quad_perm:[0,1,2,3] row_mask:0x2 bank_mask:0xf")
        tag_dword(d, R)
    A("s_waitcnt vmcnt(5)"); A("s_barrier")
    stamp(6)
    lc_column(0, True)
    select4(d, [d, d+4, d+8, d+12]); tag_dword(d, R)
    A("s_lshl_b32 s83, s3, 8"); A("s_add_u32 s83, s83, s79")
    store2(d, r['sa'], "s83", 0, WS_GUL - WS_GU)
    sk = A.lab("sk")
    A("s_cmp_ge_u32 s80, 2"); A(f"s_cbranch_scc1 {sk}")
    lc_pair9("s82", "s80", r['t0'], r['t1'])
    A("s_mul_i32 s12, s81, 2304"); A("s_add_u32 s12, s12, s79"); A("s_lshl_b32 s13, s80, 7"); A("s_add_u32 s12, s12, s13")
    A("s_mov_b32 exec_hi, 0"); store2(d, r['sa'], "s12", 2048, WS_GUL - WS_GU); A("s_mov_b64 exec, -1")
    A(f"{sk}:")
    A("s_mul_i32 s74, s4, 576"); A("s_mul_i32 s12, s5, 36"); A("s_add_u32 s74, s74, s12"); A("s_mul_i32 s74, s74, 1152")
    sk = A.lab("sk"); sk2 = A.lab("sk")
    A("s_cmp_ge_u32 s3, 5"); A(f"s_cbranch_scc1 {sk}")
    A("s_mul_i32 s12, s3, 8*1152"); A("s_add_u32 s12, s12, s74"); A("s_add_u32 s12, s12, 1024")
    A("s_lshl_b32 s13, s3, 10"); A(f"s_add_u32 s13, s13, {S_DOWN + 8*4608}")
    A("s_cmp_lg_u32 s3, 4"); A(f"s_cbranch_scc1 {sk2}"); A("s_mov_b32 exec_hi, 0"); A(f"{sk2}:")
    dma(r['offd'], 68, "s12", "s13")
    A("s_mov_b64 exec, -1")
    A(f"{sk}:")
    A("s_lshl_b32 s12, s3, 7"); A("s_add_u32 s74, s74, s12")
    def down_dma(b):
        A(f"s_add_u32 s12, s74, {b*8*1152}"); A(f"s_add_u32 s13, s76, {S_DOWN + b*1024}")
        if b == 4: A("s_mov_b32 exec_hi, 0")
        dma(r['offd'], 68, "s12", "s13")
        if b == 4: A("s_mov_b64 exec, -1")
    npre = cfg["down_pre"]
    for b in range(npre): down_dma(b)
    A(f"s_waitcnt vmcnt({npre + (2 if cfg['local'] else 1)})")
    stamp(7)
    lc_column(S_UP - S_GATE, True)
    for b_ in (r['trb'], r['trc']):
        for t in range(4): A(f"v_subrev_u32 v{b_+t}, {S_GATE - S_DOWN}, v{b_+t}")
    A(f"s_add_u32 s77, s76, {S_DOWN}")
    select4(d, [d, d+4, d+8, d+12]); tag_dword(d, R)
    store2(d, r['sa'], "s83", 2304, WS_GUL - WS_GU)
    stamp(8)
    A(f"v_and_b32 v{r['t0']}, 31, v{LANE}"); A(f"v_lshrrev_b32 v{r['t1']}, 5, v{LANE}")
    A(f"v_lshlrev_b32 v{r['sb']}, 4, v{r['t0']}"); A(f"v_lshl_add_u32 v{r['sc']}, v{r['t1']}, 3, v{r['sb']}")
    A(f"v_mul_u32_u24 v{r['t1']}, 4608, v{r['t1']}"); A(f"v_add_u32 v{r['sb']}, v{r['sb']}, v{r['t1']}")
    A(f"v_add_u32 v{r['t1']}, {2304 - 144}, v{r['sb']}"); A(f"v_cmp_lt_u32 vcc, 8, v{r['t0']}"); A(f"v_cndmask_b32 v{r['sb']}, v{r['sb']}, v{r['t1']}, vcc")
    A("s_lshl_b32 s79, s4, 4"); A("s_lshl_b32 s12, s3, 1"); A("s_add_u32 s79, s79, s12"); A("s_mul_i32 s79, s79, 4608")
    A("s_mul_i32 s12, s5, 144"); A("s_add_u32 s79, s79, s12"); A(f"s_add_u32 s79, s79, {WS_GU}")
    A("s_mov_b32 s84, 0x3ffff"); A("s_mov_b32 s85, 0x3ffff")
    def ld(): A(f"buffer_load_dwordx4 {vr(r['q'],4)}, v{r['sb']}, s[44:47], s79 offen sc1")
    def ck():
        check_f32(r['bad'], [r['q']]); A(f"v_and_b32 v{r['bad']}, 0xff, v{r['bad']}"); A(f"v_cmp_ne_u32 vcc, 0, v{r['bad']}")
    def bt():
        for b in range(npre, 5): down_dma(b)
    A(f"s_add_u32 s82, s79, {WS_GUL - WS_GU}"); A("s_mov_b32 s83, s79")
    poll(ld, ck, base_exec="s[84:85]", first_wait=5 - npre, between=bt if npre < 5 else None, sid=1, alt=("s79", "s82", "s83") if cfg["local"] else None)
    stamp(9)
    q = r['q']
    for e in range(4): A(f"v_and_b32 v{q+e}, s7, v{q+e}")
    A(f"v_permlane32_swap_b32 v{q}, v{q+2}"); A(f"v_permlane32_swap_b32 v{q+1}, v{q+3}")
    A(f"v_add_f32 v{q}, v{q}, v{q+2}"); A(f"v_add_f32 v{q+1}, v{q+1}, v{q+3}")
    A("s_mul_i32 s12, s3, 288"); A(f"v_add_u32 v{r['sc']}, s12, v{r['sc']}")
    A("s_mov_b64 exec, s[84:85]")
    A(f"v_add_u32 v{r['sc']}, {S_GUL}, v{r['sc']}")
    A(f"ds_write_b64 v{r['sc']}, {vr(q,2)}")
    A("s_mov_b64 exec, -1")
    A("s_waitcnt lgkmcnt(0)"); A("s_barrier")
    A(f"v_min_u32 v{r['t0']}, 35, v{LANE}"); A(f"v_lshlrev_b32 v{r['t1']}, 2, v{r['t0']}"); A(f"v_add_u32 v{r['t1']}, {S_GUL}, v{r['t1']}")
    kf = r['kf']
    for w_ in range(8):
        A(f"ds_read_b32 v{kf+w_}, v{r['t1']} offset:{288*w_}"); A(f"ds_read_b32 v{kf+8+w_}, v{r['t1']} offset:{288*w_+144}")
    A("s_lshl_b32 s12, s3, 7"); A(f"s_add_u32 s12, s12, {S_HB}")
    A(f"v_lshl_add_u32 v{r['sb']}, v{r['t0']}, 1, s12")
    A(f"v_lshl_add_u32 v{r['xg']}, v{G}, 3, s12")
    A(f"v_mov_b32 v{r['xz']}, {S_ZERO}"); A("s_add_u32 s12, s12, 64"); A(f"v_mov_b32 v{r['t0']}, s12")
    A(f"v_cmp_gt_u32 vcc, 16, v{LANE}"); A(f"v_cndmask_b32 v{r['xz']}, v{r['xz']}, v{r['t0']}, vcc")
    A("s_waitcnt lgkmcnt(0)")
    for st in (4, 2, 1):
        for e in range(st):
            A(f"v_add_f32 v{kf+e}, v{kf+e}, v{kf+e+st}"); A(f"v_add_f32 v{kf+8+e}, v{kf+8+e}, v{kf+8+e+st}")
    A(f"v_mul_f32 v{kf}, {hex(f2u(-1.4426950408889634))}, v{kf}")
    A(f"v_exp_f32 v{kf}, v{kf}"); A(f"v_add_f32 v{kf}, 1.0, v{kf}"); A(f"v_rcp_f32 v{kf}, v{kf}")
    A(f"v_mul_f32 v{kf}, v{kf}, v{kf+8}"); A(f"v_cvt_pk_bf16_f32 v{kf}, v{kf}, v{kf}")
    A(f"ds_write_b16 v{r['sb']}, v{kf}")
    A("s_waitcnt lgkmcnt(0)")
    A(f"ds_read_b64 {vr(fa,2)}, v{r['xg']}"); A(f"ds_read_b64 {vr(fa+2,2)}, v{r['xg']} offset:32"); A(f"ds_read_b64 {vr(fa+4,2)}, v{r['xz']}")
    A("s_mul_i32 s79, s2, 2304"); A(f"s_add_u32 s79, s79, {WS_OP}")
    stamp(10)
    sk = A.lab("sk")
    A("s_cmp_ge_u32 s3, 2"); A(f"s_cbranch_scc1 {sk}")
    A(f"s_mov_b32 s82, {S_DOWN + 8*4608}")
    lc_pair9("s82", "s3", r['t0'], r['t1'])
    A("s_lshl_b32 s12, s3, 7"); A("s_add_u32 s12, s12, s79")
    A("s_mov_b32 exec_hi, 0"); A(f"buffer_store_dword v{d}, v{r['sa']}, s[44:47], s12 offen offset:2048 sc1"); A("s_mov_b64 exec, -1")
    A("s_waitcnt vmcnt(1)")
    jn = A.lab("jn"); A(f"s_branch {jn}")
    A(f"{sk}:")
    A("s_waitcnt vmcnt(0)")
    A(f"{jn}:")
    stamp(11)
    lc_column(0, True)
    A("s_lshl_b32 s12, s3, 8"); A("s_add_u32 s12, s12, s79")
    select4(d, [d, d+4, d+8, d+12]); tag_dword(d, R)
    A(f"buffer_store_dword v{d}, v{r['sa']}, s[44:47], s12 offen sc1")
    stamp(12)
    write_stamps()
    A("s_endpgm")
    A("L_S1:")

    A("L_P:")
    R = Regs(4); common_regs(R); r = R.d
    R("l16"); R("sa"); R("sb"); R("sc"); R("qkb"); R("pva"); R("pvb"); R("qbw"); R("qbr")
    R("tl", 4); R("xres"); R("m"); R("ms")
    R("mxw"); R("mxr"); R("pfw"); R("pfr"); R("tbw"); R("tbr"); R("pst"); R("h3d"); R("h3m"); R("pbw"); R("pbr")
    R("h4a"); R("wmr"); R("wmo"); R("wob"); R("wo9")
    R("h2", 16, 4); R("bq", 16, 4); R("s", 4, 4); R("acc", 16, 4); R("accl", 8, 4); R("fm", 12, 4)
    UVF = 0; WOF = 32
    A(f"v_lshlrev_b32 v{r['l16']}, 4, v{LANE}")
    A("s_lshr_b32 s74, s5, 1"); A("s_lshl_b32 s12, s4, 3"); A("s_add_u32 s74, s74, s12")
    A("s_and_b32 s75, s5, 1")
    A("s_lshl_b32 s76, s74, 7"); A("s_add_u32 s76, s76, s3")
    A("s_lshl_b32 s12, s75, 6"); A("s_xor_b32 s13, s12, 64")
    A("s_add_u32 s77, s76, s13"); A("s_add_u32 s76, s76, s12")
    A("s_lshl_b32 s76, s76, 10"); A("s_lshl_b32 s77, s77, 10")
    A(f"s_mul_i32 s78, s3, {CKS}")
    A("s_waitcnt lgkmcnt(0)")
    A("s_load_dword s6, s[40:41], 0")
    srd(52, 18, 8192*1024)
    code_prefetch("L_P0", "L_P1", r['h2'], r['t0'])
    A("L_P0:")
    def ck_dma(i):
        sreg = "s76" if i < 8 else "s77"
        if cfg["p_win1"] is not None and cfg["p_win1"] <= i < cfg["p_n1"]: A(f"s_waitcnt vmcnt({cfg['p_win1']-1})")
        A(f"s_add_u32 s13, s78, {P_CK + i*8*CKS}")
        dma(r['l16'], 52, sreg, "s13")
        if i % 8 < 7: A(f"s_add_u32 {sreg}, {sreg}, 8192")
    ck_dma(0)
    srd(44, 40, WS_SIZE); srd(56, 24, 512*8192); srd(60, 26, 4096*1152); srd(48, 16, 1152); srd(64, 36, 1152)
    A(f"v_lshlrev_b32 v{r['sa']}, 2, v{LANE}")
    A("s_lshl_b32 s12, s3, 4"); A(f"v_add_u32 v{r['t0']}, s12, v{N}"); A(f"v_mul_u32_u24 v{r['t0']}, {CKS}, v{r['t0']}")
    A(f"v_lshl_add_u32 v{r['qkb']}, v{G}, 4, v{r['t0']}")
    A(f"v_lshrrev_b32 v{r['t0']}, 2, v{N}"); A(f"v_lshl_add_u32 v{r['t0']}, v{G}, 2, v{r['t0']}"); A(f"v_mul_u32_u24 v{r['t0']}, {CKS}, v{r['t0']}")
    A(f"v_and_b32 v{r['t1']}, 3, v{N}"); A(f"v_lshl_add_u32 v{r['t0']}, v{r['t1']}, 3, v{r['t0']}")
    A("s_lshl_b32 s12, s3, 7"); A(f"v_add_u32 v{r['pva']}, s12, v{r['t0']}"); A(f"v_add_u32 v{r['pvb']}, {64*CKS}, v{r['pva']}")
    A(f"v_bfe_u32 v{r['t0']}, v{LANE}, 1, 2"); A("s_lshl_b32 s12, s3, 1"); A(f"v_xor_b32 v{r['t1']}, s12, v{r['t0']}")
    A(f"v_lshlrev_b32 v{r['t1']}, 4, v{r['t1']}"); A(f"v_lshl_add_u32 v{r['t1']}, v{r['t0']}, 8, v{r['t1']}")
    A(f"v_lshrrev_b32 v{r['t0']}, 3, v{LANE}"); A(f"v_mul_u32_u24 v{r['t0']}, 1088, v{r['t0']}"); A(f"v_add_u32 v{r['t1']}, v{r['t1']}, v{r['t0']}")
    A(f"v_and_b32 v{r['t0']}, 1, v{LANE}"); A(f"v_lshl_add_u32 v{r['t1']}, v{r['t0']}, 3, v{r['t1']}"); A(f"v_add_u32 v{r['qbw']}, {P_QB}, v{r['t1']}")
    A(f"v_xor_b32 v{r['t0']}, v{N}, v{G}"); A(f"v_lshlrev_b32 v{r['t0']}, 4, v{r['t0']}"); A(f"v_lshl_add_u32 v{r['t0']}, v{G}, 8, v{r['t0']}")
    A(f"v_add_u32 v{r['qbr']}, {P_QB}, v{r['t0']}")
    h2pos = cfg["h2_pos"]
    assert 8 <= h2pos <= 16
    for i in range(1, 8): ck_dma(i)
    addr_q_style(R); addr_trq(R, P_WUV, 2); addr_lc_src(r['offd'], R, 1152); addr_lc_tr(R, r['trb'])
    A("s_waitcnt lgkmcnt(0)")
    tags(R)
    for j in range(4):
        A(f"v_bfe_u32 v{r['t0']}, v{r['tagb']}, {2*j}, 1"); A(f"v_bfe_u32 v{r['t1']}, v{r['tagb']}, {2*j+1}, 1")
        A(f"v_lshl_or_b32 v{r['tl']+j}, v{r['t1']}, 16, v{r['t0']}")
    t0 = r['t0']; t1 = r['t1']
    A(f"v_lshlrev_b32 v{t0}, 5, v{N}"); A(f"v_add_u32 v{r['mxr']}, {P_MX}, v{t0}"); A("s_lshl_b32 s12, s3, 2"); A(f"v_add_u32 v{r['mxw']}, s12, v{r['mxr']}")
    A("s_lshr_b32 s12, s3, 1"); A("s_lshl_b32 s12, s12, 10"); A("s_and_b32 s13, s3, 1"); A("s_lshl_b32 s13, s13, 3"); A("s_add_u32 s12, s12, s13")
    A(f"v_add_u32 v{r['pfr']}, {P_PF}, v{r['l16']}"); A(f"v_add_u32 v{r['pfw']}, s12, v{r['pfr']}")
    A("s_mul_i32 s12, s3, 2304"); A(f"s_add_u32 s12, s12, {P_TB}")
    A(f"v_mul_u32_u24 v{t0}, 144, v{N}"); A(f"v_lshl_add_u32 v{t0}, v{G}, 3, v{t0}"); A(f"v_add_u32 v{r['tbw']}, s12, v{t0}")
    A(f"v_lshrrev_b32 v{t0}, 3, v{LANE}"); A(f"v_and_b32 v{t1}, 7, v{LANE}"); A(f"v_lshlrev_b32 v{t1}, 4, v{t1}")
    A(f"v_lshl_add_u32 v{r['pst']}, v{t0}, 16, v{t1}")
    A(f"v_mul_u32_u24 v{t0}, 144, v{t0}"); A(f"v_add3_u32 v{r['tbr']}, v{t0}, v{t1}, s12")
    A(f"v_lshlrev_b32 v{t0}, 4, v{N}"); A(f"v_lshl_add_u32 v{r['h3d']}, v{G}, 10, v{t0}"); A(f"v_lshlrev_b32 v{r['h3m']}, 9, v{G}")
    A(f"v_lshrrev_b32 v{t0}, 2, v{N}"); A(f"v_lshlrev_b32 v{t0}, 4, v{t0}")
    A(f"v_and_b32 v{t1}, 1, v{N}"); A(f"v_lshl_add_u32 v{t0}, v{t1}, 3, v{t0}")
    A(f"v_bfe_u32 v{t1}, v{N}, 1, 1"); A(f"v_lshl_add_u32 v{t0}, v{t1}, 1, v{t0}")
    A(f"v_lshrrev_b32 v{t1}, 1, v{G}"); A(f"v_lshl_add_u32 v{t0}, v{t1}, 2, v{t0}")
    A(f"v_and_b32 v{t1}, 1, v{G}"); A(f"v_add_u32 v{t0}, v{t0}, v{t1}")
    A("s_mul_i32 s12, s3, 272"); A(f"s_add_u32 s12, s12, {P_PB}"); A(f"v_lshl_add_u32 v{r['pbw']}, v{t0}, 2, s12")
    A(f"v_lshlrev_b32 v{t1}, 4, v{t1}"); A(f"v_add_u32 v{r['wmr']}, {P_MX}, v{t1}"); A(f"v_xor_b32 v{r['wmo']}, 16, v{r['wmr']}")
    A(f"v_and_b32 v{t0}, 7, v{N}"); A(f"v_mul_u32_u24 v{t0}, 272, v{t0}"); A(f"v_lshl_add_u32 v{t0}, v{G}, 4, v{t0}"); A(f"v_add_u32 v{r['pbr']}, {P_PB}, v{t0}")
    A(f"v_and_b32 v{t0}, 3, v{N}"); A(f"v_lshlrev_b32 v{t0}, 9, v{t0}"); A(f"v_lshl_add_u32 v{r['h4a']}, v{G}, 4, v{t0}")
    A("s_lshl_b32 s83, s3, 12"); A(f"s_add_u32 s12, s83, {P_WO}"); A(f"v_add_u32 v{r['wob']}, s12, v{r['trb']}")
    A("s_and_b32 s12, s3, 1"); A("s_lshl_b32 s12, s12, 6"); A(f"v_xor_b32 v{t0}, s12, v{r['trb']}"); A(f"v_add_u32 v{r['wo9']}, {P_WO9}, v{t0}")
    A("s_lshl_b32 s80, s73, 7"); A("s_lshl_b32 s12, s3, 2"); A("s_add_u32 s80, s80, s12"); A("s_lshl_b32 s80, s80, 13")
    A("s_lshl_b32 s12, s72, 8"); A("s_add_u32 s80, s80, s12"); A("s_lshl_b32 s81, s3, 10")
    A("s_lshl_b32 s82, s72, 7"); A("s_lshl_b32 s12, s73, 5"); A("s_add_u32 s82, s82, s12"); A("s_mul_i32 s82, s82, 1152")
    for i in range(8, h2pos): ck_dma(i)
    A("s_lshl_b32 s79, s75, 4"); A("s_lshl_b32 s12, s3, 1"); A("s_add_u32 s79, s79, s12"); A("s_lshl_b32 s79, s79, 11"); A(f"s_add_u32 s79, s79, {WS_QA}")
    h2 = r['h2']
    def pv_frags(v0, v1):
        for v in range(v0, v1):
            for u in range(4):
                for rd in range(2):
                    b_ = r['pva'] if v < 2 else r['pvb']
                    A(f"ds_read_b64_tr_b16 {ar(64 + (v*4+u)*4 + 2*rd, 2)}, v{b_} offset:{(32*(v%2) + 16*rd)*CKS + 32*u}")
    def qk_frags():
        for t in range(16): A(f"ds_read_b128 {ar(4*t,4)}, v{r['qkb']} offset:{64*t}")
    def ld():
        for e in range(4): A(f"buffer_load_dwordx4 {vr(h2+4*e,4)}, v{r['l16']}, s[44:47], s79 offen offset:{1024*e} sc1")
    def ck():
        check_f32(r['bad'], [h2, h2+4, h2+8, h2+12]); A(f"v_and_b32 v{r['bad']}, 0xff, v{r['bad']}"); A(f"v_cmp_ne_u32 vcc, 0, v{r['bad']}")
    def bt():
        for i in range(h2pos, 16): ck_dma(i)
        stamp(1)
        A("s_waitcnt vmcnt(12)"); A("s_barrier")
        stamp(2)
        sk = A.lab("sk"); A("s_cmp_ge_u32 s3, 4"); A(f"s_cbranch_scc1 {sk}"); qk_frags(); A(f"{sk}:")
        pv_frags(0, 2)
    poll(ld, ck, first_wait=16 - h2pos, between=bt, sid=0)
    stamp(3)
    for e in range(16): A(f"v_and_b32 v{h2+e}, s7, v{h2+e}")
    for e in range(8): A(f"v_cvt_pk_bf16_f32 v{h2+e}, v{h2+2*e}, v{h2+2*e+1}")
    A(f"v_xor_b32 v{r['t0']}, 16, v{r['qbw']}")
    A(f"ds_write_b64 v{r['qbw']}, {vr(h2,2)}"); A(f"ds_write_b64 v{r['qbw']}, {vr(h2+2,2)} offset:{8*1088}")
    A(f"ds_write_b64 v{r['t0']}, {vr(h2+4,2)}"); A(f"ds_write_b64 v{r['t0']}, {vr(h2+6,2)} offset:{8*1088}")
    A("s_waitcnt vmcnt(0) lgkmcnt(0)"); A("s_barrier")
    stamp(4)
    def wuv_dma(i):
        A(f"s_add_u32 s12, s80, {i*32*8192}"); A(f"s_add_u32 s13, s81, {P_WUV + i*8192}"); dma(r['offq'], 56, "s12", "s13")
    def wo9():
        sk = A.lab("sk"); A("s_cmp_ge_u32 s3, 4"); A(f"s_cbranch_scc1 {sk}")
        A("s_mul_i32 s12, s3, 8*1152"); A("s_add_u32 s12, s12, s82"); A("s_add_u32 s12, s12, 1024"); A(f"s_add_u32 s13, s81, {P_WO9}")
        dma(r['offd'], 60, "s12", "s13"); A(f"{sk}:")
        A("s_lshl_b32 s12, s3, 7"); A("s_add_u32 s82, s82, s12")
    def wo_dma(b):
        A(f"s_add_u32 s12, s82, {b*8*1152}"); A(f"s_add_u32 s13, s83, {P_WO + b*1024}"); dma(r['offd'], 60, "s12", "s13")
    pend = [lambda i=i: wuv_dma(i) for i in range(4)] + [wo9] + [lambda b=b: wo_dma(b) for b in range(4)]
    sk = A.lab("sk"); A("s_cmp_lt_u32 s3, 4"); A(f"s_cbranch_scc1 {sk}"); qk_frags(); A(f"{sk}:")
    bq = r['bq']; s_ = r['s']
    for t in range(4): A(f"ds_read_b128 {vr(bq+4*t,4)}, v{r['qbr']} offset:{1088*t}")
    nqk = cfg["dma_in_qk"]
    for t in range(16):
        A(f"s_waitcnt lgkmcnt({min(3, 15-t)})")
        A(f"v_mfma_f32_16x16x32_bf16 {vr(s_,4)}, {ar(4*t,4)}, {vr(bq+4*(t%4),4)}, {'0' if t == 0 else vr(s_,4)}")
        if t + 4 < 16: A(f"ds_read_b128 {vr(bq+4*(t%4),4)}, v{r['qbr']} offset:{1088*(t+4)}")
        if t % 2 == 1 and nqk > 0: pend.pop(0)(); nqk -= 1
    pv_frags(2, 4)
    m = r['m']
    A(f"v_max3_f32 v{m}, v{s_}, v{s_+1}, v{s_+2}"); A(f"v_max_f32 v{m}, v{m}, v{s_+3}")
    allreduce_groups(m, t0, "v_max_f32")
    A("s_mov_b64 exec, 0xffff"); A(f"ds_write_b32 v{r['mxw']}, v{m}"); A("s_mov_b64 exec, -1")
    A(f"s_mov_b32 s15, {hex(f2u(SCALE2))}")
    A("s_waitcnt lgkmcnt(0)"); A("s_barrier")
    stamp(5)
    A(f"ds_read_b128 {vr(bq,4)}, v{r['mxr']}"); A(f"ds_read_b128 {vr(bq+4,4)}, v{r['mxr']} offset:16")
    A("s_waitcnt lgkmcnt(0)")
    A(f"v_max3_f32 v{m}, v{bq}, v{bq+1}, v{bq+2}"); A(f"v_max3_f32 v{t0}, v{bq+3}, v{bq+4}, v{bq+5}")
    A(f"v_max3_f32 v{m}, v{m}, v{bq+6}, v{bq+7}"); A(f"v_max_f32 v{m}, v{m}, v{t0}")
    A(f"v_mul_f32 v{r['ms']}, s15, v{m}")
    for e in range(4): A(f"v_fma_f32 v{s_+e}, v{s_+e}, s15, -v{r['ms']}")
    for e in range(4): A(f"v_exp_f32 v{s_+e}, v{s_+e}")
    A(f"v_cvt_pk_bf16_f32 v{s_}, v{s_}, v{s_+1}"); A(f"v_cvt_pk_bf16_f32 v{s_+1}, v{s_+2}, v{s_+3}")
    A(f"ds_write_b64 v{r['pfw']}, {vr(s_,2)}")
    A("s_waitcnt lgkmcnt(0)"); A("s_barrier")
    for v in range(4): A(f"ds_read_b128 {vr(bq+4*v,4)}, v{r['pfr']} offset:{1024*v}")
    stamp(6)
    acc = r['acc']
    npv = cfg["dma_in_pv"]
    for v in range(4):
        A(f"s_waitcnt lgkmcnt({3-v})")
        for u in range(4):
            A(f"v_mfma_f32_16x16x32_bf16 {vr(acc+4*u,4)}, {ar(64+(v*4+u)*4,4)}, {vr(bq+4*v,4)}, {'0' if v == 0 else vr(acc+4*u,4)}")
            if u % 2 == 1 and pend and npv > 0: pend.pop(0)(); npv -= 1
    sk = A.lab("sk"); A("s_cmp_lg_u32 s3, 0"); A(f"s_cbranch_scc1 {sk}")
    for e in range(4): A(f"v_mov_b32 v{h2+e}, 0x3f803f80")
    for v in range(4): A(f"v_mfma_f32_16x16x32_bf16 {vr(r['accl'],4)}, {vr(h2,4)}, {vr(bq+4*v,4)}, {'0' if v == 0 else vr(r['accl'],4)}")
    A(f"{sk}:")
    A("s_lshl_b32 s79, s75, 20"); A("s_lshl_b32 s12, s74, 10"); A("s_add_u32 s79, s79, s12"); A("s_lshl_b32 s12, s3, 7"); A("s_add_u32 s79, s79, s12")
    A(f"s_add_u32 s79, s79, {WS_PART}"); A(f"s_add_u32 s84, s79, {8 << 16}")
    A("s_mov_b32 s15, 0x07060302")
    for u in range(4):
        A(f"v_perm_b32 v{acc+4*u}, v{acc+4*u+1}, v{acc+4*u}, s15"); A(f"v_perm_b32 v{acc+4*u+1}, v{acc+4*u+3}, v{acc+4*u+2}, s15")
        A(f"ds_write_b64 v{r['tbw']}, {vr(acc+4*u,2)} offset:{32*u}")
    A("s_mov_b32 s15, 0xfffefffe")
    A("s_waitcnt lgkmcnt(0)")
    A(f"ds_read_b128 {vr(bq,4)}, v{r['tbr']}"); A(f"ds_read_b128 {vr(bq+4,4)}, v{r['tbr']} offset:{8*144}")
    for hh in range(2):
        A(f"s_waitcnt lgkmcnt({1-hh})")
        for j in range(4): A(f"v_and_or_b32 v{bq+4*hh+j}, v{bq+4*hh+j}, s15, v{r['tl']+j}")
        A(f"buffer_store_dwordx4 {vr(bq+4*hh,4)}, v{r['pst']}, s[44:47], {'s79' if hh == 0 else 's84'} offen sc1")
    sk = A.lab("sk"); A("s_cmp_lg_u32 s3, 0"); A(f"s_cbranch_scc1 {sk}")
    A(f"v_mov_b32 v{h2}, v{r['ms']}"); A(f"v_mov_b32 v{h2+1}, v{r['accl']}"); A(f"v_mov_b32 v{h2+2}, s6"); A(f"v_mov_b32 v{h2+3}, s6")
    A("s_lshl_b32 s12, s75, 8"); A("s_lshl_b32 s13, s74, 9"); A("s_add_u32 s12, s12, s13"); A(f"s_add_u32 s12, s12, {WS_ML}")
    A("s_mov_b64 exec, 0xffff"); A(f"buffer_store_dwordx4 {vr(h2,4)}, v{r['l16']}, s[44:47], s12 offen sc1"); A("s_mov_b64 exec, -1")
    A(f"{sk}:")
    stamp(7)
    late = len(pend) > 0
    while pend: pend.pop(0)()
    A("s_lshl_b32 s79, s72, 16"); A("s_lshl_b32 s12, s3, 13"); A("s_add_u32 s79, s79, s12"); A("s_lshl_b32 s12, s73, 8"); A("s_add_u32 s79, s79, s12")
    A(f"s_add_u32 s79, s79, {WS_PART}"); A("s_add_u32 s84, s79, 4096")
    A("s_lshl_b32 s74, s72, 4"); A("s_add_u32 s74, s74, s83"); A(f"s_add_u32 s74, s74, {WS_ML}")
    mla = acc; mlb = acc + 4
    if cfg["h3_ack"]: A("s_waitcnt vmcnt(0)"); late = True
    def ld():
        A(f"buffer_load_dwordx4 {vr(mla,4)}, v{r['h3m']}, s[44:47], s74 offen sc1")
        A(f"buffer_load_dwordx4 {vr(mlb,4)}, v{r['h3m']}, s[44:47], s74 offen offset:2048 sc1")
        A(f"buffer_load_dwordx4 {vr(bq,4)}, v{r['h3d']}, s[44:47], s79 offen sc1")
        A(f"buffer_load_dwordx4 {vr(bq+4,4)}, v{r['h3d']}, s[44:47], s84 offen sc1")
    def ck():
        A(f"v_xor_b32 v{r['bad']}, v{bq}, v{r['tl']}")
        for e in range(1, 8): A(f"v_bitop3_b32 v{r['bad']}, v{bq+e}, v{r['tl']+e%4}, v{r['bad']} bitop3:0xbe")
        A(f"v_and_b32 v{r['bad']}, 0x10001, v{r['bad']}")
        for b_ in (mla, mlb): A(f"v_bitop3_b32 v{r['bad']}, v{b_+2}, s6, v{r['bad']} bitop3:0xbe")
        A(f"v_cmp_ne_u32 vcc, 0, v{r['bad']}")
    def bt():
        A(f"s_waitcnt vmcnt({4 if late else 6})"); A("s_barrier")
        sk = A.lab("sk"); A("s_cmp_ge_u32 s3, 4"); A(f"s_cbranch_scc1 {sk}")
        A(f"v_xor_b32 v{t0}, 32, v{r['trq']}")
        for q in range(8):
            A(f"ds_read_b64_tr_b16 {ar(UVF+2*q,2)}, v{r['trq']} offset:{4096*q}"); A(f"ds_read_b64_tr_b16 {ar(UVF+16+2*q,2)}, v{t0} offset:{4096*q}")
        A(f"{sk}:")
        for t in range(4):
            A(f"ds_read_b64_tr_b16 {ar(WOF+4*t,2)}, v{r['wob']}"); A(f"ds_read_b64_tr_b16 {ar(WOF+4*t+2,2)}, v{r['wob']} offset:2048")
            if t < 3: A(f"v_xor_b32 v{r['wob']}, {(t ^ (t+1)) << 5}, v{r['wob']}")
        for t in range(2):
            A(f"ds_read_b64_tr_b16 {ar(WOF+16+4*t,2)}, v{r['wo9']}"); A(f"ds_read_b64_tr_b16 {ar(WOF+18+4*t,2)}, v{r['wo9']} offset:2048")
            if t < 1: A(f"v_xor_b32 v{r['wo9']}, 32, v{r['wo9']}")
        A("s_mov_b32 s15, 0x10000"); A("s_mov_b32 s13, 0xfffe0000"); A(f"v_mov_b32 v{t1}, 0x10000")
    poll(ld, ck, wqm=True, between=bt, sid=1)
    stamp(8)
    un = h2
    def unpack(e):
        A(f"v_lshl_or_b32 v{un+2*e}, v{bq+e}, 16, s15"); A(f"v_and_or_b32 v{un+2*e+1}, v{bq+e}, s13, v{t1}")
    A(f"v_max_f32 v{m}, v{mla}, v{mlb}"); A(f"v_mov_b32 v{t0}, v{m}"); unpack(0)
    A(f"v_permlane16_swap_b32 v{m}, v{t0}"); A(f"v_max_f32 v{m}, v{m}, v{t0}"); A(f"v_mov_b32 v{t0}, v{m}"); unpack(1)
    A(f"v_permlane32_swap_b32 v{m}, v{t0}"); A(f"v_max_f32 v{m}, v{m}, v{t0}")
    A(f"v_sub_f32 v{mla}, v{mla}, v{m}"); A(f"v_sub_f32 v{mlb}, v{mlb}, v{m}")
    A(f"v_exp_f32 v{mla}, v{mla}"); A(f"v_exp_f32 v{mlb}, v{mlb}")
    for e in range(2, 8): unpack(e)
    for e in range(8): A(f"v_mul_f32 v{un+e}, v{un+e}, v{mla}")
    for e in range(8): A(f"v_fmac_f32 v{un+e}, v{un+8+e}, v{mlb}")
    lw = m + 1
    assert r['ms'] == m + 1
    A(f"v_mul_f32 v{lw}, v{mla}, v{mla+1}"); A(f"v_fmac_f32 v{lw}, v{mlb}, v{mlb+1}")
    for e in range(4): A(f"v_permlane32_swap_b32 v{un+e}, v{un+4+e}")
    A(f"v_mov_b32 v{t0}, v{lw}")
    for e in range(4): A(f"v_add_f32 v{un+e}, v{un+e}, v{un+4+e}")
    A(f"v_permlane16_swap_b32 v{lw}, v{t0}")
    for e in range(2): A(f"v_permlane16_swap_b32 v{un+e}, v{un+2+e}")
    A(f"v_add_f32 v{lw}, v{lw}, v{t0}")
    for e in range(2): A(f"v_add_f32 v{un+e}, v{un+e}, v{un+2+e}")
    A(f"v_mov_b32 v{t0}, v{lw}")
    A(f"v_cvt_pk_bf16_f32 v{un}, v{un}, v{un+1}")
    A(f"ds_write_b32 v{r['pbw']}, v{un}")
    A(f"v_permlane32_swap_b32 v{lw}, v{t0}"); A(f"v_add_f32 v{lw}, v{lw}, v{t0}")
    A("s_mov_b64 exec, 1"); A(f"ds_write2_b32 v{r['mxw']}, v{m}, v{lw} offset0:0 offset1:8"); A("s_mov_b64 exec, -1")
    A("s_lshl_b32 s78, s72, 11")
    A("s_waitcnt lgkmcnt(0)"); A("s_barrier")
    sk = A.lab("sk"); A("s_cmp_ge_u32 s3, 4"); A(f"s_cbranch_scc1 {sk}")
    fm = r['fm']
    A(f"ds_read_b128 {vr(fm,4)}, v{r['wmr']}"); A(f"ds_read_b128 {vr(fm+4,4)}, v{r['wmo']}")
    for v in range(4): A(f"ds_read_b128 {vr(bq+4*v,4)}, v{r['pbr']} offset:{64*v}")
    A(f"ds_read_b128 {vr(fm+8,4)}, v{r['wmr']} offset:32")
    A("s_lshl_b32 s12, s73, 9"); A("s_add_u32 s12, s12, s78"); A("s_lshl_b32 s13, s3, 7"); A("s_add_u32 s12, s12, s13"); A(f"s_add_u32 s76, s12, {WS_CP}"); A(f"s_add_u32 s85, s12, {WS_CPL}")
    da = acc; db = acc + 4
    def uvm(v):
        A(f"s_waitcnt lgkmcnt({4-v})")
        for t, dd in ((0, da), (1, db)): A(f"v_mfma_f32_16x16x32_bf16 {vr(dd,4)}, {vr(bq+4*v,4)}, {ar(UVF+16*t+4*v,4)}, {'0' if v == 0 else vr(dd,4)}")
    uvm(0)
    A(f"v_max3_f32 v{m}, v{fm}, v{fm+1}, v{fm+2}"); A(f"v_max3_f32 v{t0}, v{fm+3}, v{fm+4}, v{fm+5}")
    A(f"v_max3_f32 v{m}, v{m}, v{fm+6}, v{fm+7}"); A(f"v_max_f32 v{m}, v{m}, v{t0}")
    uvm(1)
    for e in range(4): A(f"v_sub_f32 v{fm+e}, v{fm+e}, v{m}")
    uvm(2)
    for e in range(4): A(f"v_exp_f32 v{fm+e}, v{fm+e}")
    uvm(3)
    A("s_waitcnt lgkmcnt(0)")
    A(f"v_mul_f32 v{lw}, v{fm}, v{fm+8}")
    for e in range(1, 4): A(f"v_fmac_f32 v{lw}, v{fm+e}, v{fm+8+e}")
    A(f"v_mov_b32 v{t0}, v{lw}"); A(f"v_permlane16_swap_b32 v{lw}, v{t0}"); A(f"v_add_f32 v{lw}, v{lw}, v{t0}"); A(f"v_rcp_f32 v{lw}, v{lw}")
    for dd in (da, db):
        A(f"v_mul_f32 v{dd}, v{dd}, v{fm}")
        for e in range(1, 4): A(f"v_fmac_f32 v{dd}, v{dd+e}, v{fm+e}")
    A(f"v_permlane16_swap_b32 v{da}, v{db}"); A(f"v_add_f32 v{da}, v{da}, v{db}")
    A(f"v_mul_f32 v{da}, v{da}, v{lw}")
    tag_dword(da, R)
    A("s_mov_b32 exec_hi, 0")
    if cfg["local"]: A(f"buffer_store_dword v{da}, v{r['sa']}, s[44:47], s85 offen")
    else: A(f"buffer_store_dword v{da}, v{r['sa']}, s[44:47], s76 offen sc1")
    A("s_mov_b64 exec, -1")
    A(f"{sk}:")
    stamp(9)
    A("s_lshl_b32 s12, s73, 7"); A("s_add_u32 s79, s78, s12"); A(f"s_add_u32 s79, s79, {WS_CP}")
    def ld():
        A(f"buffer_load_dwordx4 {vr(h2,4)}, v{r['h4a']}, s[44:47], s79 offen sc1")
        A(f"buffer_load_dwordx4 {vr(h2+4,4)}, v{r['h4a']}, s[44:47], s79 offen offset:64 sc1")
    def ck():
        check_f32(r['bad'], [h2, h2+4]); A(f"v_and_b32 v{r['bad']}, 0xff, v{r['bad']}"); A(f"v_cmp_ne_u32 vcc, 0, v{r['bad']}")
    def dfr():
        sk = A.lab("sk"); A("s_cmp_ge_u32 s3, 4"); A(f"s_cbranch_scc1 {sk}")
        A("s_mov_b64 exec, -1"); A("s_mov_b32 exec_hi, 0"); A(f"buffer_store_dword v{da}, v{r['sa']}, s[44:47], s76 offen sc1"); A(f"{sk}:")
    A(f"s_add_u32 s84, s79, {WS_CPL - WS_CP}"); A("s_mov_b32 s85, s79")
    if cfg["local"]: poll(ld, ck, sid=2, alt=("s79", "s84", "s85"), deferred=dfr)
    else: poll(ld, ck, sid=2)
    stamp(10)
    for e in range(8): A(f"v_and_b32 v{h2+e}, s7, v{h2+e}")
    for e in range(4): A(f"v_cvt_pk_bf16_f32 v{h2+8+e}, v{h2+2*e}, v{h2+2*e+1}")
    al = r['accl']
    for t in range(4): A(f"v_mfma_f32_16x16x32_bf16 {vr(acc+4*t,4)}, {vr(h2+8,4)}, {ar(WOF+4*t,4)}, 0")
    A("s_mul_i32 s79, s2, 2304"); A(f"s_add_u32 s79, s79, {WS_OP}")
    A("s_lshl_b32 s12, s3, 8"); A("s_add_u32 s12, s12, s79")
    sk = A.lab("sk"); A("s_and_b32 s13, s3, 6"); A("s_cmp_lg_u32 s13, 4"); A(f"s_cbranch_scc1 {sk}")
    for t in range(2): A(f"v_mfma_f32_16x16x32_bf16 {vr(al+4*t,4)}, {vr(h2+8,4)}, {ar(WOF+16+4*t,4)}, 0")
    A(f"{sk}:")
    for b_ in (acc, acc+4, acc+8, acc+12):
        A(f"v_add_f32 v{b_}, v{b_}, v{b_+1}"); A(f"v_add_f32 v{b_+2}, v{b_+2}, v{b_+3}"); A(f"v_add_f32 v{b_}, v{b_}, v{b_+2}")
    select4(acc, [acc, acc+4, acc+8, acc+12]); tag_dword(acc, R)
    A(f"buffer_store_dword v{acc}, v{r['sa']}, s[44:47], s12 offen sc1")
    sk = A.lab("sk"); A("s_cmp_lg_u32 s13, 4"); A(f"s_cbranch_scc1 {sk}")
    A("s_and_b32 s13, s3, 1"); A("s_lshl_b32 s13, s13, 7"); A("s_add_u32 s13, s13, s79")
    for b_ in (al, al+4):
        A(f"v_add_f32 v{b_}, v{b_}, v{b_+1}"); A(f"v_add_f32 v{b_+2}, v{b_+2}, v{b_+3}"); A(f"v_add_f32 v{b_}, v{b_}, v{b_+2}")
    A(f"v_mov_b32_dpp v{al}, v{al+4} quad_perm:[0,1,2,3] row_mask:0x2 bank_mask:0xf")
    tag_dword(al, R)
    A("s_mov_b32 exec_hi, 0"); A(f"buffer_store_dword v{al}, v{r['sa']}, s[44:47], s13 offen offset:2048 sc1"); A("s_mov_b64 exec, -1")
    A(f"{sk}:")
    stamp(11)
    A("s_lshr_b32 s12, s5, 2"); A("s_lshl_b32 s12, s12, 3"); A("s_add_u32 s12, s12, s4")
    A("s_cmp_ge_u32 s12, 18"); A("s_cbranch_scc1 L_Pend")
    A("s_lshl_b32 s74, s12, 2"); A("s_add_u32 s74, s74, s73")
    A(f"v_lshrrev_b32 v{r['t0']}, 1, v{LANE}"); A(f"v_mul_u32_u24 v{r['t0']}, 2304, v{r['t0']}")
    A(f"v_and_b32 v{r['t1']}, 1, v{LANE}"); A(f"v_lshl_add_u32 v{r['sb']}, v{r['t1']}, 4, v{r['t0']}")
    A("s_mul_i32 s79, s3, 32*2304"); A("s_lshl_b32 s12, s74, 5"); A("s_add_u32 s79, s79, s12"); A(f"s_add_u32 s79, s79, {WS_OP}")
    A(f"v_and_b32 v{r['sc']}, 7, v{LANE}"); A(f"v_lshlrev_b32 v{r['sc']}, 1, v{r['sc']}"); A("s_lshl_b32 s75, s74, 4")
    A(f"buffer_load_ushort v{r['xres']}, v{r['sc']}, s[48:51], s75 offen")
    def ld(): A(f"buffer_load_dwordx4 {vr(h2,4)}, v{r['sb']}, s[44:47], s79 offen sc1")
    def ck():
        check_f32(r['bad'], [h2]); A(f"v_and_b32 v{r['bad']}, 0xff, v{r['bad']}"); A(f"v_cmp_ne_u32 vcc, 0, v{r['bad']}")
    poll(ld, ck, sid=3)
    stamp(12)
    for e in range(4): A(f"v_and_b32 v{h2+e}, s7, v{h2+e}")
    A(f"v_permlane32_swap_b32 v{h2}, v{h2+2}"); A(f"v_permlane32_swap_b32 v{h2+1}, v{h2+3}")
    A(f"v_add_f32 v{h2}, v{h2}, v{h2+2}"); A(f"v_add_f32 v{h2+1}, v{h2+1}, v{h2+3}")
    A(f"v_lshrrev_b32 v{r['t0']}, 5, v{LANE}"); A(f"v_lshl_add_u32 v{r['t1']}, v{r['t1']}, 1, v{r['t0']}")
    A(f"v_permlane16_swap_b32 v{h2}, v{h2+1}"); A(f"v_add_f32 v{h2}, v{h2}, v{h2+1}")
    A(f"v_bfe_u32 v{r['t0']}, v{LANE}, 4, 1"); A(f"v_lshl_add_u32 v{r['t1']}, v{r['t1']}, 1, v{r['t0']}")
    for rr in (8, 4, 2): A(f"v_add_f32_dpp v{h2}, v{h2}, v{h2} row_ror:{rr} row_mask:0xf bank_mask:0xf")
    A("s_lshl_b32 s12, s3, 2"); A(f"s_add_u32 s12, s12, {P_FR}"); A(f"v_lshl_add_u32 v{r['t1']}, v{r['t1']}, 5, s12")
    A("s_mov_b32 s84, 0x00030003"); A("s_mov_b32 s85, 0x00030003"); A("s_mov_b64 exec, s[84:85]")
    A(f"ds_write_b32 v{r['t1']}, v{h2}")
    A("s_mov_b64 exec, -1")
    A(f"v_lshlrev_b32 v{r['t0']}, 4, v{r['sc']}"); A(f"v_add_u32 v{r['t0']}, {P_FR}, v{r['t0']}")
    A("s_waitcnt lgkmcnt(0)"); A("s_barrier")
    A("s_cmp_lg_u32 s3, 0"); A("s_cbranch_scc1 L_Pend")
    A(f"ds_read_b128 {vr(h2,4)}, v{r['t0']}"); A(f"ds_read_b128 {vr(h2+4,4)}, v{r['t0']} offset:16")
    A(f"v_lshlrev_b32 v{r['xres']}, 16, v{r['xres']}")
    A("s_waitcnt lgkmcnt(0)")
    for st in (4, 2, 1):
        for e in range(st): A(f"v_add_f32 v{h2+e}, v{h2+e}, v{h2+e+st}")
    A(f"v_add_f32 v{h2}, v{h2}, v{r['xres']}"); A(f"v_cvt_pk_bf16_f32 v{h2}, v{h2}, v{h2}")
    A("s_mov_b64 exec, 0xff")
    A(f"buffer_store_short v{h2}, v{r['sc']}, s[64:67], s75 offen")
    A("s_cmp_lg_u32 s74, 0"); A("s_cbranch_scc1 L_Pend")
    A("s_mov_b64 exec, 1"); A(f"v_mov_b32 v{r['t0']}, s6")
    A(f"buffer_store_dword v{r['t0']}, v{r['sa']}, s[44:47], 0 offen sc1")
    A("L_Pend:")
    stamp(13)
    write_stamps()
    A("L_exit:")
    A("s_endpgm")
    A("L_P1:")
    body = A.finish(verbose=cfg.get("verbose", False))
    head = open("parallel_sum__compressed_kv_cla__glu_gated_glu__decode.s.ref").read().split("; Override launch")[0]
    head += f"; @launch grid=(256,1,1) block=(512,1,1) lds={LDS}\n"
    head += '.amdgcn_target "amdgcn-amd-amdhsa--gfx950"\n.text\n' + f".globl {NAME}\n.p2align 8\n.type {NAME},@function\n"
    tail = f""".section .rodata,"a"
.p2align 6
.amdhsa_kernel {NAME}
  .amdhsa_next_free_vgpr 256
  .amdhsa_next_free_sgpr 102
  .amdhsa_accum_offset 128
  .amdhsa_group_segment_fixed_size 0
  .amdhsa_kernarg_size 104
  .amdhsa_user_sgpr_count 2
  .amdhsa_user_sgpr_kernarg_segment_ptr 1
  .amdhsa_system_sgpr_workgroup_id_x 1
  .amdhsa_float_denorm_mode_32 3
.end_amdhsa_kernel
"""
    return head + body + tail

if __name__ == "__main__":
    out = sys.argv[1] if len(sys.argv) > 1 else "k.s"
    kw = eval("dict(" + (sys.argv[2] if len(sys.argv) > 2 else "") + ")")
    open(out, "w").write(generate(verbose=True, **kw))
```

```python
import sys
from asmlib import Asm

NAME = "parallel_sum__compressed_kv_cla__glu_gated_glu__decode_kernel"

DEF = dict(
    nt="",
    stamps=False,
    prefetch_code=True,
    spin_cap=1 << 18, ws_base=0,
    local=True, k0=24, touch=True,
    h3_ack=True,
    sleep=0,
    p_win1=None, p_n1=0,
    h2_pos=16,
    wq_bar=True, gate_p=True, gate_s=False, gate_cap=40, p_pre=0, s_pre=0,
    qa_rep=8, hints=False, frags_first=False,
    wo_bar="pb", p_delay=True,
    wo_early=False,
    s_win=None,
    wuk_pre=8,
    down_pre=5,
)

WS_R = 0
WS_QP = 0x10000
WS_QA = 0x20000
WS_CP = 0x30000
WS_ML = 0x40000
WS_OP = 0x60000
WS_GU = 0x100000
WS_PART = 0x200000
WS_ST = 0x400000
WS_SIZE = 0x500000
LOC = 0x40000
WS_QP = 0x10000; WS_CP = 0x18000 + 0x8000; WS_QA = 0x30000; WS_ML = 0x40000
WS_QPL = 0x50000; WS_CPL = 0x60000; WS_OP = 0x70000
WS_GU = 0x100000; WS_GUL = 0x480000 - 0x80000 + 0x100000
WS_QA = 0x600000; WS_HINT = 0x680000; WS_GO = 0x690000
WS_SIZE = 0x700000
TAGK = 0x9E3779B9

S_XN = 0; S_ZERO = 1152; S_GUL = 1280; S_HB = 3584
S_WQ = 4608; S_WUK = 41472; S_GATE = 74240; S_UP = 115712; S_DOWN = 4608
CKS = 1056
P_CK = 0; P_QB = 135168; P_PB = 152576; P_PF = 154752; P_MX = 158848; P_FR = 159424
P_WUV = 0; P_WO = 32768; P_WO9 = 159744; P_TB = 73728
LDS = 163840

SCALE2 = 1.4426950408889634 / (128 ** 0.5)
import struct
def f2u(x): return struct.unpack("<I", struct.pack("<f", x))[0]

class Regs:
    def __init__(self, start): self.n = start; self.d = {}
    def __call__(self, name, cnt=1, align=1):
        if cnt > 1: align = max(align, 2)
        self.n = (self.n + align - 1) // align * align
        self.d[name] = self.n; self.n += cnt
        assert self.n <= 128, f"out of arch VGPRs at {name}"
        return self.d[name]

def vr(b, n=1): return f"v{b}" if n == 1 else f"v[{b}:{b+n-1}]"
def ar(b, n=1): return f"a{b}" if n == 1 else f"a[{b}:{b+n-1}]"

def generate(**kw):
    cfg = dict(DEF); cfg.update(kw)
    NT = cfg["nt"]
    A = Asm()
    stamp_n = [0]
    def stamp(i):
        if not cfg["stamps"]: return
        A("s_memrealtime s[42:43]"); A("s_waitcnt lgkmcnt(0)"); A(f"v_writelane_b32 v0, s42, {i}")
    def srd(b, p, size):
        A(f"s_mov_b32 s{b}, s{p}"); A(f"s_mov_b32 s{b+1}, s{p+1}"); A(f"s_mov_b32 s{b+2}, {size}"); A(f"s_mov_b32 s{b+3}, 0x20000")
    def dma(voff, srdb, soff, m0, flags=NT):
        A(f"s_mov_b32 m0, {m0}")
        A(f"buffer_load_dwordx4 v{voff}, s[{srdb}:{srdb+3}], {soff} offen {flags} lds")
    def check_f32(bad, regs, first=True):
        for gi, b in enumerate(regs):
            for j in range(4):
                if first and gi == 0 and j == 0: A(f"v_xor_b32 v{bad}, s8, v{b}")
                else: A(f"v_bitop3_b32 v{bad}, v{b+j}, s{8+j}, v{bad} bitop3:0xbe")
    def poll(loads, check, base_exec="-1", wqm=False, first_wait=0, between=None, sid=None, alt=None, deferred=None):
        L = A.lab("poll"); D = A.lab("got"); K0 = cfg["k0"]
        if alt: A(f"s_mov_b32 {alt[0]}, {alt[1]}")
        if base_exec != "-1": A(f"s_mov_b64 exec, {base_exec}")
        loads()
        if between is not None:
            if base_exec != "-1": A("s_mov_b64 exec, -1")
            between()
            if base_exec != "-1": A(f"s_mov_b64 exec, {base_exec}")
        A(f"s_waitcnt vmcnt({first_wait})")
        if sid is not None: stamp(16 + sid)
        check()
        if wqm: A("s_wqm_b64 vcc, vcc")
        A("s_mov_b32 s14, 0")
        A("s_and_b64 exec, exec, vcc")
        A(f"s_cbranch_scc0 {D}")
        A(f"{L}:")
        if cfg["sleep"]: A(f"s_sleep {cfg['sleep']}")
        if alt:
            A("s_bitcmp1_b32 s14, 0"); A(f"s_cselect_b32 {alt[0]}, {alt[2]}, {alt[1]}")
            A(f"s_cmp_lt_u32 s14, {K0}"); A(f"s_cselect_b32 {alt[0]}, {alt[1]}, {alt[0]}")
        if deferred:
            sk = A.lab("sk"); A(f"s_cmp_lg_u32 s14, {K0}"); A(f"s_cbranch_scc1 {sk}")
            A("s_mov_b64 s[86:87], exec"); deferred(); A("s_mov_b64 exec, s[86:87]"); A(f"{sk}:")
        loads()
        A("s_waitcnt vmcnt(0)")
        check()
        if wqm: A("s_wqm_b64 vcc, vcc")
        A("s_add_u32 s14, s14, 1"); A(f"s_cmp_lt_u32 s14, {cfg['spin_cap']}"); A(f"s_cbranch_scc0 {D}")
        A("s_and_b64 exec, exec, vcc")
        A(f"s_cbranch_scc1 {L}")
        A(f"{D}:")
        if deferred:
            sk = A.lab("sk"); A(f"s_cmp_gt_u32 s14, {K0}"); A(f"s_cbranch_scc1 {sk}"); deferred(); A(f"{sk}:")
        A("s_mov_b64 exec, -1")
        if sid is not None and cfg["stamps"]: A("s_add_u32 s14, s14, 1"); A(f"v_writelane_b32 v0, s14, {24 + sid}")
    def go_addr(dst, wgexpr):
        A(f"s_lshl_b32 {dst}, {wgexpr}, 7"); A(f"s_add_u32 {dst}, {dst}, {WS_GO}")
    def go_write(val, vt, voff):
        sk = A.lab("sk"); A("s_cmp_lg_u32 s3, 0"); A(f"s_cbranch_scc1 {sk}")
        go_addr("s12", "s2"); A(f"v_mov_b32 v{vt}, {val}")
        A("s_mov_b32 exec_hi, 0"); A(f"buffer_store_dword v{vt}, v{voff}, s[44:47], s12 offen"); A("s_mov_b64 exec, -1")
        A(f"{sk}:")
    def go_wait(vt, voff):
        L = A.lab("go"); D = A.lab("gone")
        A("s_xor_b32 s13, s2, 128"); go_addr("s13", "s13"); A("s_mov_b32 s14, 0"); A("s_mov_b64 exec, 1")
        A(f"{L}:")
        A(f"buffer_load_dword v{vt}, v{voff}, s[44:47], s13 offen sc1"); A("s_waitcnt vmcnt(0)")
        A(f"v_cmp_ne_u32 vcc, s6, v{vt}"); A("s_add_u32 s14, s14, 1"); A(f"s_cmp_ge_u32 s14, {cfg['gate_cap']}"); A(f"s_cbranch_scc1 {D}")
        A("s_cmp_lg_u64 vcc, 0"); A(f"s_cbranch_scc1 {L}")
        A(f"{D}:"); A("s_mov_b64 exec, -1")
    def store2(v, voff, soff, off, dist):
        o = f" offset:{off}" if off else ""
        if cfg["local"]:
            A(f"s_add_u32 s15, {soff}, {dist}"); A(f"buffer_store_dword v{v}, v{voff}, s[44:47], s15 offen{o}")
        A(f"buffer_store_dword v{v}, v{voff}, s[44:47], {soff} offen{o} sc1")
    def allreduce_groups(v, t, op):
        A(f"v_mov_b32 v{t}, v{v}"); A(f"v_permlane16_swap_b32 v{v}, v{t}"); A(f"{op} v{v}, v{v}, v{t}")
        A(f"v_mov_b32 v{t}, v{v}"); A(f"v_permlane32_swap_b32 v{v}, v{t}"); A(f"{op} v{v}, v{v}, v{t}")
    def allreduce_row(v, op):
        for r in (8, 4, 2, 1): A(f"{op}_dpp v{v}, v{v}, v{v} row_ror:{r} row_mask:0xf bank_mask:0xf")
    def select4(d, srcs):
        for g in (1, 2, 3): A(f"v_mov_b32_dpp v{d}, v{srcs[g]} quad_perm:[0,1,2,3] row_mask:{hex(1<<g)} bank_mask:0xf")
    def write_stamps():
        if not cfg["stamps"]: return
        if cfg.get("expose"):
            wg, wv, idx = cfg["expose"]; D = A.lab("nex"); L = A.lab("ex")
            A(f"s_cmp_lg_u32 s2, {wg}"); A(f"s_cbranch_scc1 {D}"); A(f"s_cmp_lg_u32 s3, {wv}"); A(f"s_cbranch_scc1 {D}")
            A(f"v_readlane_b32 s12, v0, {idx}"); A("v_readlane_b32 s13, v0, 0"); A("s_nop 4"); A("s_sub_u32 s12, s12, s13"); A("s_mul_i32 s12, s12, 10")
            A("s_min_u32 s12, s12, 100000")
            A("s_memrealtime s[86:87]"); A("s_waitcnt lgkmcnt(0)")
            A(f"{L}:"); A("s_memrealtime s[42:43]"); A("s_waitcnt lgkmcnt(0)"); A("s_sub_u32 s13, s42, s86"); A("s_cmp_lt_u32 s13, s12"); A(f"s_cbranch_scc1 {L}")
            A(f"{D}:")
            return
        A("s_mov_b64 exec, -1"); A("s_lshl_b32 s12, s2, 3"); A("s_add_u32 s12, s12, s3"); A("s_lshl_b32 s12, s12, 8"); A(f"s_add_u32 s12, s12, {WS_ST}")
        A("v_lshlrev_b32 v4, 2, v1")
        A("buffer_store_dword v0, v4, s[44:47], s12 offen")

    A(f"{NAME}:")
    if cfg["stamps"]:
        A("s_memrealtime s[86:87]")
    A("s_cmp_ge_u32 s2, 256"); A("s_cbranch_scc1 L_exit")
    A("s_load_dwordx16 s[16:31], s[0:1], 0"); A("s_load_dwordx8 s[32:39], s[0:1], 64"); A("s_load_dwordx2 s[40:41], s[0:1], 96")
    A("v_lshrrev_b32 v1, 6, v0"); A("s_and_b32 s4, s2, 7"); A("v_readfirstlane_b32 s3, v1")
    A("s_lshr_b32 s5, s2, 3"); A("s_and_b32 s5, s5, 15")
    A("v_and_b32 v1, 63, v0")
    A("v_and_b32 v2, 15, v1")
    A("v_lshrrev_b32 v3, 4, v1")
    LANE, N, G = 1, 2, 3
    if cfg["stamps"]: A("s_waitcnt lgkmcnt(0)"); A("v_mov_b32 v0, 0"); A("v_writelane_b32 v0, s86, 0")
    A("s_lshr_b32 s72, s5, 2"); A("s_lshl_b32 s73, s4, 2"); A("s_add_u32 s72, s72, s73")
    A("s_and_b32 s73, s5, 3")
    A("s_cmp_ge_u32 s2, 128"); A("s_cbranch_scc1 L_P")

    def common_regs(R):
        R("tq"); R("t0"); R("t1"); R("offq"); R("trq"); R("offd")
        R("trb", 4); R("bad"); R("tagb")
    def addr_q_style(R):
        r = R.d
        A("s_and_b32 s12, s3, 1"); A("s_lshl_b32 s12, s12, 2")
        A(f"v_add_u32 v{r['t0']}, s12, v{G}"); A(f"v_lshlrev_b32 v{r['t0']}, 1, v{r['t0']}")
        A(f"v_xor_b32 v{r['t0']}, v{r['t0']}, v{N}"); A(f"v_lshlrev_b32 v{r['t0']}, 4, v{r['t0']}")
        A(f"v_lshl_add_u32 v{r['offq']}, v{G}, 13, v{r['t0']}")
    def addr_trq(R, base, sh=1):
        r = R.d
        A(f"v_lshrrev_b32 v{r['t0']}, 2, v{N}")
        A(f"v_and_b32 v{r['t1']}, 1, v{G}"); A(f"v_lshl_add_u32 v{r['t1']}, v{r['t1']}, 2, v{r['t0']}")
        A(f"v_lshlrev_b32 v{r['t1']}, 1, v{r['t1']}")
        A(f"v_bfe_u32 v{r['tq']}, v{N}, 1, 1"); A("s_and_b32 s12, s3, 3" if sh == 2 else "s_mov_b32 s12, s3"); A(f"s_lshl_b32 s12, s12, {sh}"); A(f"v_add_u32 v{r['tq']}, s12, v{r['tq']}")
        A(f"v_xor_b32 v{r['t1']}, v{r['t1']}, v{r['tq']}"); A(f"v_lshlrev_b32 v{r['t1']}, 4, v{r['t1']}")
        A(f"v_lshl_add_u32 v{r['t1']}, v{r['t0']}, 8, v{r['t1']}")
        A(f"v_lshl_add_u32 v{r['t1']}, v{G}, 10, v{r['t1']}")
        A(f"v_and_b32 v{r['t0']}, 1, v{N}"); A(f"v_lshl_add_u32 v{r['trq']}, v{r['t0']}, 3, v{r['t1']}")
        if base: A(f"v_add_u32 v{r['trq']}, {base}, v{r['trq']}")
    def addr_lc_src(dst, R, stride):
        r = R.d
        A(f"v_lshrrev_b32 v{r['t0']}, 3, v{LANE}"); A(f"v_and_b32 v{r['t1']}, 6, v{r['t0']}")
        A(f"v_and_b32 v{dst}, 7, v{LANE}"); A(f"v_xor_b32 v{dst}, v{dst}, v{r['t1']}"); A(f"v_lshlrev_b32 v{dst}, 4, v{dst}")
        A(f"v_mul_u32_u24 v{r['t0']}, {stride}, v{r['t0']}"); A(f"v_add_u32 v{dst}, v{dst}, v{r['t0']}")
    def addr_lc_tr(R, trb, trc=None):
        r = R.d
        A(f"v_lshrrev_b32 v{r['t0']}, 2, v{N}")
        A(f"v_bfe_u32 v{r['tq']}, v{N}, 1, 1")
        if trc is not None:
            A(f"v_and_b32 v{r['t1']}, 6, v{r['t0']}"); A(f"v_xor_b32 v{r['t1']}, v{r['t1']}, v{r['tq']}")
            A(f"v_lshlrev_b32 v{r['t1']}, 4, v{r['t1']}"); A(f"v_lshl_add_u32 v{r['t1']}, v{r['t0']}, 7, v{r['t1']}")
            A(f"v_and_b32 v{trc}, 1, v{N}"); A(f"v_lshl_add_u32 v{trc}, v{trc}, 3, v{r['t1']}")
            A(f"v_add_u32 v{trc}, 4096, v{trc}")
        A(f"v_and_b32 v{r['t1']}, 1, v{G}"); A(f"v_lshl_add_u32 v{r['t0']}, v{r['t1']}, 2, v{r['t0']}")
        A(f"v_and_b32 v{r['t1']}, 6, v{r['t0']}"); A(f"v_xor_b32 v{r['t1']}, v{r['t1']}, v{r['tq']}")
        A(f"v_lshlrev_b32 v{r['t1']}, 4, v{r['t1']}"); A(f"v_lshl_add_u32 v{r['t1']}, v{r['t0']}, 7, v{r['t1']}")
        A(f"v_lshrrev_b32 v{r['t0']}, 1, v{G}"); A(f"v_lshl_add_u32 v{r['t1']}, v{r['t0']}, 10, v{r['t1']}")
        A(f"v_and_b32 v{trb}, 1, v{N}"); A(f"v_lshl_add_u32 v{trb}, v{trb}, 3, v{r['t1']}")
    def tags(R):
        r = R.d
        A(f"s_add_u32 s6, s6, {hex(TAGK)}")
        for j in range(4): A(f"s_bfe_u32 s{8+j}, s6, {hex((8 << 16) | (8*j))}")
        A(f"v_and_b32 v{r['tagb']}, 3, v{LANE}"); A(f"v_lshlrev_b32 v{r['tagb']}, 3, v{r['tagb']}")
        A(f"v_lshrrev_b32 v{r['tagb']}, v{r['tagb']}, s6"); A(f"v_and_b32 v{r['tagb']}, 0xff, v{r['tagb']}")
        A("s_mov_b32 s7, 0xffffff00")
    def tag_dword(v, R): A(f"v_and_or_b32 v{v}, v{v}, s7, v{R.d['tagb']}")
    def code_prefetch(lab0, lab1, dst, t):
        if not cfg["prefetch_code"]: return
        D = A.lab("npf"); PC = A.lab("pc")
        A("s_cmp_lg_u32 s3, 7"); A(f"s_cbranch_scc1 {D}")
        A("s_getpc_b64 s[12:13]"); A(f"{PC}:")
        A(f"s_add_u32 s12, s12, {lab0}-{PC}"); A("s_addc_u32 s13, s13, 0")
        A("s_lshl_b32 s15, s5, 10"); A(f"v_lshl_add_u32 v{t}, v{LANE}, 4, s15")
        A(f"v_min_u32 v{t}, {lab1}-{lab0}-16, v{t}")
        A(f"global_load_dwordx4 v[{dst}:{dst+3}], v{t}, s[12:13]")
        A(f"{D}:")

    R = Regs(4); common_regs(R); r = R.d
    R("offk"); R("offg"); R("trc", 4); R("xa"); R("xg"); R("xz")
    R("acc"); R("acc2")
    R("fa", 8, 4); R("fb", 24, 4); R("d", 32, 4); R("q", 8, 4); R("qa", 4, 4); R("kf", 16, 4)
    R("sa"); R("sb"); R("sc"); R("hfa"); R("hfw")
    r["x"] = r["kf"]; r["xf"] = r["kf"] + 5
    d = r['d']
    addr_q_style(R)
    A(f"v_lshlrev_b32 v{r['sa']}, 2, v{LANE}")
    A("s_waitcnt lgkmcnt(0)")
    if cfg["ws_base"]: A(f"s_add_u32 s40, s40, {cfg['ws_base']}"); A("s_addc_u32 s41, s41, 0")
    A("s_load_dword s6, s[40:41], 0")
    srd(48, 16, 1152); srd(52, 20, 576*8192)
    code_prefetch("L_S0", "L_S1", r['d'], r['t0'])
    A("L_S0:")
    A("s_mul_i32 s74, s73, 144"); A("s_lshl_b32 s12, s3, 2"); A("s_add_u32 s74, s74, s12"); A("s_lshl_b32 s74, s74, 13")
    A("s_lshl_b32 s75, s72, 8"); A("s_add_u32 s74, s74, s75")
    A("s_lshl_b32 s76, s3, 10")
    def wq_dma(i):
        A(f"s_add_u32 s12, s74, {i*32*8192}"); A(f"s_add_u32 s13, s76, {S_WQ + i*8192}")
        dma(r['offq'], 52, "s12", "s13")
    A("s_lshl_b32 s78, s72, 11")
    def hf_addr():
        A(f"v_and_b32 v{r['t0']}, 31, v{LANE}"); A(f"v_min_u32 v{r['t0']}, 17, v{r['t0']}"); A(f"v_lshrrev_b32 v{r['t1']}, 5, v{LANE}")
        A(f"v_lshlrev_b32 v{r['hfa']}, 4, v{r['t0']}"); A(f"v_lshl_add_u32 v{r['hfw']}, v{r['t1']}, 3, v{r['hfa']}")
        A(f"v_mul_u32_u24 v{r['t1']}, 4608, v{r['t1']}"); A(f"v_add_u32 v{r['hfa']}, v{r['hfa']}, v{r['t1']}")
        A(f"v_add_u32 v{r['t1']}, {2304 - 144}, v{r['hfa']}"); A(f"v_cmp_lt_u32 vcc, 8, v{r['t0']}"); A(f"v_cndmask_b32 v{r['hfa']}, v{r['hfa']}, v{r['t1']}, vcc")
        A("s_lshl_b32 s88, s4, 4"); A("s_lshl_b32 s12, s3, 1"); A("s_add_u32 s88, s88, s12"); A("s_mul_i32 s88, s88, 4608")
        A("s_mul_i32 s12, s5, 144"); A("s_add_u32 s88, s88, s12"); A(f"s_add_u32 s88, s88, {WS_GU}")
        A("s_mul_i32 s12, s3, 288"); A(f"s_add_u32 s12, s12, {S_GUL}"); A(f"v_add_u32 v{r['hfw']}, s12, v{r['hfw']}")
    prew = cfg["local"] and cfg["touch"]
    def gu_prewrite():
        if not prew: return
        A("s_lshl_b32 s12, s4, 4"); A("s_add_u32 s12, s12, s5"); A("s_mul_i32 s12, s12, 4608"); A(f"s_add_u32 s12, s12, {WS_GUL}")
        A("s_lshl_b32 s13, s3, 8"); A("s_add_u32 s13, s13, s12")
        A(f"v_xor_b32 v{r['t0']}, 0xff, v{r['tagb']}")
        A(f"buffer_store_dword v{r['t0']}, v{r['sa']}, s[44:47], s13 offen"); A(f"buffer_store_dword v{r['t0']}, v{r['sa']}, s[44:47], s13 offen offset:2304")
        sk = A.lab("sk"); A("s_cmp_ge_u32 s3, 2"); A(f"s_cbranch_scc1 {sk}")
        A("s_mul_i32 s13, s3, 2304"); A("s_add_u32 s13, s13, s12"); A(f"buffer_store_dword v{r['t0']}, v{r['sa']}, s[44:47], s13 offen offset:2048")
        A(f"{sk}:")
    A("s_cmp_ge_u32 s3, 4"); A("s_cbranch_scc1 L_S_hi")
    for i in range(5): A(f"buffer_load_dword v{r['x']+i}, v{r['sa']}, s[48:51], 0 offen offset:{256*i}")
    for i in range(5): wq_dma(i)
    if cfg["wq_bar"]: A("s_barrier")
    srd(44, 40, WS_SIZE)
    if cfg["gate_p"]: go_write("0", r['t0'], r['sa'])
    hf_addr()
    addr_trq(R, S_WQ, 2)
    if cfg["gate_p"]:
        sk = A.lab("sk"); jn = A.lab("jn"); A("s_cmp_lg_u32 s3, 0"); A(f"s_cbranch_scc1 {sk}"); A("s_waitcnt vmcnt(6)"); A(f"s_branch {jn}"); A(f"{sk}:"); A("s_waitcnt vmcnt(5)"); A(f"{jn}:")
    else: A("s_waitcnt vmcnt(5)")
    xf = r['xf']
    for i in range(5):
        A(f"v_lshlrev_b32 v{xf+2*i}, 16, v{r['x']+i}"); A(f"v_and_b32 v{xf+2*i+1}, 0xffff0000, v{r['x']+i}")
    A(f"v_add_f32 v{r['acc']}, v{xf}, v{xf+1}")
    for i in range(2, 10): A(f"v_add_f32 v{r['acc']}, v{r['acc']}, v{xf+i}")
    allreduce_row(r['acc'], "v_add_f32"); allreduce_groups(r['acc'], r['t0'], "v_add_f32")
    A(f"v_mul_f32 v{r['acc']}, {hex(f2u(1.0/576))}, v{r['acc']}")
    for i in range(10): A(f"v_sub_f32 v{xf+i}, v{xf+i}, v{r['acc']}")
    A(f"v_cmp_gt_u32 vcc, 32, v{LANE}")
    A(f"v_cndmask_b32 v{xf+8}, 0, v{xf+8}, vcc"); A(f"v_cndmask_b32 v{xf+9}, 0, v{xf+9}, vcc")
    A(f"v_mul_f32 v{r['acc2']}, v{xf}, v{xf}")
    for i in range(1, 10): A(f"v_fmac_f32 v{r['acc2']}, v{xf+i}, v{xf+i}")
    allreduce_row(r['acc2'], "v_add_f32"); allreduce_groups(r['acc2'], r['t0'], "v_add_f32")
    A(f"v_mov_b32 v{r['t0']}, {hex(f2u(1e-5))}")
    A(f"v_fmac_f32 v{r['t0']}, {hex(f2u(1.0/576))}, v{r['acc2']}")
    A(f"v_rsq_f32 v{r['t0']}, v{r['t0']}")
    for i in range(10): A(f"v_mul_f32 v{xf+i}, v{xf+i}, v{r['t0']}")
    for i in range(5): A(f"v_cvt_pk_bf16_f32 v{r['x']+i}, v{xf+2*i}, v{xf+2*i+1}")
    for i in range(5): A(f"ds_write_b32 v{r['sa']}, v{r['x']+i} offset:{S_XN + 256*i}")
    A("s_waitcnt lgkmcnt(0)")
    tags(R)
    A("s_mul_i32 s12, s73, 288"); A(f"v_lshl_add_u32 v{r['xa']}, v{G}, 3, s12")
    for q in range(9): A(f"ds_read_b64 {ar(2*q, 2)}, v{r['xa']} offset:{S_XN + 32*q}")
    A(f"v_xor_b32 v{r['t0']}, 32, v{r['trq']}")
    A("s_lshl_b32 s12, s73, 9"); A("s_add_u32 s12, s12, s78"); A("s_lshl_b32 s13, s3, 7"); A("s_add_u32 s12, s12, s13")
    A(f"s_add_u32 s79, s12, {WS_QP}")
    if prew:
        A(f"s_add_u32 s13, s12, {WS_QPL}"); A(f"v_xor_b32 v{r['t1']}, 0xff, v{r['tagb']}")
        A("s_mov_b32 exec_hi, 0"); A(f"buffer_store_dword v{r['t1']}, v{r['sa']}, s[44:47], s13 offen"); A("s_mov_b64 exec, -1")
    stamp(1)
    A("s_waitcnt vmcnt(0)"); A("s_barrier")
    stamp(2)
    if cfg["gate_p"]: go_write("s6", r['t1'], r['sa'])
    for q in range(9):
        A(f"ds_read_b64_tr_b16 {ar(20+2*q, 2)}, v{r['trq']} offset:{4096*q}")
        A(f"ds_read_b64_tr_b16 {ar(40+2*q, 2)}, v{r['t0']} offset:{4096*q}")
    for v in range(4):
        A(f"s_waitcnt lgkmcnt({14-4*v})")
        for t in range(2): A(f"v_mfma_f32_16x16x32_bf16 {vr(d+4*t,4)}, {ar(4*v,4)}, {ar(20+20*t+4*v,4)}, {'0' if v == 0 else vr(d+4*t,4)}")
    A("s_waitcnt lgkmcnt(0)")
    for t in range(2): A(f"v_mfma_f32_16x16x16_bf16 {vr(d+8+4*t,4)}, {ar(16,2)}, {ar(36+20*t,2)}, 0")
    A(f"v_add_f32 v{d}, v{d}, v{d+8}"); A(f"v_add_f32 v{d+4}, v{d+4}, v{d+12}")
    A(f"v_mov_b32_dpp v{d}, v{d+4} quad_perm:[0,1,2,3] row_mask:0x2 bank_mask:0xf")
    tag_dword(d, R)
    A("s_mov_b32 exec_hi, 0")
    store2(d, r['sa'], "s79", 0, WS_QPL - WS_QP)
    A("s_mov_b64 exec, -1")
    stamp(3)
    srd(60, 30, 576*9216); srd(64, 32, 576*9216); srd(68, 34, 4608*1152)
    addr_lc_src(r['offg'], R, 9216); addr_lc_src(r['offd'], R, 1152)
    addr_lc_tr(R, r['trb'], r['trc'])
    A("s_barrier")
    A("s_branch L_S_ffn")
    A("L_S_hi:")
    for i in range(4): wq_dma(i)
    srd(56, 22, 512*8192); srd(44, 40, WS_SIZE)
    A(f"v_and_b32 v{r['t0']}, 3, v{N}"); A(f"v_lshlrev_b32 v{r['t0']}, 5, v{r['t0']}")
    A(f"v_lshrrev_b32 v{r['t1']}, 2, v{N}"); A(f"v_lshl_add_u32 v{r['t0']}, v{r['t1']}, 9, v{r['t0']}")
    A(f"v_lshl_add_u32 v{r['sb']}, v{G}, 7, v{r['t0']}")
    A(f"s_add_u32 s79, s78, {WS_QP}"); A(f"s_add_u32 s84, s78, {WS_QPL}"); A("s_mov_b32 s85, s79")
    hf_addr()
    A(f"v_lshlrev_b32 v{r['t0']}, 2, v{G}"); A(f"v_xor_b32 v{r['t0']}, v{r['t0']}, v{N}"); A(f"v_lshlrev_b32 v{r['t0']}, 4, v{r['t0']}")
    A(f"v_lshl_add_u32 v{r['offk']}, v{G}, 13, v{r['t0']}")
    A("s_sub_u32 s80, s3, 4")
    A("s_lshl_b32 s74, s73, 7"); A("s_lshl_b32 s12, s80, 5"); A("s_add_u32 s74, s74, s12"); A("s_lshl_b32 s74, s74, 13"); A("s_add_u32 s74, s74, s75")
    A("s_lshl_b32 s77, s80, 13")
    nk0 = cfg["wuk_pre"]
    def wuk_dma(i):
        A(f"s_add_u32 s12, s74, {i*4*8192}"); A(f"s_add_u32 s13, s77, {S_WUK + i*1024}")
        dma(r['offk'], 56, "s12", "s13")
        if i < 7: A(f"v_xor_b32 v{r['offk']}, {(((i%4) ^ ((i+1)%4)) << 4)}, v{r['offk']}")
    if cfg["wq_bar"]: A("s_barrier")
    for i in range(nk0): wuk_dma(i)
    srd(60, 30, 576*9216); srd(64, 32, 576*9216); srd(68, 34, 4608*1152)
    stamp(1)
    A(f"s_waitcnt vmcnt({nk0})"); A("s_barrier")
    stamp(2)
    for i in range(nk0, 8): wuk_dma(i)
    addr_lc_src(r['offg'], R, 9216); addr_lc_src(r['offd'], R, 1152)
    addr_lc_tr(R, r['trb'], r['trc'])
    A("s_waitcnt lgkmcnt(0)")
    tags(R)
    def ld():
        A(f"buffer_load_dwordx4 {vr(r['q'],4)}, v{r['sb']}, s[44:47], s79 offen sc1")
        A(f"buffer_load_dwordx4 {vr(r['q']+4,4)}, v{r['sb']}, s[44:47], s79 offen offset:16 sc1")
    def ck():
        check_f32(r['bad'], [r['q'], r['q']+4]); A(f"v_and_b32 v{r['bad']}, 0xff, v{r['bad']}"); A(f"v_cmp_ne_u32 vcc, 0, v{r['bad']}")
    A(f"v_and_b32 v{r['t0']}, 3, v{N}"); A(f"v_xor_b32 v{r['t0']}, v{r['t0']}, v{G}"); A(f"v_lshrrev_b32 v{r['t1']}, 2, v{N}")
    A(f"v_lshl_add_u32 v{r['t0']}, v{r['t0']}, 2, v{r['t1']}"); A(f"v_lshlrev_b32 v{r['t0']}, 4, v{r['t0']}")
    A(f"v_lshl_add_u32 v{r['t0']}, v{N}, 8, v{r['t0']}"); A(f"v_add_u32 v{r['t0']}, s77, v{r['t0']}")
    A("s_waitcnt vmcnt(0)")
    stamp(3)
    def bt():
        for v in range(4):
            for t in range(2): A(f"ds_read_b128 {ar(16*t+4*v,4)}, v{r['t0']} offset:{S_WUK + 4096*t}")
            if v < 3: A(f"v_xor_b32 v{r['t0']}, {((v ^ (v+1)) << 4)}, v{r['t0']}")
    poll(ld, ck, between=bt, sid=0, alt=("s79", "s84", "s85") if cfg["local"] else None)
    stamp(4)
    if cfg["hints"]:
        sk = A.lab("sk"); A("s_lshl_b32 s12, s73, 3"); A("s_add_u32 s12, s12, s3"); A("s_cmp_lg_u32 s12, 31"); A(f"s_cbranch_scc1 {sk}")
        A(f"v_lshlrev_b32 v{r['t0']}, 12, v{LANE}"); A(f"v_mov_b32 v{r['t1']}, s6"); A("s_lshl_b32 s12, s72, 7"); A(f"s_add_u32 s12, s12, {WS_HINT}")
        A("s_mov_b64 exec, 0xff"); A(f"buffer_store_dword v{r['t1']}, v{r['t0']}, s[44:47], s12 offen sc1"); A("s_mov_b64 exec, -1")
        A(f"{sk}:")
    for e in range(8): A(f"v_and_b32 v{r['q']+e}, s7, v{r['q']+e}")
    for e in range(4): A(f"v_cvt_pk_bf16_f32 v{r['qa']+e}, v{r['q']+2*e}, v{r['q']+2*e+1}")
    A("s_waitcnt lgkmcnt(0)")
    for t in range(2):
        for v in range(4): A(f"v_mfma_f32_16x16x32_bf16 {vr(d+16*t+4*v,4)}, {vr(r['qa'],4)}, {ar(16*t+4*v,4)}, 0")
    A("s_lshl_b32 s12, s73, 9"); A("s_add_u32 s12, s12, s78"); A("s_lshl_b32 s13, s80, 7"); A("s_add_u32 s12, s12, s13"); A(f"s_add_u32 s12, s12, {WS_QA}")
    for t in range(2):
        b_ = d + 16*t
        A(f"v_add_f32 v{b_}, v{b_}, v{b_+5}"); A(f"v_add_f32 v{b_+10}, v{b_+10}, v{b_+15}"); A(f"v_add_f32 v{b_}, v{b_}, v{b_+10}")
    A(f"v_permlane16_swap_b32 v{d}, v{d+16}"); A(f"v_add_f32 v{d}, v{d}, v{d+16}")
    A(f"v_mov_b32 v{r['t0']}, v{d}"); A(f"v_permlane32_swap_b32 v{d}, v{r['t0']}"); A(f"v_add_f32 v{d}, v{d}, v{r['t0']}")
    tag_dword(d, R)
    A("s_mov_b32 exec_hi, 0")
    for q_ in range(cfg["qa_rep"]):
        A(f"buffer_store_dword v{d}, v{r['sa']}, s[44:47], s12 offen sc1")
        if q_ + 1 < cfg["qa_rep"]: A("s_add_u32 s12, s12, 0x10000")
    A("s_mov_b64 exec, -1")
    A("s_barrier")
    A("L_S_ffn:")
    stamp(5)
    gu_prewrite()
    if cfg["gate_s"]: go_wait(r['t0'], r['sa'])
    stamp(13)
    A("s_mul_i32 s74, s5, 36*9216"); A("s_mul_i32 s12, s4, 1152"); A("s_add_u32 s74, s74, s12")
    A("s_and_b32 s80, s3, 3"); A("s_lshr_b32 s81, s3, 2")
    A("s_mul_i32 s82, s81, 41472"); A(f"s_add_u32 s82, s82, {S_GATE + 8*4608}")
    up9 = A.lab("up9"); j9 = A.lab("j9")
    A("s_mul_i32 s12, s80, 8*9216"); A("s_add_u32 s12, s12, s74"); A("s_add_u32 s12, s12, 1024")
    A("s_lshl_b32 s13, s80, 10"); A("s_add_u32 s13, s13, s82")
    A(f"s_add_u32 s15, s74, {32*9216 + 1024}"); A("s_add_u32 s83, s82, 4096")
    A("s_cmp_lg_u32 s81, 0"); A(f"s_cbranch_scc1 {up9}")
    for sb_, nxt in ((60, j9), (64, None)):
        sk = A.lab("sk")
        dma(r['offg'], sb_, "s12", "s13")
        A("s_cmp_lg_u32 s80, 0"); A(f"s_cbranch_scc1 {sk}")
        A("s_mov_b32 exec_hi, 0"); dma(r['offg'], sb_, "s15", "s83"); A("s_mov_b64 exec, -1")
        A(f"{sk}:")
        if nxt: A(f"s_branch {nxt}"); A(f"{up9}:")
    A(f"{j9}:")
    A("s_lshl_b32 s12, s3, 7"); A("s_add_u32 s74, s74, s12")
    A("s_mul_i32 s76, s3, 4608")
    cnt = 0
    for mat, (sb_, base) in enumerate(((60, S_GATE), (64, S_UP))):
        for b in range(5):
            if cfg["s_win"] is not None and cnt >= cfg["s_win"]: A(f"s_waitcnt vmcnt({cfg['s_win']-1})")
            A(f"s_add_u32 s12, s74, {b*8*9216}"); A(f"s_add_u32 s13, s76, {base + b*1024}")
            if b == 4: A("s_mov_b32 exec_hi, 0")
            dma(r['offg'], sb_, "s12", "s13")
            if b == 4: A("s_mov_b64 exec, -1")
            cnt += 1
    A("s_mul_i32 s12, s5, 72"); A(f"v_lshl_add_u32 v{r['xg']}, v{G}, 3, s12")
    A(f"v_mov_b32 v{r['xz']}, {S_ZERO - S_XN}"); A("s_add_u32 s12, s12, 64"); A(f"v_mov_b32 v{r['t0']}, s12")
    A(f"v_cmp_gt_u32 vcc, 16, v{LANE}"); A(f"v_cndmask_b32 v{r['xz']}, v{r['xz']}, v{r['t0']}, vcc")
    A(f"ds_read_b64 {vr(r['fa'],2)}, v{r['xg']} offset:{S_XN}"); A(f"ds_read_b64 {vr(r['fa']+2,2)}, v{r['xg']} offset:{S_XN+32}")
    A(f"ds_read_b64 {vr(r['fa']+4,2)}, v{r['xz']} offset:{S_XN}")
    A("s_lshl_b32 s79, s4, 4"); A("s_add_u32 s79, s79, s5"); A("s_mul_i32 s79, s79, 4608"); A(f"s_add_u32 s79, s79, {WS_GU}")
    A(f"s_add_u32 s77, s76, {S_GATE}")
    for b_ in (r['trb'], r['trc']):
        A(f"v_add_u32 v{b_}, s77, v{b_}")
        for t in (1, 2, 3): A(f"v_xor_b32 v{b_+t}, {t << 5}, v{b_}")
    fb = r['fb']; fa = r['fa']
    def lc_column(base, extra_k):
        for t in range(4):
            A(f"ds_read_b64_tr_b16 {vr(fb+4*t,2)}, v{r['trb']+t} offset:{base}")
            A(f"ds_read_b64_tr_b16 {vr(fb+4*t+2,2)}, v{r['trb']+t} offset:{base+2048}")
            if extra_k: A(f"ds_read_b64_tr_b16 {vr(fb+16+2*t,2)}, v{r['trc']+t} offset:{base}")
        per = 3 if extra_k else 2
        for t in range(4):
            A(f"s_waitcnt lgkmcnt({per*(3-t)})")
            A(f"v_mfma_f32_16x16x32_bf16 {vr(d+4*t,4)}, {vr(fa,4)}, {vr(fb+4*t,4)}, 0")
        if extra_k:
            for t in range(4): A(f"v_mfma_f32_16x16x16_bf16 {vr(d+4*t,4)}, {vr(fa+4,2)}, {vr(fb+16+2*t,2)}, {vr(d+4*t,4)}")
    def lc_pair9(sbase, spair, ta, tb):
        A(f"s_lshl_b32 s12, {spair}, 6"); A(f"s_sub_u32 s13, {sbase}, s77")
        for t in range(2):
            A(f"v_xor_b32 v{ta}, s12, v{r['trb']+t}"); A(f"v_add_u32 v{ta}, s13, v{ta}")
            A(f"v_xor_b32 v{tb}, s12, v{r['trc']+t}"); A(f"v_add_u32 v{tb}, s13, v{tb}")
            A(f"ds_read_b64_tr_b16 {vr(fb+4*t,2)}, v{ta}"); A(f"ds_read_b64_tr_b16 {vr(fb+4*t+2,2)}, v{ta} offset:2048")
            A(f"ds_read_b64_tr_b16 {vr(fb+16+2*t,2)}, v{tb}")
        A("s_waitcnt lgkmcnt(0)")
        for t in range(2): A(f"v_mfma_f32_16x16x32_bf16 {vr(d+4*t,4)}, {vr(fa,4)}, {vr(fb+4*t,4)}, 0")
        for t in range(2): A(f"v_mfma_f32_16x16x16_bf16 {vr(d+8+4*t,4)}, {vr(fa+4,2)}, {vr(fb+16+2*t,2)}, 0")
        A(f"v_add_f32 v{d}, v{d}, v{d+8}"); A(f"v_add_f32 v{d+4}, v{d+4}, v{d+12}")
        A(f"v_mov_b32_dpp v{d}, v{d+4} quad_perm:[0,1,2,3] row_mask:0x2 bank_mask:0xf")
        tag_dword(d, R)
    A("s_waitcnt vmcnt(5)"); A("s_barrier")
    stamp(6)
    lc_column(0, True)
    select4(d, [d, d+4, d+8, d+12]); tag_dword(d, R)
    A("s_lshl_b32 s83, s3, 8"); A("s_add_u32 s83, s83, s79")
    store2(d, r['sa'], "s83", 0, WS_GUL - WS_GU)
    sk = A.lab("sk")
    A("s_cmp_ge_u32 s80, 2"); A(f"s_cbranch_scc1 {sk}")
    lc_pair9("s82", "s80", r['t0'], r['t1'])
    A("s_mul_i32 s12, s81, 2304"); A("s_add_u32 s12, s12, s79"); A("s_lshl_b32 s13, s80, 7"); A("s_add_u32 s12, s12, s13")
    A("s_mov_b32 exec_hi, 0"); store2(d, r['sa'], "s12", 2048, WS_GUL - WS_GU); A("s_mov_b64 exec, -1")
    A(f"{sk}:")
    A("s_mul_i32 s74, s4, 576"); A("s_mul_i32 s12, s5, 36"); A("s_add_u32 s74, s74, s12"); A("s_mul_i32 s74, s74, 1152")
    sk = A.lab("sk"); sk2 = A.lab("sk")
    A("s_cmp_ge_u32 s3, 5"); A(f"s_cbranch_scc1 {sk}")
    A("s_mul_i32 s12, s3, 8*1152"); A("s_add_u32 s12, s12, s74"); A("s_add_u32 s12, s12, 1024")
    A("s_lshl_b32 s13, s3, 10"); A(f"s_add_u32 s13, s13, {S_DOWN + 8*4608}")
    A("s_cmp_lg_u32 s3, 4"); A(f"s_cbranch_scc1 {sk2}"); A("s_mov_b32 exec_hi, 0"); A(f"{sk2}:")
    dma(r['offd'], 68, "s12", "s13")
    A("s_mov_b64 exec, -1")
    A(f"{sk}:")
    A("s_lshl_b32 s12, s3, 7"); A("s_add_u32 s74, s74, s12")
    def down_dma(b):
        A(f"s_add_u32 s12, s74, {b*8*1152}"); A(f"s_add_u32 s13, s76, {S_DOWN + b*1024}")
        if b == 4: A("s_mov_b32 exec_hi, 0")
        dma(r['offd'], 68, "s12", "s13")
        if b == 4: A("s_mov_b64 exec, -1")
    npre = cfg["down_pre"]
    for b in range(npre): down_dma(b)
    A(f"s_waitcnt vmcnt({npre + (2 if cfg['local'] else 1)})")
    stamp(7)
    lc_column(S_UP - S_GATE, True)
    for b_ in (r['trb'], r['trc']):
        for t in range(4): A(f"v_subrev_u32 v{b_+t}, {S_GATE - S_DOWN}, v{b_+t}")
    A(f"s_add_u32 s77, s76, {S_DOWN}")
    select4(d, [d, d+4, d+8, d+12]); tag_dword(d, R)
    store2(d, r['sa'], "s83", 2304, WS_GUL - WS_GU)
    stamp(8)
    A("s_mov_b32 s79, s88")
    A("s_mov_b32 s84, 0x3ffff"); A("s_mov_b32 s85, 0x3ffff")
    def ld(): A(f"buffer_load_dwordx4 {vr(r['q'],4)}, v{r['hfa']}, s[44:47], s79 offen sc1")
    def ck():
        check_f32(r['bad'], [r['q']]); A(f"v_and_b32 v{r['bad']}, 0xff, v{r['bad']}"); A(f"v_cmp_ne_u32 vcc, 0, v{r['bad']}")
    def bt():
        for b in range(npre, 5): down_dma(b)
    A(f"s_add_u32 s82, s79, {WS_GUL - WS_GU}"); A("s_mov_b32 s83, s79")
    poll(ld, ck, base_exec="s[84:85]", first_wait=5 - npre, between=bt if npre < 5 else None, sid=1, alt=("s79", "s82", "s83") if cfg["local"] else None)
    stamp(9)
    q = r['q']
    for e in range(4): A(f"v_and_b32 v{q+e}, s7, v{q+e}")
    A(f"v_permlane32_swap_b32 v{q}, v{q+2}"); A(f"v_permlane32_swap_b32 v{q+1}, v{q+3}")
    A(f"v_add_f32 v{q}, v{q}, v{q+2}"); A(f"v_add_f32 v{q+1}, v{q+1}, v{q+3}")
    A("s_mov_b64 exec, s[84:85]")
    A(f"ds_write_b64 v{r['hfw']}, {vr(q,2)}")
    A("s_mov_b64 exec, -1")
    A("s_waitcnt lgkmcnt(0)"); A("s_barrier")
    A(f"v_min_u32 v{r['t0']}, 35, v{LANE}"); A(f"v_lshlrev_b32 v{r['t1']}, 2, v{r['t0']}"); A(f"v_add_u32 v{r['t1']}, {S_GUL}, v{r['t1']}")
    kf = r['kf']
    for w_ in range(8):
        A(f"ds_read_b32 v{kf+w_}, v{r['t1']} offset:{288*w_}"); A(f"ds_read_b32 v{kf+8+w_}, v{r['t1']} offset:{288*w_+144}")
    A("s_lshl_b32 s12, s3, 7"); A(f"s_add_u32 s12, s12, {S_HB}")
    A(f"v_lshl_add_u32 v{r['sb']}, v{r['t0']}, 1, s12")
    A(f"v_lshl_add_u32 v{r['xg']}, v{G}, 3, s12")
    A(f"v_mov_b32 v{r['xz']}, {S_ZERO}"); A("s_add_u32 s12, s12, 64"); A(f"v_mov_b32 v{r['t0']}, s12")
    A(f"v_cmp_gt_u32 vcc, 16, v{LANE}"); A(f"v_cndmask_b32 v{r['xz']}, v{r['xz']}, v{r['t0']}, vcc")
    A("s_waitcnt lgkmcnt(0)")
    for st in (4, 2, 1):
        for e in range(st):
            A(f"v_add_f32 v{kf+e}, v{kf+e}, v{kf+e+st}"); A(f"v_add_f32 v{kf+8+e}, v{kf+8+e}, v{kf+8+e+st}")
    A(f"v_mul_f32 v{kf}, {hex(f2u(-1.4426950408889634))}, v{kf}")
    A(f"v_exp_f32 v{kf}, v{kf}"); A(f"v_add_f32 v{kf}, 1.0, v{kf}"); A(f"v_rcp_f32 v{kf}, v{kf}")
    A(f"v_mul_f32 v{kf}, v{kf}, v{kf+8}"); A(f"v_cvt_pk_bf16_f32 v{kf}, v{kf}, v{kf}")
    A(f"ds_write_b16 v{r['sb']}, v{kf}")
    A("s_waitcnt lgkmcnt(0)")
    A(f"ds_read_b64 {vr(fa,2)}, v{r['xg']}"); A(f"ds_read_b64 {vr(fa+2,2)}, v{r['xg']} offset:32"); A(f"ds_read_b64 {vr(fa+4,2)}, v{r['xz']}")
    A("s_mul_i32 s79, s2, 2304"); A(f"s_add_u32 s79, s79, {WS_OP}")
    stamp(10)
    sk = A.lab("sk")
    A("s_cmp_ge_u32 s3, 2"); A(f"s_cbranch_scc1 {sk}")
    A(f"s_mov_b32 s82, {S_DOWN + 8*4608}")
    lc_pair9("s82", "s3", r['t0'], r['t1'])
    A("s_lshl_b32 s12, s3, 7"); A("s_add_u32 s12, s12, s79")
    A("s_mov_b32 exec_hi, 0"); A(f"buffer_store_dword v{d}, v{r['sa']}, s[44:47], s12 offen offset:2048 sc1"); A("s_mov_b64 exec, -1")
    A("s_waitcnt vmcnt(1)")
    jn = A.lab("jn"); A(f"s_branch {jn}")
    A(f"{sk}:")
    A("s_waitcnt vmcnt(0)")
    A(f"{jn}:")
    stamp(11)
    lc_column(0, True)
    A("s_lshl_b32 s12, s3, 8"); A("s_add_u32 s12, s12, s79")
    select4(d, [d, d+4, d+8, d+12]); tag_dword(d, R)
    A(f"buffer_store_dword v{d}, v{r['sa']}, s[44:47], s12 offen sc1")
    stamp(12)
    write_stamps()
    A("s_endpgm")
    A("L_S1:")

    A("L_P:")
    R = Regs(4); common_regs(R); r = R.d
    R("l16"); R("sa"); R("sb"); R("sc"); R("qkb"); R("pva"); R("pvb"); R("qbw"); R("qbr")
    R("tl", 4); R("xres"); R("m"); R("ms")
    R("mxw"); R("mxr"); R("pfw"); R("pfr"); R("tbw"); R("tbr"); R("pst"); R("h3d"); R("h3m"); R("pbw"); R("pbr")
    R("h4a"); R("wmr"); R("wmo"); R("wob"); R("wo9")
    R("h2", 16, 4); R("bq", 16, 4); R("s", 4, 4); R("acc", 16, 4); R("accl", 8, 4); R("fm", 12, 4)
    UVF = 0; WOF = 32
    A(f"v_lshlrev_b32 v{r['l16']}, 4, v{LANE}")
    A("s_and_b32 s72, s5, 1"); A("s_lshl_b32 s72, s72, 4"); A("s_lshl_b32 s12, s4, 1"); A("s_add_u32 s72, s72, s12"); A("s_lshr_b32 s12, s5, 3"); A("s_add_u32 s72, s72, s12")
    A("s_bfe_u32 s73, s5, 0x20001")
    A("s_lshr_b32 s74, s5, 1"); A("s_lshl_b32 s12, s4, 3"); A("s_add_u32 s74, s74, s12")
    A("s_and_b32 s75, s5, 1")
    A("s_lshl_b32 s76, s74, 7"); A("s_add_u32 s76, s76, s3")
    A("s_lshl_b32 s12, s75, 6"); A("s_xor_b32 s13, s12, 64")
    A("s_add_u32 s77, s76, s13"); A("s_add_u32 s76, s76, s12")
    A("s_lshl_b32 s76, s76, 10"); A("s_lshl_b32 s77, s77, 10")
    A(f"s_mul_i32 s78, s3, {CKS}")
    A("s_waitcnt lgkmcnt(0)")
    if cfg["ws_base"]: A(f"s_add_u32 s40, s40, {cfg['ws_base']}"); A("s_addc_u32 s41, s41, 0")
    A("s_load_dword s6, s[40:41], 0")
    srd(52, 18, 8192*1024)
    code_prefetch("L_P0", "L_P1", r['h2'], r['t0'])
    A("L_P0:")
    def ck_dma(i):
        sreg = "s76" if i < 8 else "s77"
        if cfg["p_win1"] is not None and cfg["p_win1"] <= i < cfg["p_n1"]: A(f"s_waitcnt vmcnt({cfg['p_win1']-1})")
        A(f"s_add_u32 s13, s78, {P_CK + i*8*CKS}")
        dma(r['l16'], 52, sreg, "s13")
        if i % 8 < 7: A(f"s_add_u32 {sreg}, {sreg}, 8192")
    if not cfg["p_delay"]: ck_dma(0)
    srd(44, 40, WS_SIZE); srd(56, 24, 512*8192); srd(60, 26, 4096*1152); srd(48, 16, 1152); srd(64, 36, 1152)
    A(f"v_lshlrev_b32 v{r['sa']}, 2, v{LANE}")
    A("s_lshl_b32 s12, s3, 4"); A(f"v_add_u32 v{r['t0']}, s12, v{N}"); A(f"v_mul_u32_u24 v{r['t0']}, {CKS}, v{r['t0']}")
    A(f"v_lshl_add_u32 v{r['qkb']}, v{G}, 4, v{r['t0']}")
    A(f"v_lshrrev_b32 v{r['t0']}, 2, v{N}"); A(f"v_lshl_add_u32 v{r['t0']}, v{G}, 2, v{r['t0']}"); A(f"v_mul_u32_u24 v{r['t0']}, {CKS}, v{r['t0']}")
    A(f"v_and_b32 v{r['t1']}, 3, v{N}"); A(f"v_lshl_add_u32 v{r['t0']}, v{r['t1']}, 3, v{r['t0']}")
    A("s_lshl_b32 s12, s3, 7"); A(f"v_add_u32 v{r['pva']}, s12, v{r['t0']}"); A(f"v_add_u32 v{r['pvb']}, {64*CKS}, v{r['pva']}")
    A(f"v_bfe_u32 v{r['t0']}, v{LANE}, 1, 2"); A("s_lshl_b32 s12, s3, 1"); A(f"v_xor_b32 v{r['t1']}, s12, v{r['t0']}")
    A(f"v_lshlrev_b32 v{r['t1']}, 4, v{r['t1']}"); A(f"v_lshl_add_u32 v{r['t1']}, v{r['t0']}, 8, v{r['t1']}")
    A(f"v_lshrrev_b32 v{r['t0']}, 3, v{LANE}"); A(f"v_mul_u32_u24 v{r['t0']}, 1088, v{r['t0']}"); A(f"v_add_u32 v{r['t1']}, v{r['t1']}, v{r['t0']}")
    A(f"v_and_b32 v{r['t0']}, 1, v{LANE}"); A(f"v_lshl_add_u32 v{r['t1']}, v{r['t0']}, 3, v{r['t1']}"); A(f"v_add_u32 v{r['qbw']}, {P_QB}, v{r['t1']}")
    A(f"v_xor_b32 v{r['t0']}, v{N}, v{G}"); A(f"v_lshlrev_b32 v{r['t0']}, 4, v{r['t0']}"); A(f"v_lshl_add_u32 v{r['t0']}, v{G}, 8, v{r['t0']}")
    A(f"v_add_u32 v{r['qbr']}, {P_QB}, v{r['t0']}")
    h2pos = cfg["h2_pos"]
    assert 8 <= h2pos <= 16
    if not cfg["p_delay"]:
        for i in range(1, 8): ck_dma(i)
    addr_q_style(R); addr_trq(R, P_WUV, 2); addr_lc_src(r['offd'], R, 1152); addr_lc_tr(R, r['trb'])
    A("s_waitcnt lgkmcnt(0)")
    tags(R)
    for j in range(4):
        A(f"v_bfe_u32 v{r['t0']}, v{r['tagb']}, {2*j}, 1"); A(f"v_bfe_u32 v{r['t1']}, v{r['tagb']}, {2*j+1}, 1")
        A(f"v_lshl_or_b32 v{r['tl']+j}, v{r['t1']}, 16, v{r['t0']}")
    t0 = r['t0']; t1 = r['t1']
    A(f"v_lshlrev_b32 v{t0}, 5, v{N}"); A(f"v_add_u32 v{r['mxr']}, {P_MX}, v{t0}"); A("s_lshl_b32 s12, s3, 2"); A(f"v_add_u32 v{r['mxw']}, s12, v{r['mxr']}")
    A("s_lshr_b32 s12, s3, 1"); A("s_lshl_b32 s12, s12, 10"); A("s_and_b32 s13, s3, 1"); A("s_lshl_b32 s13, s13, 3"); A("s_add_u32 s12, s12, s13")
    A(f"v_add_u32 v{r['pfr']}, {P_PF}, v{r['l16']}"); A(f"v_add_u32 v{r['pfw']}, s12, v{r['pfr']}")
    A("s_mul_i32 s12, s3, 2304"); A(f"s_add_u32 s12, s12, {P_TB}")
    A(f"v_mul_u32_u24 v{t0}, 144, v{N}"); A(f"v_lshl_add_u32 v{t0}, v{G}, 3, v{t0}"); A(f"v_add_u32 v{r['tbw']}, s12, v{t0}")
    A(f"v_lshrrev_b32 v{t0}, 3, v{LANE}"); A(f"v_and_b32 v{t1}, 7, v{LANE}"); A(f"v_lshlrev_b32 v{t1}, 4, v{t1}")
    A(f"v_lshl_add_u32 v{r['pst']}, v{t0}, 16, v{t1}")
    A(f"v_mul_u32_u24 v{t0}, 144, v{t0}"); A(f"v_add3_u32 v{r['tbr']}, v{t0}, v{t1}, s12")
    A(f"v_lshlrev_b32 v{t0}, 4, v{N}"); A(f"v_lshl_add_u32 v{r['h3d']}, v{G}, 10, v{t0}"); A(f"v_lshrrev_b32 v{t1}, 3, v{N}"); A(f"v_lshl_add_u32 v{t1}, v{t1}, 2, v{G}"); A(f"v_lshlrev_b32 v{r['h3m']}, 9, v{t1}")
    A(f"v_lshrrev_b32 v{t0}, 2, v{N}"); A(f"v_lshlrev_b32 v{t0}, 4, v{t0}")
    A(f"v_and_b32 v{t1}, 1, v{N}"); A(f"v_lshl_add_u32 v{t0}, v{t1}, 3, v{t0}")
    A(f"v_bfe_u32 v{t1}, v{N}, 1, 1"); A(f"v_lshl_add_u32 v{t0}, v{t1}, 1, v{t0}")
    A(f"v_lshrrev_b32 v{t1}, 1, v{G}"); A(f"v_lshl_add_u32 v{t0}, v{t1}, 2, v{t0}")
    A(f"v_and_b32 v{t1}, 1, v{G}"); A(f"v_add_u32 v{t0}, v{t0}, v{t1}")
    A("s_mul_i32 s12, s3, 272"); A(f"s_add_u32 s12, s12, {P_PB}"); A(f"v_lshl_add_u32 v{r['pbw']}, v{t0}, 2, s12")
    A(f"v_lshlrev_b32 v{t1}, 4, v{t1}"); A(f"v_add_u32 v{r['wmr']}, {P_MX}, v{t1}"); A(f"v_xor_b32 v{r['wmo']}, 16, v{r['wmr']}")
    A(f"v_and_b32 v{t0}, 7, v{N}"); A(f"v_mul_u32_u24 v{t0}, 272, v{t0}"); A(f"v_lshl_add_u32 v{t0}, v{G}, 4, v{t0}"); A(f"v_add_u32 v{r['pbr']}, {P_PB}, v{t0}")
    A(f"v_lshrrev_b32 v{t0}, 2, v{N}"); A(f"v_lshlrev_b32 v{t0}, 9, v{t0}"); A(f"v_and_b32 v{t1}, 1, v{N}"); A(f"v_lshl_add_u32 v{t0}, v{t1}, 6, v{t0}")
    A(f"v_lshl_add_u32 v{r['h4a']}, v{G}, 4, v{t0}")
    A("s_lshl_b32 s83, s3, 12"); A(f"s_add_u32 s12, s83, {P_WO}"); A(f"v_add_u32 v{r['wob']}, s12, v{r['trb']}")
    A("s_and_b32 s12, s3, 1"); A("s_lshl_b32 s12, s12, 6"); A(f"v_xor_b32 v{t0}, s12, v{r['trb']}"); A(f"v_add_u32 v{r['wo9']}, {P_WO9}, v{t0}")
    A("s_lshl_b32 s80, s73, 7"); A("s_lshl_b32 s12, s3, 2"); A("s_add_u32 s80, s80, s12"); A("s_lshl_b32 s80, s80, 13")
    A("s_lshl_b32 s12, s72, 8"); A("s_add_u32 s80, s80, s12"); A("s_lshl_b32 s81, s3, 10")
    A("s_lshl_b32 s82, s72, 7"); A("s_lshl_b32 s12, s73, 5"); A("s_add_u32 s82, s82, s12"); A("s_mul_i32 s82, s82, 1152")
    if cfg["local"] and cfg["touch"]:
        sk = A.lab("sk"); A("s_cmp_ge_u32 s3, 2"); A(f"s_cbranch_scc1 {sk}")
        A("s_lshl_b32 s12, s72, 11"); A("s_lshl_b32 s13, s73, 9"); A("s_add_u32 s12, s12, s13"); A("s_lshl_b32 s13, s3, 8"); A("s_add_u32 s12, s12, s13")
        A(f"s_add_u32 s12, s12, {WS_CPL}"); A(f"v_xor_b32 v{t0}, 0xff, v{r['tagb']}")
        A(f"buffer_store_dword v{t0}, v{r['sa']}, s[44:47], s12 offen")
        A(f"{sk}:")
    if cfg["gate_s"]: go_write("0", t0, r['sa'])
    for i in range(cfg["p_pre"] if cfg["p_delay"] else 0): ck_dma(i)
    if cfg["gate_p"]: go_wait(t0, r['sa'])
    stamp(15)
    for i in range(cfg["p_pre"] if cfg["p_delay"] else 8, h2pos): ck_dma(i)
    A("s_lshl_b32 s79, s75, 4"); A("s_lshl_b32 s12, s3, 1"); A("s_add_u32 s79, s79, s12"); A("s_lshl_b32 s79, s79, 11"); A(f"s_add_u32 s79, s79, {WS_QA}")
    if cfg["qa_rep"] > 1: A(f"s_and_b32 s12, s4, {cfg['qa_rep']-1}"); A("s_lshl_b32 s12, s12, 16"); A("s_add_u32 s79, s79, s12")
    A("s_lshl_b32 s12, s4, 12"); A("s_lshl_b32 s13, s75, 11"); A("s_add_u32 s12, s12, s13"); A(f"s_add_u32 s12, s12, {WS_HINT}")
    A("s_mov_b32 s84, s12")
    h2 = r['h2']
    def pv_frags(v0, v1):
        for v in range(v0, v1):
            for u in range(4):
                for rd in range(2):
                    b_ = r['pva'] if v < 2 else r['pvb']
                    A(f"ds_read_b64_tr_b16 {ar(64 + (v*4+u)*4 + 2*rd, 2)}, v{b_} offset:{(32*(v%2) + 16*rd)*CKS + 32*u}")
    def qk_frags():
        for t in range(16): A(f"ds_read_b128 {ar(4*t,4)}, v{r['qkb']} offset:{64*t}")
    def ld():
        for e in range(4): A(f"buffer_load_dwordx4 {vr(h2+4*e,4)}, v{r['l16']}, s[44:47], s79 offen offset:{1024*e} sc1")
    def ck():
        check_f32(r['bad'], [h2, h2+4, h2+8, h2+12]); A(f"v_and_b32 v{r['bad']}, 0xff, v{r['bad']}"); A(f"v_cmp_ne_u32 vcc, 0, v{r['bad']}")
    def wuv_dma(i):
        A(f"s_add_u32 s12, s80, {i*32*8192}"); A(f"s_add_u32 s13, s81, {P_WUV + i*8192}"); dma(r['offq'], 56, "s12", "s13")
    def wo9():
        sk = A.lab("sk"); A("s_cmp_ge_u32 s3, 4"); A(f"s_cbranch_scc1 {sk}")
        A("s_mul_i32 s12, s3, 8*1152"); A("s_add_u32 s12, s12, s82"); A("s_add_u32 s12, s12, 1024"); A(f"s_add_u32 s13, s81, {P_WO9}")
        dma(r['offd'], 60, "s12", "s13"); A(f"{sk}:")
        A("s_lshl_b32 s12, s3, 7"); A("s_add_u32 s82, s82, s12")
    def wo_dma(b):
        A(f"s_add_u32 s12, s82, {b*8*1152}"); A(f"s_add_u32 s13, s83, {P_WO + b*1024}"); dma(r['offd'], 60, "s12", "s13")
    assert h2pos == 16
    stamp(1)
    A("s_waitcnt vmcnt(8)"); A("s_barrier")
    stamp(2)
    if cfg["gate_s"]: go_write("s6", t0, r['sa'])
    def own_frags():
        sk = A.lab("sk"); A("s_cmp_ge_u32 s3, 4"); A(f"s_cbranch_scc1 {sk}"); qk_frags(); A(f"{sk}:")
        pv_frags(0, 2)
    def other_frags():
        sk = A.lab("sk"); A("s_cmp_lt_u32 s3, 4"); A(f"s_cbranch_scc1 {sk}"); qk_frags(); A(f"{sk}:")
        pv_frags(2, 4)
    if cfg["hints"]:
        A(f"v_lshlrev_b32 v{r['sb']}, 7, v{N}")
        def hld(): A(f"buffer_load_dword v{r['bad']}, v{r['sb']}, s[44:47], s84 offen sc1")
        def hck(): A(f"v_cmp_ne_u32 vcc, s6, v{r['bad']}")
        def hbt():
            own_frags()
            A("s_waitcnt vmcnt(1) lgkmcnt(0)"); A("s_barrier")
            if cfg["frags_first"]: other_frags()
        poll(hld, hck, base_exec="0xffff", between=hbt, sid=4)
        stamp(14)
        poll(ld, ck, between=None if cfg["frags_first"] else other_frags, sid=0)
    else:
        def bt():
            own_frags()
            A("s_waitcnt vmcnt(4) lgkmcnt(0)"); A("s_barrier")
            other_frags()
        poll(ld, ck, between=bt, sid=0)
    stamp(3)
    for e in range(16): A(f"v_and_b32 v{h2+e}, s7, v{h2+e}")
    for e in range(8): A(f"v_cvt_pk_bf16_f32 v{h2+e}, v{h2+2*e}, v{h2+2*e+1}")
    A(f"v_xor_b32 v{r['t0']}, 16, v{r['qbw']}")
    A(f"ds_write_b64 v{r['qbw']}, {vr(h2,2)}"); A(f"ds_write_b64 v{r['qbw']}, {vr(h2+2,2)} offset:{8*1088}")
    A(f"ds_write_b64 v{r['t0']}, {vr(h2+4,2)}"); A(f"ds_write_b64 v{r['t0']}, {vr(h2+6,2)} offset:{8*1088}")
    for i in range(4): wuv_dma(i)
    A("s_waitcnt lgkmcnt(0)"); A("s_barrier")
    stamp(4)
    bq = r['bq']; s_ = r['s']
    for t in range(4): A(f"ds_read_b128 {vr(bq+4*t,4)}, v{r['qbr']} offset:{1088*t}")
    for t in range(16):
        A(f"s_waitcnt lgkmcnt({min(3, 15-t)})")
        A(f"v_mfma_f32_16x16x32_bf16 {vr(s_,4)}, {ar(4*t,4)}, {vr(bq+4*(t%4),4)}, {'0' if t == 0 else vr(s_,4)}")
        if t + 4 < 16: A(f"ds_read_b128 {vr(bq+4*(t%4),4)}, v{r['qbr']} offset:{1088*(t+4)}")
    m = r['m']
    A(f"v_max3_f32 v{m}, v{s_}, v{s_+1}, v{s_+2}"); A(f"v_max_f32 v{m}, v{m}, v{s_+3}")
    allreduce_groups(m, t0, "v_max_f32")
    A("s_mov_b64 exec, 0xffff"); A(f"ds_write_b32 v{r['mxw']}, v{m}"); A("s_mov_b64 exec, -1")
    A(f"s_mov_b32 s15, {hex(f2u(SCALE2))}")
    A("s_waitcnt lgkmcnt(0)"); A("s_barrier")
    stamp(5)
    A(f"ds_read_b128 {vr(bq,4)}, v{r['mxr']}"); A(f"ds_read_b128 {vr(bq+4,4)}, v{r['mxr']} offset:16")
    A("s_waitcnt lgkmcnt(0)")
    A(f"v_max3_f32 v{m}, v{bq}, v{bq+1}, v{bq+2}"); A(f"v_max3_f32 v{t0}, v{bq+3}, v{bq+4}, v{bq+5}")
    A(f"v_max3_f32 v{m}, v{m}, v{bq+6}, v{bq+7}"); A(f"v_max_f32 v{m}, v{m}, v{t0}")
    A(f"v_mul_f32 v{r['ms']}, s15, v{m}")
    for e in range(4): A(f"v_fma_f32 v{s_+e}, v{s_+e}, s15, -v{r['ms']}")
    for e in range(4): A(f"v_exp_f32 v{s_+e}, v{s_+e}")
    A(f"v_cvt_pk_bf16_f32 v{s_}, v{s_}, v{s_+1}"); A(f"v_cvt_pk_bf16_f32 v{s_+1}, v{s_+2}, v{s_+3}")
    A(f"ds_write_b64 v{r['pfw']}, {vr(s_,2)}")
    A("s_waitcnt lgkmcnt(0)"); A("s_barrier")
    for v in range(4): A(f"ds_read_b128 {vr(bq+4*v,4)}, v{r['pfr']} offset:{1024*v}")
    stamp(6)
    acc = r['acc']
    for v in range(4):
        A(f"s_waitcnt lgkmcnt({3-v})")
        for u in range(4):
            A(f"v_mfma_f32_16x16x32_bf16 {vr(acc+4*u,4)}, {ar(64+(v*4+u)*4,4)}, {vr(bq+4*v,4)}, {'0' if v == 0 else vr(acc+4*u,4)}")
    sk = A.lab("sk"); A("s_cmp_lg_u32 s3, 0"); A(f"s_cbranch_scc1 {sk}")
    for e in range(4): A(f"v_mov_b32 v{h2+e}, 0x3f803f80")
    for v in range(4): A(f"v_mfma_f32_16x16x32_bf16 {vr(r['accl'],4)}, {vr(h2,4)}, {vr(bq+4*v,4)}, {'0' if v == 0 else vr(r['accl'],4)}")
    A(f"{sk}:")
    A("s_lshl_b32 s79, s75, 20"); A("s_lshl_b32 s12, s74, 10"); A("s_add_u32 s79, s79, s12"); A("s_lshl_b32 s12, s3, 7"); A("s_add_u32 s79, s79, s12")
    A(f"s_add_u32 s79, s79, {WS_PART}"); A(f"s_add_u32 s84, s79, {8 << 16}")
    A("s_mov_b32 s15, 0x07060302")
    for u in range(4):
        A(f"v_perm_b32 v{acc+4*u}, v{acc+4*u+1}, v{acc+4*u}, s15"); A(f"v_perm_b32 v{acc+4*u+1}, v{acc+4*u+3}, v{acc+4*u+2}, s15")
        A(f"ds_write_b64 v{r['tbw']}, {vr(acc+4*u,2)} offset:{32*u}")
    A("s_mov_b32 s15, 0xfffefffe")
    A("s_waitcnt lgkmcnt(0)")
    A(f"ds_read_b128 {vr(bq,4)}, v{r['tbr']}"); A(f"ds_read_b128 {vr(bq+4,4)}, v{r['tbr']} offset:{8*144}")
    for hh in range(2):
        A(f"s_waitcnt lgkmcnt({1-hh})")
        for j in range(4): A(f"v_and_or_b32 v{bq+4*hh+j}, v{bq+4*hh+j}, s15, v{r['tl']+j}")
        A(f"buffer_store_dwordx4 {vr(bq+4*hh,4)}, v{r['pst']}, s[44:47], {'s79' if hh == 0 else 's84'} offen sc1")
    sk = A.lab("sk"); A("s_cmp_lg_u32 s3, 0"); A(f"s_cbranch_scc1 {sk}")
    A(f"v_mov_b32 v{h2}, v{r['ms']}"); A(f"v_mov_b32 v{h2+1}, v{r['accl']}"); A(f"v_mov_b32 v{h2+2}, s6"); A(f"v_mov_b32 v{h2+3}, s6")
    A("s_lshl_b32 s12, s75, 8"); A("s_lshl_b32 s13, s74, 9"); A("s_add_u32 s12, s12, s13"); A(f"s_add_u32 s12, s12, {WS_ML}")
    A("s_mov_b64 exec, 0xffff"); A(f"buffer_store_dwordx4 {vr(h2,4)}, v{r['l16']}, s[44:47], s12 offen sc1"); A("s_mov_b64 exec, -1")
    A(f"{sk}:")
    stamp(7)
    if cfg["wo_early"]:
        wo9()
        for b in range(4): wo_dma(b)
    A("s_lshl_b32 s79, s72, 16"); A("s_lshl_b32 s12, s3, 13"); A("s_add_u32 s79, s79, s12"); A("s_lshl_b32 s12, s73, 8"); A("s_add_u32 s79, s79, s12")
    A(f"s_add_u32 s79, s79, {WS_PART}"); A("s_add_u32 s84, s79, 4096")
    A("s_lshl_b32 s74, s72, 4"); A("s_add_u32 s74, s74, s83"); A(f"s_add_u32 s74, s74, {WS_ML}")
    mla = acc; mlb = acc + 4
    if cfg["h3_ack"]: A(f"s_waitcnt vmcnt({4 if cfg['wo_early'] else 0})"); stamp(21)
    def ld():
        A(f"buffer_load_dwordx4 {vr(mla,4)}, v{r['h3m']}, s[44:47], s74 offen sc1")
        A(f"buffer_load_dwordx4 {vr(bq,4)}, v{r['h3d']}, s[44:47], s79 offen sc1")
        A(f"buffer_load_dwordx4 {vr(bq+4,4)}, v{r['h3d']}, s[44:47], s84 offen sc1")
    def ck():
        A(f"v_xor_b32 v{r['bad']}, v{bq}, v{r['tl']}")
        for e in range(1, 8): A(f"v_bitop3_b32 v{r['bad']}, v{bq+e}, v{r['tl']+e%4}, v{r['bad']} bitop3:0xbe")
        A(f"v_and_b32 v{r['bad']}, 0x10001, v{r['bad']}")
        A(f"v_bitop3_b32 v{r['bad']}, v{mla+2}, s6, v{r['bad']} bitop3:0xbe")
        A(f"v_cmp_ne_u32 vcc, 0, v{r['bad']}")
    def bt():
        if not cfg["wo_early"]:
            wo9()
            for b in range(4): wo_dma(b)
        if not cfg["h3_ack"]: A("s_waitcnt vmcnt(9)")
        A("s_barrier")
        sk = A.lab("sk"); A("s_cmp_ge_u32 s3, 4"); A(f"s_cbranch_scc1 {sk}")
        A(f"v_xor_b32 v{t0}, 32, v{r['trq']}")
        for q in range(8):
            A(f"ds_read_b64_tr_b16 {ar(UVF+2*q,2)}, v{r['trq']} offset:{4096*q}"); A(f"ds_read_b64_tr_b16 {ar(UVF+16+2*q,2)}, v{t0} offset:{4096*q}")
        A(f"{sk}:")
        A("s_mov_b32 s15, 0x10000"); A("s_mov_b32 s13, 0xfffe0000"); A(f"v_mov_b32 v{t1}, 0x10000")
    poll(ld, ck, wqm=True, between=bt, sid=1, first_wait=0 if cfg["wo_early"] else 4)
    stamp(8)
    un = h2
    def unpack(e):
        A(f"v_lshl_or_b32 v{un+2*e}, v{bq+e}, 16, s15"); A(f"v_and_or_b32 v{un+2*e+1}, v{bq+e}, s13, v{t1}")
    lw = m + 1
    assert r['ms'] == m + 1
    A(f"v_max_f32_dpp v{m}, v{mla}, v{mla} row_ror:8 row_mask:0xf bank_mask:0xf"); A(f"v_mov_b32 v{t0}, v{m}"); unpack(0)
    A(f"v_permlane16_swap_b32 v{m}, v{t0}"); A(f"v_max_f32 v{m}, v{m}, v{t0}"); A(f"v_mov_b32 v{t0}, v{m}"); unpack(1)
    A(f"v_permlane32_swap_b32 v{m}, v{t0}"); A(f"v_max_f32 v{m}, v{m}, v{t0}")
    A(f"v_sub_f32 v{mla}, v{mla}, v{m}"); A(f"v_exp_f32 v{mla}, v{mla}")
    unpack(2); unpack(3)
    A(f"v_mul_f32 v{lw}, v{mla}, v{mla+1}")
    A(f"v_mov_b32_dpp v{mlb}, v{mla} row_newbcast:8 row_mask:0xf bank_mask:0xf"); A(f"v_mov_b32_dpp v{mla}, v{mla} row_newbcast:0 row_mask:0xf bank_mask:0xf")
    for e in range(4, 8): unpack(e)
    A(f"v_add_f32_dpp v{lw}, v{lw}, v{lw} row_ror:8 row_mask:0xf bank_mask:0xf")
    for e in range(8): A(f"v_mul_f32 v{un+e}, v{un+e}, v{mla}")
    for e in range(8): A(f"v_fmac_f32 v{un+e}, v{un+8+e}, v{mlb}")
    for e in range(4): A(f"v_permlane32_swap_b32 v{un+e}, v{un+4+e}")
    A(f"v_mov_b32 v{t0}, v{lw}")
    for e in range(4): A(f"v_add_f32 v{un+e}, v{un+e}, v{un+4+e}")
    A(f"v_permlane16_swap_b32 v{lw}, v{t0}")
    for e in range(2): A(f"v_permlane16_swap_b32 v{un+e}, v{un+2+e}")
    A(f"v_add_f32 v{lw}, v{lw}, v{t0}")
    for e in range(2): A(f"v_add_f32 v{un+e}, v{un+e}, v{un+2+e}")
    A(f"v_mov_b32 v{t0}, v{lw}")
    A(f"v_cvt_pk_bf16_f32 v{un}, v{un}, v{un+1}")
    A(f"ds_write_b32 v{r['pbw']}, v{un}")
    A(f"v_permlane32_swap_b32 v{lw}, v{t0}"); A(f"v_add_f32 v{lw}, v{lw}, v{t0}")
    A("s_mov_b64 exec, 1"); A(f"ds_write2_b32 v{r['mxw']}, v{m}, v{lw} offset0:0 offset1:8"); A("s_mov_b64 exec, -1")
    A("s_lshl_b32 s78, s72, 11")
    A("s_waitcnt vmcnt(0) lgkmcnt(0)" if cfg["wo_bar"] == "pb" else "s_waitcnt lgkmcnt(0)"); A("s_barrier")
    sk = A.lab("sk"); A("s_cmp_ge_u32 s3, 4"); A(f"s_cbranch_scc1 {sk}")
    fm = r['fm']
    A(f"ds_read_b128 {vr(fm,4)}, v{r['wmr']}"); A(f"ds_read_b128 {vr(fm+4,4)}, v{r['wmo']}")
    for v in range(4): A(f"ds_read_b128 {vr(bq+4*v,4)}, v{r['pbr']} offset:{64*v}")
    A(f"ds_read_b128 {vr(fm+8,4)}, v{r['wmr']} offset:32")
    A("s_lshl_b32 s12, s73, 9"); A("s_add_u32 s12, s12, s78"); A("s_lshl_b32 s13, s3, 7"); A("s_add_u32 s12, s12, s13"); A(f"s_add_u32 s76, s12, {WS_CP}"); A(f"s_add_u32 s85, s12, {WS_CPL}")
    da = acc; db = acc + 4
    def uvm(v):
        A(f"s_waitcnt lgkmcnt({4-v})")
        for t, dd in ((0, da), (1, db)): A(f"v_mfma_f32_16x16x32_bf16 {vr(dd,4)}, {vr(bq+4*v,4)}, {ar(UVF+16*t+4*v,4)}, {'0' if v == 0 else vr(dd,4)}")
    uvm(0)
    A(f"v_max3_f32 v{m}, v{fm}, v{fm+1}, v{fm+2}"); A(f"v_max3_f32 v{t0}, v{fm+3}, v{fm+4}, v{fm+5}")
    A(f"v_max3_f32 v{m}, v{m}, v{fm+6}, v{fm+7}"); A(f"v_max_f32 v{m}, v{m}, v{t0}")
    uvm(1)
    for e in range(4): A(f"v_sub_f32 v{fm+e}, v{fm+e}, v{m}")
    uvm(2)
    for e in range(4): A(f"v_exp_f32 v{fm+e}, v{fm+e}")
    uvm(3)
    A("s_waitcnt lgkmcnt(0)")
    A(f"v_mul_f32 v{lw}, v{fm}, v{fm+8}")
    for e in range(1, 4): A(f"v_fmac_f32 v{lw}, v{fm+e}, v{fm+8+e}")
    A(f"v_mov_b32 v{t0}, v{lw}"); A(f"v_permlane16_swap_b32 v{lw}, v{t0}"); A(f"v_add_f32 v{lw}, v{lw}, v{t0}"); A(f"v_rcp_f32 v{lw}, v{lw}")
    for dd in (da, db):
        A(f"v_mul_f32 v{dd}, v{dd}, v{fm}")
        for e in range(1, 4): A(f"v_fmac_f32 v{dd}, v{dd+e}, v{fm+e}")
    A(f"v_permlane16_swap_b32 v{da}, v{db}"); A(f"v_add_f32 v{da}, v{da}, v{db}")
    A(f"v_mul_f32 v{da}, v{da}, v{lw}")
    tag_dword(da, R)
    A("s_mov_b32 exec_hi, 0")
    if cfg["local"]: A(f"buffer_store_dword v{da}, v{r['sa']}, s[44:47], s85 offen")
    else: A(f"buffer_store_dword v{da}, v{r['sa']}, s[44:47], s76 offen sc1")
    A("s_mov_b64 exec, -1")
    A(f"{sk}:")
    stamp(9)
    A("s_lshl_b32 s12, s73, 7"); A("s_add_u32 s79, s78, s12"); A(f"s_add_u32 s79, s79, {WS_CP}")
    def ld(): A(f"buffer_load_dwordx4 {vr(h2,4)}, v{r['h4a']}, s[44:47], s79 offen sc1")
    def ck():
        check_f32(r['bad'], [h2]); A(f"v_and_b32 v{r['bad']}, 0xff, v{r['bad']}"); A(f"v_cmp_ne_u32 vcc, 0, v{r['bad']}")
    def dfr():
        sk = A.lab("sk"); A("s_cmp_ge_u32 s3, 4"); A(f"s_cbranch_scc1 {sk}")
        A("s_mov_b64 exec, -1"); A("s_mov_b32 exec_hi, 0"); A(f"buffer_store_dword v{da}, v{r['sa']}, s[44:47], s76 offen sc1"); A(f"{sk}:")
    A(f"s_add_u32 s84, s79, {WS_CPL - WS_CP}"); A("s_mov_b32 s85, s79")
    if cfg["wo_bar"] == "h4":
        A("s_waitcnt vmcnt(0)"); A("s_barrier")
    def bt():
        for t in range(4):
            A(f"ds_read_b64_tr_b16 {ar(WOF+4*t,2)}, v{r['wob']}"); A(f"ds_read_b64_tr_b16 {ar(WOF+4*t+2,2)}, v{r['wob']} offset:2048")
            if t < 3: A(f"v_xor_b32 v{r['wob']}, {(t ^ (t+1)) << 5}, v{r['wob']}")
        for t in range(2):
            A(f"ds_read_b64_tr_b16 {ar(WOF+16+4*t,2)}, v{r['wo9']}"); A(f"ds_read_b64_tr_b16 {ar(WOF+18+4*t,2)}, v{r['wo9']} offset:2048")
            if t < 1: A(f"v_xor_b32 v{r['wo9']}, 32, v{r['wo9']}")
    if cfg["local"]: poll(ld, ck, sid=2, alt=("s79", "s84", "s85"), deferred=dfr, between=bt)
    else: poll(ld, ck, sid=2, between=bt)
    stamp(10)
    for e in range(4): A(f"v_and_b32 v{h2+e}, s7, v{h2+e}")
    for rr in (4, 8):
        for e in range(4): A(f"v_add_f32_dpp v{h2+e}, v{h2+e}, v{h2+e} row_ror:{rr} row_mask:0xf bank_mask:0xf")
    for e in range(2): A(f"v_cvt_pk_bf16_f32 v{h2+4+e}, v{h2+2*e}, v{h2+2*e+1}")
    A("s_mul_i32 s79, s2, 2304"); A(f"s_add_u32 s79, s79, {WS_OP}")
    for hf in range(2):
        for e in range(2): A(f"v_mov_b32_dpp v{h2+8+2*hf+e}, v{h2+4+e} quad_perm:[{hf},{hf},{2+hf},{2+hf}] row_mask:0xf bank_mask:0xf")
    al = r['accl']
    A("s_lshl_b32 s12, s3, 8"); A("s_add_u32 s12, s12, s79")
    A("s_waitcnt lgkmcnt(0)")
    for t in range(4): A(f"v_mfma_f32_16x16x32_bf16 {vr(acc+4*t,4)}, {vr(h2+8,4)}, {ar(WOF+4*t,4)}, 0")
    sk = A.lab("sk"); A("s_and_b32 s13, s3, 6"); A("s_cmp_lg_u32 s13, 4"); A(f"s_cbranch_scc1 {sk}")
    for t in range(2): A(f"v_mfma_f32_16x16x32_bf16 {vr(al+4*t,4)}, {vr(h2+8,4)}, {ar(WOF+16+4*t,4)}, 0")
    A(f"{sk}:")
    select4(acc, [acc, acc+4, acc+8, acc+12]); tag_dword(acc, R)
    A(f"buffer_store_dword v{acc}, v{r['sa']}, s[44:47], s12 offen sc1")
    sk = A.lab("sk"); A("s_cmp_lg_u32 s13, 4"); A(f"s_cbranch_scc1 {sk}")
    A("s_and_b32 s13, s3, 1"); A("s_lshl_b32 s13, s13, 7"); A("s_add_u32 s13, s13, s79")
    A(f"v_mov_b32_dpp v{al}, v{al+4} quad_perm:[0,1,2,3] row_mask:0x2 bank_mask:0xf")
    tag_dword(al, R)
    A("s_mov_b32 exec_hi, 0"); A(f"buffer_store_dword v{al}, v{r['sa']}, s[44:47], s13 offen offset:2048 sc1"); A("s_mov_b64 exec, -1")
    A(f"{sk}:")
    stamp(11)
    A("s_lshr_b32 s12, s5, 2"); A("s_lshl_b32 s12, s12, 3"); A("s_add_u32 s12, s12, s4")
    A("s_cmp_ge_u32 s12, 18"); A("s_cbranch_scc1 L_Pend")
    A("s_lshl_b32 s74, s12, 2"); A("s_and_b32 s12, s5, 3"); A("s_add_u32 s74, s74, s12")
    A(f"v_lshrrev_b32 v{r['t0']}, 1, v{LANE}"); A(f"v_mul_u32_u24 v{r['t0']}, 2304, v{r['t0']}")
    A(f"v_and_b32 v{r['t1']}, 1, v{LANE}"); A(f"v_lshl_add_u32 v{r['sb']}, v{r['t1']}, 4, v{r['t0']}")
    A("s_mul_i32 s79, s3, 32*2304"); A("s_lshl_b32 s12, s74, 5"); A("s_add_u32 s79, s79, s12"); A(f"s_add_u32 s79, s79, {WS_OP}")
    A(f"v_and_b32 v{r['sc']}, 7, v{LANE}"); A(f"v_lshlrev_b32 v{r['sc']}, 1, v{r['sc']}"); A("s_lshl_b32 s75, s74, 4")
    A(f"buffer_load_ushort v{r['xres']}, v{r['sc']}, s[48:51], s75 offen")
    if cfg.get("h5_ack"): A("s_waitcnt vmcnt(0)"); stamp(22)
    def ld(): A(f"buffer_load_dwordx4 {vr(h2,4)}, v{r['sb']}, s[44:47], s79 offen sc1")
    def ck():
        check_f32(r['bad'], [h2]); A(f"v_and_b32 v{r['bad']}, 0xff, v{r['bad']}"); A(f"v_cmp_ne_u32 vcc, 0, v{r['bad']}")
    poll(ld, ck, sid=3)
    stamp(12)
    for e in range(4): A(f"v_and_b32 v{h2+e}, s7, v{h2+e}")
    A(f"v_permlane32_swap_b32 v{h2}, v{h2+2}"); A(f"v_permlane32_swap_b32 v{h2+1}, v{h2+3}")
    A(f"v_add_f32 v{h2}, v{h2}, v{h2+2}"); A(f"v_add_f32 v{h2+1}, v{h2+1}, v{h2+3}")
    A(f"v_lshrrev_b32 v{r['t0']}, 5, v{LANE}"); A(f"v_lshl_add_u32 v{r['t1']}, v{r['t1']}, 1, v{r['t0']}")
    A(f"v_permlane16_swap_b32 v{h2}, v{h2+1}"); A(f"v_add_f32 v{h2}, v{h2}, v{h2+1}")
    A(f"v_bfe_u32 v{r['t0']}, v{LANE}, 4, 1"); A(f"v_lshl_add_u32 v{r['t1']}, v{r['t1']}, 1, v{r['t0']}")
    for rr in (8, 4, 2): A(f"v_add_f32_dpp v{h2}, v{h2}, v{h2} row_ror:{rr} row_mask:0xf bank_mask:0xf")
    A("s_lshl_b32 s12, s3, 2"); A(f"s_add_u32 s12, s12, {P_FR}"); A(f"v_lshl_add_u32 v{r['t1']}, v{r['t1']}, 5, s12")
    A("s_mov_b32 s84, 0x00030003"); A("s_mov_b32 s85, 0x00030003"); A("s_mov_b64 exec, s[84:85]")
    A(f"ds_write_b32 v{r['t1']}, v{h2}")
    A("s_mov_b64 exec, -1")
    A(f"v_lshlrev_b32 v{r['t0']}, 4, v{r['sc']}"); A(f"v_add_u32 v{r['t0']}, {P_FR}, v{r['t0']}")
    A("s_waitcnt lgkmcnt(0)"); A("s_barrier")
    A("s_cmp_lg_u32 s3, 0"); A("s_cbranch_scc1 L_Pend")
    A(f"ds_read_b128 {vr(h2,4)}, v{r['t0']}"); A(f"ds_read_b128 {vr(h2+4,4)}, v{r['t0']} offset:16")
    A(f"v_lshlrev_b32 v{r['xres']}, 16, v{r['xres']}")
    A("s_waitcnt lgkmcnt(0)")
    for st in (4, 2, 1):
        for e in range(st): A(f"v_add_f32 v{h2+e}, v{h2+e}, v{h2+e+st}")
    A(f"v_add_f32 v{h2}, v{h2}, v{r['xres']}"); A(f"v_cvt_pk_bf16_f32 v{h2}, v{h2}, v{h2}")
    A("s_mov_b64 exec, 0xff")
    A(f"buffer_store_short v{h2}, v{r['sc']}, s[64:67], s75 offen")
    A("s_cmp_lg_u32 s74, 0"); A("s_cbranch_scc1 L_Pend")
    A("s_mov_b64 exec, 1"); A(f"v_mov_b32 v{r['t0']}, s6")
    A(f"buffer_store_dword v{r['t0']}, v{r['sa']}, s[44:47], 0 offen sc1")
    A("L_Pend:")
    stamp(13)
    write_stamps()
    A("L_exit:")
    A("s_endpgm")
    A("L_P1:")
    body = A.finish(verbose=cfg.get("verbose", False))
    head = open("parallel_sum__compressed_kv_cla__glu_gated_glu__decode.s.ref").read().split("; Override launch")[0]
    head += f"; @launch grid=(256,1,1) block=(512,1,1) lds={LDS}\n"
    head += '.amdgcn_target "amdgcn-amd-amdhsa--gfx950"\n.text\n' + f".globl {NAME}\n.p2align 8\n.type {NAME},@function\n"
    tail = f""".section .rodata,"a"
.p2align 6
.amdhsa_kernel {NAME}
  .amdhsa_next_free_vgpr 256
  .amdhsa_next_free_sgpr 102
  .amdhsa_accum_offset 128
  .amdhsa_group_segment_fixed_size 0
  .amdhsa_kernarg_size 104
  .amdhsa_user_sgpr_count 2
  .amdhsa_user_sgpr_kernarg_segment_ptr 1
  .amdhsa_system_sgpr_workgroup_id_x 1
  .amdhsa_float_denorm_mode_32 3
.end_amdhsa_kernel
"""
    return head + body + tail

if __name__ == "__main__":
    out = sys.argv[1] if len(sys.argv) > 1 else "k.s"
    kw = eval("dict(" + (sys.argv[2] if len(sys.argv) > 2 else "") + ")")
    open(out, "w").write(generate(verbose=True, **kw))
```

```python
import sys
from asmlib import Asm

NAME = "parallel_sum__compressed_kv_cla__glu_gated_glu__decode_kernel"

DEF = dict(
    nt="",
    stamps=False,
    prefetch_code=True,
    spin_cap=1 << 18, ws_base=0,
    local=True, k0=24, touch=True,
    h3_ack=True,
    sleep=0,
    p_win1=None, p_n1=0,
    h2_pos=16,
    wq_bar=True, gate_p=False, wuk_pf=True, prew2=True, qa_warm="lo", s_win0=None, s_n0=0, tfl="", epoch_v=False, prew_pos=16, gate_s=False, gate_cap=40, p_pre=0, s_pre=0,
    qa_rep=2, hints="atomic", frags_first=False,
    wo_bar="pb", p_delay=True,
    h1="sload", code_s=False, p_mode="pipe", pw=(None, None, None),
    d_win=None, wo_pos="mid", go_at="own",
    wo_early=False,
    s_win=3,
    wuk_pre=8,
    down_pre=5,
)

WS_R = 0
WS_QP = 0x10000
WS_QA = 0x20000
WS_CP = 0x30000
WS_ML = 0x40000
WS_OP = 0x60000
WS_GU = 0x100000
WS_PART = 0x200000
WS_ST = 0x400000
WS_SIZE = 0x500000
LOC = 0x40000
WS_QP = 0x10000; WS_CP = 0x18000 + 0x8000; WS_QA = 0x30000; WS_ML = 0x40000
WS_QPL = 0x50000; WS_CPL = 0x60000; WS_OP = 0x70000
WS_GU = 0x100000; WS_GUL = 0x480000 - 0x80000 + 0x100000
WS_QA = 0x600000; WS_HINT = 0x680000; WS_GO = 0x690000
WS_SIZE = 0x700000
TAGK = 0x9E3679B8

S_XN = 0; S_ZERO = 1152; S_GUL = 1280; S_HB = 3584
S_WQ = 4608; S_WUK = 41472; S_GATE = 74240; S_UP = 115712; S_DOWN = 4608
CKS = 1056
P_CK = 0; P_QB = 135168; P_PB = 152576; P_PF = 154752; P_MX = 158848; P_FR = 159424
P_WUV = 0; P_WO = 32768; P_WO9 = 159744; P_TB = 73728
LDS = 163840

SCALE2 = 1.4426950408889634 / (128 ** 0.5)
import struct
def f2u(x): return struct.unpack("<I", struct.pack("<f", x))[0]

class Regs:
    def __init__(self, start): self.n = start; self.d = {}
    def __call__(self, name, cnt=1, align=1):
        if cnt > 1: align = max(align, 2)
        self.n = (self.n + align - 1) // align * align
        self.d[name] = self.n; self.n += cnt
        assert self.n <= 128, f"out of arch VGPRs at {name}"
        return self.d[name]

def vr(b, n=1): return f"v{b}" if n == 1 else f"v[{b}:{b+n-1}]"
def ar(b, n=1): return f"a{b}" if n == 1 else f"a[{b}:{b+n-1}]"

def generate(**kw):
    cfg = dict(DEF); cfg.update(kw)
    NT = cfg["nt"]
    A = Asm()
    stamp_n = [0]
    def stamp(i):
        if not cfg["stamps"]: return
        if cfg.get("only") is not None and i not in cfg["only"]: return
        A("s_memrealtime s[42:43]"); A("s_waitcnt lgkmcnt(0)"); A(f"v_writelane_b32 v0, s42, {i}")
    def srd(b, p, size):
        A(f"s_mov_b32 s{b}, s{p}"); A(f"s_mov_b32 s{b+1}, s{p+1}"); A(f"s_mov_b32 s{b+2}, {size}"); A(f"s_mov_b32 s{b+3}, 0x20000")
    def dma(voff, srdb, soff, m0, flags=NT):
        A(f"s_mov_b32 m0, {m0}")
        A(f"buffer_load_dwordx4 v{voff}, s[{srdb}:{srdb+3}], {soff} offen {flags} lds")
    def check_f32(bad, regs, first=True):
        for gi, b in enumerate(regs):
            for j in range(4):
                if first and gi == 0 and j == 0: A(f"v_xor_b32 v{bad}, s8, v{b}")
                else: A(f"v_bitop3_b32 v{bad}, v{b+j}, s{8+j}, v{bad} bitop3:0xbe")
    def poll(loads, check, base_exec="-1", wqm=False, first_wait=0, between=None, sid=None, alt=None, deferred=None):
        L = A.lab("poll"); D = A.lab("got"); K0 = cfg["k0"]
        if alt: A(f"s_mov_b32 {alt[0]}, {alt[1]}")
        if base_exec != "-1": A(f"s_mov_b64 exec, {base_exec}")
        loads()
        if between is not None:
            if base_exec != "-1": A("s_mov_b64 exec, -1")
            between()
            if base_exec != "-1": A(f"s_mov_b64 exec, {base_exec}")
        A(f"s_waitcnt vmcnt({first_wait})")
        if sid is not None: stamp(16 + sid)
        check()
        if wqm: A("s_wqm_b64 vcc, vcc")
        A("s_mov_b32 s14, 0")
        A("s_and_b64 exec, exec, vcc")
        A(f"s_cbranch_scc0 {D}")
        A(f"{L}:")
        if cfg["sleep"]: A(f"s_sleep {cfg['sleep']}")
        if alt:
            A("s_bitcmp1_b32 s14, 0"); A(f"s_cselect_b32 {alt[0]}, {alt[2]}, {alt[1]}")
            A(f"s_cmp_lt_u32 s14, {K0}"); A(f"s_cselect_b32 {alt[0]}, {alt[1]}, {alt[0]}")
        if deferred:
            sk = A.lab("sk"); A(f"s_cmp_lg_u32 s14, {K0}"); A(f"s_cbranch_scc1 {sk}")
            A("s_mov_b64 s[86:87], exec"); deferred(); A("s_mov_b64 exec, s[86:87]"); A(f"{sk}:")
        loads()
        A("s_waitcnt vmcnt(0)")
        check()
        if wqm: A("s_wqm_b64 vcc, vcc")
        A("s_add_u32 s14, s14, 1"); A(f"s_cmp_lt_u32 s14, {cfg['spin_cap']}"); A(f"s_cbranch_scc0 {D}")
        A("s_and_b64 exec, exec, vcc")
        A(f"s_cbranch_scc1 {L}")
        A(f"{D}:")
        if deferred:
            sk = A.lab("sk"); A(f"s_cmp_gt_u32 s14, {K0}"); A(f"s_cbranch_scc1 {sk}"); deferred(); A(f"{sk}:")
        A("s_mov_b64 exec, -1")
        if sid is not None and cfg["stamps"]: A("s_add_u32 s14, s14, 1"); A(f"v_writelane_b32 v0, s14, {24 + sid}")
    def go_addr(dst, wgexpr):
        A(f"s_lshl_b32 {dst}, {wgexpr}, 7"); A(f"s_add_u32 {dst}, {dst}, {WS_GO}")
    def go_write(val, vt, voff):
        sk = A.lab("sk"); A("s_cmp_lg_u32 s3, 0"); A(f"s_cbranch_scc1 {sk}")
        go_addr("s12", "s2"); A(f"v_mov_b32 v{vt}, {val}")
        A("s_mov_b32 exec_hi, 0"); A(f"buffer_store_dword v{vt}, v{voff}, s[44:47], s12 offen"); A("s_mov_b64 exec, -1")
        A(f"{sk}:")
    def go_wait(vt, voff):
        L = A.lab("go"); D = A.lab("gone")
        A("s_xor_b32 s13, s2, 128"); go_addr("s13", "s13"); A("s_mov_b32 s14, 0"); A("s_mov_b64 exec, 1")
        A(f"{L}:")
        A(f"buffer_load_dword v{vt}, v{voff}, s[44:47], s13 offen sc1"); A("s_waitcnt vmcnt(0)")
        A(f"v_cmp_ne_u32 vcc, s6, v{vt}"); A("s_add_u32 s14, s14, 1"); A(f"s_cmp_ge_u32 s14, {cfg['gate_cap']}"); A(f"s_cbranch_scc1 {D}")
        A("s_cmp_lg_u64 vcc, 0"); A(f"s_cbranch_scc1 {L}")
        A(f"{D}:"); A("s_mov_b64 exec, -1")
    def op_prewrite(z, l16, w0):
        sk = A.lab("sk"); s2 = A.lab("sk")
        A(f"s_sub_u32 s13, s3, {w0}"); A("s_cmp_ge_u32 s13, 3"); A(f"s_cbranch_scc1 {sk}")
        A("s_mul_i32 s12, s2, 2304"); A(f"s_add_u32 s12, s12, {WS_OP}"); A("s_lshl_b32 s15, s13, 10"); A("s_add_u32 s12, s12, s15")
        A("s_cmp_lg_u32 s13, 2"); A(f"s_cbranch_scc1 {s2}"); A("s_mov_b64 exec, 0xffff"); A(f"{s2}:")
        A(f"buffer_store_dwordx4 {vr(z,4)}, v{l16}, s[44:47], s12 offen sc1"); A("s_mov_b64 exec, -1")
        A(f"{sk}:")
    def store2(v, voff, soff, off, dist):
        o = f" offset:{off}" if off else ""
        if cfg["local"]:
            A(f"s_add_u32 s15, {soff}, {dist}"); A(f"buffer_store_dword v{v}, v{voff}, s[44:47], s15 offen{o}")
        A(f"buffer_store_dword v{v}, v{voff}, s[44:47], {soff} offen{o} sc1")
    def allreduce_groups(v, t, op):
        A(f"v_mov_b32 v{t}, v{v}"); A(f"v_permlane16_swap_b32 v{v}, v{t}"); A(f"{op} v{v}, v{v}, v{t}")
        A(f"v_mov_b32 v{t}, v{v}"); A(f"v_permlane32_swap_b32 v{v}, v{t}"); A(f"{op} v{v}, v{v}, v{t}")
    def allreduce_row(v, op):
        for r in (8, 4, 2, 1): A(f"{op}_dpp v{v}, v{v}, v{v} row_ror:{r} row_mask:0xf bank_mask:0xf")
    def select4(d, srcs):
        for g in (1, 2, 3): A(f"v_mov_b32_dpp v{d}, v{srcs[g]} quad_perm:[0,1,2,3] row_mask:{hex(1<<g)} bank_mask:0xf")
    def write_stamps():
        if not cfg["stamps"]: return
        if cfg.get("expose"):
            wg, wv, idx = cfg["expose"]; D = A.lab("nex"); L = A.lab("ex")
            A(f"s_cmp_lg_u32 s2, {wg}"); A(f"s_cbranch_scc1 {D}"); A(f"s_cmp_lg_u32 s3, {wv}"); A(f"s_cbranch_scc1 {D}")
            A(f"v_readlane_b32 s12, v0, {idx}"); A("v_readlane_b32 s13, v0, 0"); A("s_nop 4"); A("s_sub_u32 s12, s12, s13"); A("s_mul_i32 s12, s12, 10")
            A("s_min_u32 s12, s12, 100000")
            A("s_memrealtime s[86:87]"); A("s_waitcnt lgkmcnt(0)")
            A(f"{L}:"); A("s_memrealtime s[42:43]"); A("s_waitcnt lgkmcnt(0)"); A("s_sub_u32 s13, s42, s86"); A("s_cmp_lt_u32 s13, s12"); A(f"s_cbranch_scc1 {L}")
            A(f"{D}:")
            return
        A("s_mov_b64 exec, -1"); A("s_lshl_b32 s12, s2, 3"); A("s_add_u32 s12, s12, s3"); A("s_lshl_b32 s12, s12, 8"); A(f"s_add_u32 s12, s12, {WS_ST}")
        A("v_lshlrev_b32 v4, 2, v1")
        A("buffer_store_dword v0, v4, s[44:47], s12 offen")

    A(f"{NAME}:")
    if cfg["stamps"]:
        A("s_memrealtime s[86:87]")
    A("s_cmp_ge_u32 s2, 256"); A("s_cbranch_scc1 L_exit")
    A("s_load_dwordx16 s[16:31], s[0:1], 0"); A("s_load_dwordx8 s[32:39], s[0:1], 64"); A("s_load_dwordx2 s[40:41], s[0:1], 96")
    A("v_lshrrev_b32 v1, 6, v0"); A("s_and_b32 s4, s2, 7"); A("v_readfirstlane_b32 s3, v1")
    A("s_lshr_b32 s5, s2, 3"); A("s_and_b32 s5, s5, 15")
    A("v_and_b32 v1, 63, v0")
    A("v_and_b32 v2, 15, v1")
    A("v_lshrrev_b32 v3, 4, v1")
    LANE, N, G = 1, 2, 3
    if cfg["stamps"]: A("s_waitcnt lgkmcnt(0)"); A("v_mov_b32 v0, 0"); A("v_writelane_b32 v0, s86, 0")
    A("s_lshr_b32 s72, s5, 2"); A("s_lshl_b32 s73, s4, 2"); A("s_add_u32 s72, s72, s73")
    A("s_and_b32 s73, s5, 3")
    A("s_cmp_ge_u32 s2, 128"); A("s_cbranch_scc1 L_P")

    def common_regs(R):
        R("tq"); R("t0"); R("t1"); R("offq"); R("trq"); R("offd")
        R("trb", 4); R("bad"); R("tagb")
    def addr_q_style(R):
        r = R.d
        A("s_and_b32 s12, s3, 1"); A("s_lshl_b32 s12, s12, 2")
        A(f"v_add_u32 v{r['t0']}, s12, v{G}"); A(f"v_lshlrev_b32 v{r['t0']}, 1, v{r['t0']}")
        A(f"v_xor_b32 v{r['t0']}, v{r['t0']}, v{N}"); A(f"v_lshlrev_b32 v{r['t0']}, 4, v{r['t0']}")
        A(f"v_lshl_add_u32 v{r['offq']}, v{G}, 13, v{r['t0']}")
    def addr_trq(R, base, sh=1):
        r = R.d
        A(f"v_lshrrev_b32 v{r['t0']}, 2, v{N}")
        A(f"v_and_b32 v{r['t1']}, 1, v{G}"); A(f"v_lshl_add_u32 v{r['t1']}, v{r['t1']}, 2, v{r['t0']}")
        A(f"v_lshlrev_b32 v{r['t1']}, 1, v{r['t1']}")
        A(f"v_bfe_u32 v{r['tq']}, v{N}, 1, 1"); A("s_and_b32 s12, s3, 3" if sh == 2 else "s_mov_b32 s12, s3"); A(f"s_lshl_b32 s12, s12, {sh}"); A(f"v_add_u32 v{r['tq']}, s12, v{r['tq']}")
        A(f"v_xor_b32 v{r['t1']}, v{r['t1']}, v{r['tq']}"); A(f"v_lshlrev_b32 v{r['t1']}, 4, v{r['t1']}")
        A(f"v_lshl_add_u32 v{r['t1']}, v{r['t0']}, 8, v{r['t1']}")
        A(f"v_lshl_add_u32 v{r['t1']}, v{G}, 10, v{r['t1']}")
        A(f"v_and_b32 v{r['t0']}, 1, v{N}"); A(f"v_lshl_add_u32 v{r['trq']}, v{r['t0']}, 3, v{r['t1']}")
        if base: A(f"v_add_u32 v{r['trq']}, {base}, v{r['trq']}")
    def addr_lc_src(dst, R, stride):
        r = R.d
        A(f"v_lshrrev_b32 v{r['t0']}, 3, v{LANE}"); A(f"v_and_b32 v{r['t1']}, 6, v{r['t0']}")
        A(f"v_and_b32 v{dst}, 7, v{LANE}"); A(f"v_xor_b32 v{dst}, v{dst}, v{r['t1']}"); A(f"v_lshlrev_b32 v{dst}, 4, v{dst}")
        A(f"v_mul_u32_u24 v{r['t0']}, {stride}, v{r['t0']}"); A(f"v_add_u32 v{dst}, v{dst}, v{r['t0']}")
    def addr_lc_tr(R, trb, trc=None):
        r = R.d
        A(f"v_lshrrev_b32 v{r['t0']}, 2, v{N}")
        A(f"v_bfe_u32 v{r['tq']}, v{N}, 1, 1")
        if trc is not None:
            A(f"v_and_b32 v{r['t1']}, 6, v{r['t0']}"); A(f"v_xor_b32 v{r['t1']}, v{r['t1']}, v{r['tq']}")
            A(f"v_lshlrev_b32 v{r['t1']}, 4, v{r['t1']}"); A(f"v_lshl_add_u32 v{r['t1']}, v{r['t0']}, 7, v{r['t1']}")
            A(f"v_and_b32 v{trc}, 1, v{N}"); A(f"v_lshl_add_u32 v{trc}, v{trc}, 3, v{r['t1']}")
            A(f"v_add_u32 v{trc}, 4096, v{trc}")
        A(f"v_and_b32 v{r['t1']}, 1, v{G}"); A(f"v_lshl_add_u32 v{r['t0']}, v{r['t1']}, 2, v{r['t0']}")
        A(f"v_and_b32 v{r['t1']}, 6, v{r['t0']}"); A(f"v_xor_b32 v{r['t1']}, v{r['t1']}, v{r['tq']}")
        A(f"v_lshlrev_b32 v{r['t1']}, 4, v{r['t1']}"); A(f"v_lshl_add_u32 v{r['t1']}, v{r['t0']}, 7, v{r['t1']}")
        A(f"v_lshrrev_b32 v{r['t0']}, 1, v{G}"); A(f"v_lshl_add_u32 v{r['t1']}, v{r['t0']}, 10, v{r['t1']}")
        A(f"v_and_b32 v{trb}, 1, v{N}"); A(f"v_lshl_add_u32 v{trb}, v{trb}, 3, v{r['t1']}")
    def tags(R, younger):
        r = R.d
        if cfg["epoch_v"]: A(f"s_waitcnt vmcnt({younger})"); A(f"v_readfirstlane_b32 s6, v{r['bad']}")
        A(f"s_add_u32 s6, s6, {hex(TAGK)}"); A("s_or_b32 s6, s6, 0x01010101")
        for j in range(4): A(f"s_bfe_u32 s{8+j}, s6, {hex((8 << 16) | (8*j))}")
        A(f"v_and_b32 v{r['tagb']}, 3, v{LANE}"); A(f"v_lshlrev_b32 v{r['tagb']}, 3, v{r['tagb']}")
        A(f"v_lshrrev_b32 v{r['tagb']}, v{r['tagb']}, s6"); A(f"v_and_b32 v{r['tagb']}, 0xff, v{r['tagb']}")
        A("s_mov_b32 s7, 0xffffff00")
    def tag_dword(v, R): A(f"v_and_or_b32 v{v}, v{v}, s7, v{R.d['tagb']}")
    def code_prefetch(lab0, lab1, dst, t):
        if not cfg["prefetch_code"]: return
        D = A.lab("npf"); PC = A.lab("pc")
        if cfg["code_s"]:
            A("s_getpc_b64 s[92:93]"); A(f"{PC}:")
            A(f"s_add_u32 s92, s92, {lab0}-{PC}"); A("s_addc_u32 s93, s93, 0")
            A("s_lshl_b32 s15, s5, 3"); A("s_add_u32 s15, s15, s3"); A("s_lshl_b32 s15, s15, 7"); A(f"s_min_u32 s15, s15, {lab1}-{lab0}-4")
            A("s_load_dword s91, s[92:93], s15")
            return
        A("s_cmp_lg_u32 s3, 7"); A(f"s_cbranch_scc1 {D}")
        A("s_getpc_b64 s[12:13]"); A(f"{PC}:")
        A(f"s_add_u32 s12, s12, {lab0}-{PC}"); A("s_addc_u32 s13, s13, 0")
        A("s_lshl_b32 s15, s5, 10"); A(f"v_lshl_add_u32 v{t}, v{LANE}, 4, s15")
        A(f"v_min_u32 v{t}, {lab1}-{lab0}-16, v{t}")
        A(f"global_load_dwordx4 v[{dst}:{dst+3}], v{t}, s[12:13]")
        A(f"{D}:")

    R = Regs(4); common_regs(R); r = R.d
    R("offk"); R("offg"); R("trc", 4); R("xa"); R("xg"); R("xz")
    R("acc"); R("acc2")
    R("fa", 8, 4); R("fb", 24, 4); R("d", 32, 4); R("q", 8, 4); R("qa", 4, 4); R("kf", 16, 4)
    R("sa"); R("sb"); R("sc"); R("hfa"); R("hfw")
    r["x"] = r["kf"]; r["xf"] = r["kf"] + 5
    d = r['d']
    addr_q_style(R)
    A(f"v_lshlrev_b32 v{r['sa']}, 2, v{LANE}")
    A("s_waitcnt lgkmcnt(0)")
    if cfg["ws_base"]: A(f"s_add_u32 s40, s40, {cfg['ws_base']}"); A("s_addc_u32 s41, s41, 0")
    if cfg["epoch_v"]: A(f"v_mov_b32 v{r['tagb']}, 0"); A(f"global_load_dword v{r['bad']}, v{r['tagb']}, s[40:41] nt")
    else: A("s_load_dword s6, s[40:41], 0")
    srd(48, 16, 1152); srd(52, 20, 576*8192)
    code_prefetch("L_S0", "L_S1", r['d'], r['t0'])
    A("L_S0:")
    A("s_mul_i32 s74, s73, 144"); A("s_lshl_b32 s12, s3, 2"); A("s_add_u32 s74, s74, s12"); A("s_lshl_b32 s74, s74, 13")
    A("s_lshl_b32 s75, s72, 8"); A("s_add_u32 s74, s74, s75")
    A("s_lshl_b32 s76, s3, 10")
    def wq_dma(i):
        A(f"s_add_u32 s12, s74, {i*32*8192}"); A(f"s_add_u32 s13, s76, {S_WQ + i*8192}")
        dma(r['offq'], 52, "s12", "s13")
    A("s_lshl_b32 s78, s72, 11")
    def hf_addr():
        A(f"v_and_b32 v{r['t0']}, 31, v{LANE}"); A(f"v_min_u32 v{r['t0']}, 17, v{r['t0']}"); A(f"v_lshrrev_b32 v{r['t1']}, 5, v{LANE}")
        A(f"v_lshlrev_b32 v{r['hfa']}, 4, v{r['t0']}"); A(f"v_lshl_add_u32 v{r['hfw']}, v{r['t1']}, 3, v{r['hfa']}")
        A(f"v_mul_u32_u24 v{r['t1']}, 4608, v{r['t1']}"); A(f"v_add_u32 v{r['hfa']}, v{r['hfa']}, v{r['t1']}")
        A(f"v_add_u32 v{r['t1']}, {2304 - 144}, v{r['hfa']}"); A(f"v_cmp_lt_u32 vcc, 8, v{r['t0']}"); A(f"v_cndmask_b32 v{r['hfa']}, v{r['hfa']}, v{r['t1']}, vcc")
        A("s_lshl_b32 s88, s4, 4"); A("s_lshl_b32 s12, s3, 1"); A("s_add_u32 s88, s88, s12"); A("s_mul_i32 s88, s88, 4608")
        A("s_mul_i32 s12, s5, 144"); A("s_add_u32 s88, s88, s12"); A(f"s_add_u32 s88, s88, {WS_GU}")
        A("s_mul_i32 s12, s3, 288"); A(f"s_add_u32 s12, s12, {S_GUL}"); A(f"v_add_u32 v{r['hfw']}, s12, v{r['hfw']}")
    prew = cfg["local"] and cfg["touch"]
    def gu_prewrite():
        if not prew: return
        A("s_lshl_b32 s12, s4, 4"); A("s_add_u32 s12, s12, s5"); A("s_mul_i32 s12, s12, 4608"); A(f"s_add_u32 s12, s12, {WS_GUL}")
        A("s_lshl_b32 s13, s3, 8"); A("s_add_u32 s13, s13, s12")
        A(f"v_xor_b32 v{r['t0']}, 0xff, v{r['tagb']}")
        A(f"buffer_store_dword v{r['t0']}, v{r['sa']}, s[44:47], s13 offen"); A(f"buffer_store_dword v{r['t0']}, v{r['sa']}, s[44:47], s13 offen offset:2304")
        sk = A.lab("sk"); A("s_cmp_ge_u32 s3, 2"); A(f"s_cbranch_scc1 {sk}")
        A("s_mul_i32 s13, s3, 2304"); A("s_add_u32 s13, s13, s12"); A(f"buffer_store_dword v{r['t0']}, v{r['sa']}, s[44:47], s13 offen offset:2048")
        A(f"{sk}:")
    A("s_cmp_ge_u32 s3, 4"); A("s_cbranch_scc1 L_S_hi")
    for i in range(5): A(f"buffer_load_dword v{r['x']+i}, v{r['sa']}, s[48:51], 0 offen offset:{256*i}")
    for i in range(5): wq_dma(i)
    if cfg["wq_bar"]: A("s_barrier")
    srd(44, 40, WS_SIZE)
    if cfg["gate_p"]: go_write("0", r['t0'], r['sa'])
    nz = 0
    if cfg["h1"] in ("sload", "remote"):
        A("s_lshl_b32 s12, s73, 9"); A("s_add_u32 s12, s12, s78"); A("s_lshl_b32 s13, s3, 7"); A("s_add_u32 s12, s12, s13")
        A(f"s_add_u32 s12, s12, {WS_QPL if cfg['h1'] == 'sload' else WS_QP}"); A(f"v_mov_b32 v{r['t0']}, 0")
        A("s_mov_b32 exec_hi, 0"); A(f"buffer_store_dword v{r['t0']}, v{r['sa']}, s[44:47], s12 offen sc1"); A("s_mov_b64 exec, -1"); nz = 1
    if cfg["qa_warm"] == "lo":
        A("s_lshl_b32 s12, s73, 9"); A("s_add_u32 s12, s12, s78"); A("s_lshl_b32 s13, s3, 7"); A("s_add_u32 s12, s12, s13"); A(f"s_add_u32 s12, s12, {WS_QA}")
        A(f"v_mov_b32 v{r['t0']}, 0"); A("s_mov_b32 exec_hi, 0")
        for q_ in range(cfg["qa_rep"]):
            A(f"buffer_store_dword v{r['t0']}, v{r['sa']}, s[44:47], s12 offen sc1"); A("s_add_u32 s12, s12, 0x10000")
        A("s_mov_b64 exec, -1"); nz += cfg["qa_rep"]
    hf_addr()
    addr_trq(R, S_WQ, 2)
    if cfg["gate_p"]:
        sk = A.lab("sk"); jn = A.lab("jn"); A("s_cmp_lg_u32 s3, 0"); A(f"s_cbranch_scc1 {sk}"); A("s_waitcnt vmcnt(6)"); A(f"s_branch {jn}"); A(f"{sk}:"); A("s_waitcnt vmcnt(5)"); A(f"{jn}:")
    else: A(f"s_waitcnt vmcnt({5 + nz})")
    xf = r['xf']
    for i in range(5):
        A(f"v_lshlrev_b32 v{xf+2*i}, 16, v{r['x']+i}"); A(f"v_and_b32 v{xf+2*i+1}, 0xffff0000, v{r['x']+i}")
    A(f"v_add_f32 v{r['acc']}, v{xf}, v{xf+1}")
    for i in range(2, 10): A(f"v_add_f32 v{r['acc']}, v{r['acc']}, v{xf+i}")
    allreduce_row(r['acc'], "v_add_f32"); allreduce_groups(r['acc'], r['t0'], "v_add_f32")
    A(f"v_mul_f32 v{r['acc']}, {hex(f2u(1.0/576))}, v{r['acc']}")
    for i in range(10): A(f"v_sub_f32 v{xf+i}, v{xf+i}, v{r['acc']}")
    A(f"v_cmp_gt_u32 vcc, 32, v{LANE}")
    A(f"v_cndmask_b32 v{xf+8}, 0, v{xf+8}, vcc"); A(f"v_cndmask_b32 v{xf+9}, 0, v{xf+9}, vcc")
    A(f"v_mul_f32 v{r['acc2']}, v{xf}, v{xf}")
    for i in range(1, 10): A(f"v_fmac_f32 v{r['acc2']}, v{xf+i}, v{xf+i}")
    allreduce_row(r['acc2'], "v_add_f32"); allreduce_groups(r['acc2'], r['t0'], "v_add_f32")
    A(f"v_mov_b32 v{r['t0']}, {hex(f2u(1e-5))}")
    A(f"v_fmac_f32 v{r['t0']}, {hex(f2u(1.0/576))}, v{r['acc2']}")
    A(f"v_rsq_f32 v{r['t0']}, v{r['t0']}")
    for i in range(10): A(f"v_mul_f32 v{xf+i}, v{xf+i}, v{r['t0']}")
    for i in range(5): A(f"v_cvt_pk_bf16_f32 v{r['x']+i}, v{xf+2*i}, v{xf+2*i+1}")
    for i in range(5): A(f"ds_write_b32 v{r['sa']}, v{r['x']+i} offset:{S_XN + 256*i}")
    A("s_waitcnt lgkmcnt(0)")
    tags(R, 5)
    A("s_mul_i32 s12, s73, 288"); A(f"v_lshl_add_u32 v{r['xa']}, v{G}, 3, s12")
    for q in range(9): A(f"ds_read_b64 {ar(2*q, 2)}, v{r['xa']} offset:{S_XN + 32*q}")
    A(f"v_xor_b32 v{r['t0']}, 32, v{r['trq']}")
    A("s_lshl_b32 s12, s73, 9"); A("s_add_u32 s12, s12, s78"); A("s_lshl_b32 s13, s3, 7"); A("s_add_u32 s12, s12, s13")
    A(f"s_add_u32 s79, s12, {WS_QP}")
    stamp(1)
    A(f"s_waitcnt vmcnt({nz})"); A("s_barrier")
    stamp(2)
    if cfg["gate_p"]: go_write("s6", r['t1'], r['sa'])
    for q in range(9):
        A(f"ds_read_b64_tr_b16 {ar(20+2*q, 2)}, v{r['trq']} offset:{4096*q}")
        A(f"ds_read_b64_tr_b16 {ar(40+2*q, 2)}, v{r['t0']} offset:{4096*q}")
    for v in range(4):
        A(f"s_waitcnt lgkmcnt({14-4*v})")
        for t in range(2): A(f"v_mfma_f32_16x16x32_bf16 {vr(d+4*t,4)}, {ar(4*v,4)}, {ar(20+20*t+4*v,4)}, {'0' if v == 0 else vr(d+4*t,4)}")
    A("s_waitcnt lgkmcnt(0)")
    for t in range(2): A(f"v_mfma_f32_16x16x16_bf16 {vr(d+8+4*t,4)}, {ar(16,2)}, {ar(36+20*t,2)}, 0")
    A(f"v_add_f32 v{d}, v{d}, v{d+8}"); A(f"v_add_f32 v{d+4}, v{d+4}, v{d+12}")
    A(f"v_mov_b32_dpp v{d}, v{d+4} quad_perm:[0,1,2,3] row_mask:0x2 bank_mask:0xf")
    tag_dword(d, R)
    A("s_mov_b32 exec_hi, 0")
    if cfg["h1"] == "remote": A(f"buffer_store_dword v{d}, v{r['sa']}, s[44:47], s79 offen sc1")
    else: store2(d, r['sa'], "s79", 0, WS_QPL - WS_QP)
    A("s_mov_b64 exec, -1")
    if cfg["h1"] == "remote": A("s_barrier")
    stamp(3)
    if cfg["qa_warm"] == "lo": A(f"s_waitcnt vmcnt({1 if cfg['h1'] == 'remote' or not cfg['local'] else 2})"); A("s_barrier")
    srd(60, 30, 576*9216); srd(64, 32, 576*9216); srd(68, 34, 4608*1152)
    addr_lc_src(r['offg'], R, 9216); addr_lc_src(r['offd'], R, 1152)
    addr_lc_tr(R, r['trb'], r['trc'])
    if cfg["prew2"]:
        for e in range(4): A(f"v_mov_b32 v{d+16+e}, 0")
        A(f"v_lshlrev_b32 v{r['t0']}, 4, v{LANE}")
        op_prewrite(d+16, r['t0'], 0)
    A("s_barrier")
    A("s_branch L_S_ffn")
    A("L_S_hi:")
    for i in range(4): wq_dma(i)
    srd(56, 22, 512*8192); srd(44, 40, WS_SIZE)
    A(f"v_and_b32 v{r['t0']}, 3, v{N}"); A(f"v_lshlrev_b32 v{r['t0']}, 5, v{r['t0']}")
    A(f"v_lshrrev_b32 v{r['t1']}, 2, v{N}"); A(f"v_lshl_add_u32 v{r['t0']}, v{r['t1']}, 9, v{r['t0']}")
    A(f"v_lshl_add_u32 v{r['sb']}, v{G}, 7, v{r['t0']}")
    A(f"s_add_u32 s79, s78, {WS_QP}"); A(f"s_add_u32 s84, s78, {WS_QPL}"); A("s_mov_b32 s85, s79")
    hf_addr()
    A(f"v_lshlrev_b32 v{r['t0']}, 2, v{G}"); A(f"v_xor_b32 v{r['t0']}, v{r['t0']}, v{N}"); A(f"v_lshlrev_b32 v{r['t0']}, 4, v{r['t0']}")
    A(f"v_lshl_add_u32 v{r['offk']}, v{G}, 13, v{r['t0']}")
    A("s_sub_u32 s80, s3, 4")
    A("s_lshl_b32 s74, s73, 7"); A("s_lshl_b32 s12, s80, 5"); A("s_add_u32 s74, s74, s12"); A("s_lshl_b32 s74, s74, 13"); A("s_add_u32 s74, s74, s75")
    A("s_lshl_b32 s77, s80, 13")
    nk0 = cfg["wuk_pre"]
    def wuk_dma(i):
        A(f"s_add_u32 s12, s74, {i*4*8192}"); A(f"s_add_u32 s13, s77, {S_WUK + i*1024}")
        dma(r['offk'], 56, "s12", "s13")
        if i < 7: A(f"v_xor_b32 v{r['offk']}, {(((i%4) ^ ((i+1)%4)) << 4)}, v{r['offk']}")
    if cfg["wq_bar"]: A("s_barrier")
    for i in range(nk0): wuk_dma(i)
    nqw = 0
    if cfg["qa_warm"] == "own":
        assert nk0 == 8
        A("s_lshl_b32 s12, s73, 9"); A("s_add_u32 s12, s12, s78"); A("s_lshl_b32 s13, s80, 7"); A("s_add_u32 s12, s12, s13"); A(f"s_add_u32 s12, s12, {WS_QA}")
        A(f"v_mov_b32 v{r['t1']}, 0"); A("s_mov_b32 exec_hi, 0")
        for q_ in range(cfg["qa_rep"]):
            A(f"buffer_store_dword v{r['t1']}, v{r['sa']}, s[44:47], s12 offen sc1"); A("s_add_u32 s12, s12, 0x10000")
        A("s_mov_b64 exec, -1"); nqw = cfg["qa_rep"]
    srd(60, 30, 576*9216); srd(64, 32, 576*9216); srd(68, 34, 4608*1152)
    if cfg["h1"] == "sload":
        A("s_waitcnt lgkmcnt(0)")
        A(f"s_waitcnt vmcnt({nk0 + nqw + 4 - cfg.get('sl_pos', 2)})")
        A("s_lshl_b32 s12, s73, 9"); A("s_add_u32 s12, s12, s78"); A("s_lshl_b32 s13, s80, 7"); A("s_add_u32 s12, s12, s13"); A(f"s_add_u32 s12, s12, {WS_QPL}")
        A("s_load_dword s90, s[40:41], s12")
    stamp(1)
    A(f"s_waitcnt vmcnt({nk0 + nqw})"); A("s_barrier")
    stamp(2)
    for i in range(nk0, 8): wuk_dma(i)
    addr_lc_src(r['offg'], R, 9216); addr_lc_src(r['offd'], R, 1152)
    addr_lc_tr(R, r['trb'], r['trc'])
    if cfg["h1"] != "sload": A("s_waitcnt lgkmcnt(0)")
    tags(R, 8)
    def ld():
        A(f"buffer_load_dwordx4 {vr(r['q'],4)}, v{r['sb']}, s[44:47], s79 offen sc1")
        A(f"buffer_load_dwordx4 {vr(r['q']+4,4)}, v{r['sb']}, s[44:47], s79 offen offset:16 sc1")
    def ck():
        check_f32(r['bad'], [r['q'], r['q']+4]); A(f"v_and_b32 v{r['bad']}, 0xff, v{r['bad']}"); A(f"v_cmp_ne_u32 vcc, 0, v{r['bad']}")
    A(f"v_and_b32 v{r['t0']}, 3, v{N}"); A(f"v_xor_b32 v{r['t0']}, v{r['t0']}, v{G}"); A(f"v_lshrrev_b32 v{r['t1']}, 2, v{N}")
    A(f"v_lshl_add_u32 v{r['t0']}, v{r['t0']}, 2, v{r['t1']}"); A(f"v_lshlrev_b32 v{r['t0']}, 4, v{r['t0']}")
    A(f"v_lshl_add_u32 v{r['t0']}, v{N}, 8, v{r['t0']}"); A(f"v_add_u32 v{r['t0']}, s77, v{r['t0']}")
    A(f"s_waitcnt vmcnt({nqw})")
    stamp(3)
    def bt():
        for v in range(4):
            for t in range(2): A(f"ds_read_b128 {ar(16*t+4*v,4)}, v{r['t0']} offset:{S_WUK + 4096*t}")
            if v < 3: A(f"v_xor_b32 v{r['t0']}, {((v ^ (v+1)) << 4)}, v{r['t0']}")
    if cfg["h1"] == "remote": A("s_barrier")
    poll(ld, ck, between=bt, sid=0, alt=("s79", "s84", "s85") if cfg["local"] and cfg["h1"] != "remote" else None)
    stamp(4)
    if cfg["hints"] == "atomic":
        sk = A.lab("sk"); A("s_lshl_b32 s12, s73, 3"); A("s_add_u32 s12, s12, s3"); A("s_cmp_lg_u32 s12, 31"); A(f"s_cbranch_scc1 {sk}")
        A(f"v_lshlrev_b32 v{r['t0']}, 7, v{LANE}"); A(f"v_mov_b32 v{r['t1']}, 1"); A("s_lshr_b32 s12, s72, 4"); A("s_lshl_b32 s12, s12, 10"); A(f"s_add_u32 s12, s12, {WS_HINT}")
        A("s_mov_b64 exec, 0xff"); A(f"buffer_atomic_add v{r['t1']}, v{r['t0']}, s[44:47], s12 offen sc1"); A("s_mov_b64 exec, -1")
        A(f"{sk}:")
    elif cfg["hints"]:
        sk = A.lab("sk"); A("s_lshl_b32 s12, s73, 3"); A("s_add_u32 s12, s12, s3"); A("s_cmp_lg_u32 s12, 31"); A(f"s_cbranch_scc1 {sk}")
        A(f"v_lshlrev_b32 v{r['t0']}, 12, v{LANE}"); A(f"v_mov_b32 v{r['t1']}, s6"); A("s_lshl_b32 s12, s72, 7"); A(f"s_add_u32 s12, s12, {WS_HINT}")
        A("s_mov_b64 exec, 0xff"); A(f"buffer_store_dword v{r['t1']}, v{r['t0']}, s[44:47], s12 offen sc1"); A("s_mov_b64 exec, -1")
        A(f"{sk}:")
    for e in range(8): A(f"v_and_b32 v{r['q']+e}, s7, v{r['q']+e}")
    for e in range(4): A(f"v_cvt_pk_bf16_f32 v{r['qa']+e}, v{r['q']+2*e}, v{r['q']+2*e+1}")
    A("s_waitcnt lgkmcnt(0)")
    for t in range(2):
        for v in range(4): A(f"v_mfma_f32_16x16x32_bf16 {vr(d+16*t+4*v,4)}, {vr(r['qa'],4)}, {ar(16*t+4*v,4)}, 0")
    A("s_lshl_b32 s12, s73, 9"); A("s_add_u32 s12, s12, s78"); A("s_lshl_b32 s13, s80, 7"); A("s_add_u32 s12, s12, s13"); A(f"s_add_u32 s12, s12, {WS_QA}")
    for t in range(2):
        b_ = d + 16*t
        A(f"v_add_f32 v{b_}, v{b_}, v{b_+5}"); A(f"v_add_f32 v{b_+10}, v{b_+10}, v{b_+15}"); A(f"v_add_f32 v{b_}, v{b_}, v{b_+10}")
    A(f"v_permlane16_swap_b32 v{d}, v{d+16}"); A(f"v_add_f32 v{d}, v{d}, v{d+16}")
    A(f"v_mov_b32 v{r['t0']}, v{d}"); A(f"v_permlane32_swap_b32 v{d}, v{r['t0']}"); A(f"v_add_f32 v{d}, v{d}, v{r['t0']}")
    tag_dword(d, R)
    if cfg["qa_warm"] == "lo": A("s_barrier")
    A("s_mov_b32 exec_hi, 0")
    for q_ in range(cfg["qa_rep"]):
        A(f"buffer_store_dword v{d}, v{r['sa']}, s[44:47], s12 offen sc1")
        if q_ + 1 < cfg["qa_rep"]: A("s_add_u32 s12, s12, 0x10000")
    A("s_mov_b64 exec, -1")
    A("s_barrier")
    A("L_S_ffn:")
    stamp(5)
    if cfg["gate_s"]: go_wait(r['t0'], r['sa'])
    stamp(13)
    A("s_mul_i32 s74, s5, 36*9216"); A("s_mul_i32 s12, s4, 1152"); A("s_add_u32 s74, s74, s12")
    A("s_and_b32 s80, s3, 3"); A("s_lshr_b32 s81, s3, 2")
    A("s_mul_i32 s82, s81, 41472"); A(f"s_add_u32 s82, s82, {S_GATE + 8*4608}")
    up9 = A.lab("up9"); j9 = A.lab("j9")
    A("s_mul_i32 s12, s80, 8*9216"); A("s_add_u32 s12, s12, s74"); A("s_add_u32 s12, s12, 1024")
    A("s_lshl_b32 s13, s80, 10"); A("s_add_u32 s13, s13, s82")
    A(f"s_add_u32 s15, s74, {32*9216 + 1024}"); A("s_add_u32 s83, s82, 4096")
    A("s_cmp_lg_u32 s81, 0"); A(f"s_cbranch_scc1 {up9}")
    for sb_, nxt in ((60, j9), (64, None)):
        sk = A.lab("sk")
        dma(r['offg'], sb_, "s12", "s13")
        A("s_cmp_lg_u32 s80, 0"); A(f"s_cbranch_scc1 {sk}")
        A("s_mov_b32 exec_hi, 0"); dma(r['offg'], sb_, "s15", "s83"); A("s_mov_b64 exec, -1")
        A(f"{sk}:")
        if nxt: A(f"s_branch {nxt}"); A(f"{up9}:")
    A(f"{j9}:")
    A("s_lshl_b32 s12, s3, 7"); A("s_add_u32 s74, s74, s12")
    A("s_mul_i32 s76, s3, 4608")
    cnt = 0
    for mat, (sb_, base) in enumerate(((60, S_GATE), (64, S_UP))):
        for b in range(5):
            wn = cfg["s_win0"] if cnt < cfg["s_n0"] else cfg["s_win"]
            if wn is not None and cnt >= wn: A(f"s_waitcnt vmcnt({wn-1})")
            A(f"s_add_u32 s12, s74, {b*8*9216}"); A(f"s_add_u32 s13, s76, {base + b*1024}")
            if b == 4: A("s_mov_b32 exec_hi, 0")
            dma(r['offg'], sb_, "s12", "s13")
            if b == 4: A("s_mov_b64 exec, -1")
            cnt += 1
    A("s_mul_i32 s12, s5, 72"); A(f"v_lshl_add_u32 v{r['xg']}, v{G}, 3, s12")
    A(f"v_mov_b32 v{r['xz']}, {S_ZERO - S_XN}"); A("s_add_u32 s12, s12, 64"); A(f"v_mov_b32 v{r['t0']}, s12")
    A(f"v_cmp_gt_u32 vcc, 16, v{LANE}"); A(f"v_cndmask_b32 v{r['xz']}, v{r['xz']}, v{r['t0']}, vcc")
    A(f"ds_read_b64 {vr(r['fa'],2)}, v{r['xg']} offset:{S_XN}"); A(f"ds_read_b64 {vr(r['fa']+2,2)}, v{r['xg']} offset:{S_XN+32}")
    A(f"ds_read_b64 {vr(r['fa']+4,2)}, v{r['xz']} offset:{S_XN}")
    A("s_lshl_b32 s79, s4, 4"); A("s_add_u32 s79, s79, s5"); A("s_mul_i32 s79, s79, 4608"); A(f"s_add_u32 s79, s79, {WS_GU}")
    A(f"s_add_u32 s77, s76, {S_GATE}")
    for b_ in (r['trb'], r['trc']):
        A(f"v_add_u32 v{b_}, s77, v{b_}")
        for t in (1, 2, 3): A(f"v_xor_b32 v{b_+t}, {t << 5}, v{b_}")
    fb = r['fb']; fa = r['fa']
    def lc_column(base, extra_k):
        for t in range(4):
            A(f"ds_read_b64_tr_b16 {vr(fb+4*t,2)}, v{r['trb']+t} offset:{base}")
            A(f"ds_read_b64_tr_b16 {vr(fb+4*t+2,2)}, v{r['trb']+t} offset:{base+2048}")
            if extra_k: A(f"ds_read_b64_tr_b16 {vr(fb+16+2*t,2)}, v{r['trc']+t} offset:{base}")
        per = 3 if extra_k else 2
        for t in range(4):
            A(f"s_waitcnt lgkmcnt({per*(3-t)})")
            A(f"v_mfma_f32_16x16x32_bf16 {vr(d+4*t,4)}, {vr(fa,4)}, {vr(fb+4*t,4)}, 0")
        if extra_k:
            for t in range(4): A(f"v_mfma_f32_16x16x16_bf16 {vr(d+4*t,4)}, {vr(fa+4,2)}, {vr(fb+16+2*t,2)}, {vr(d+4*t,4)}")
    def lc_pair9(sbase, spair, ta, tb):
        A(f"s_lshl_b32 s12, {spair}, 6"); A(f"s_sub_u32 s13, {sbase}, s77")
        for t in range(2):
            A(f"v_xor_b32 v{ta}, s12, v{r['trb']+t}"); A(f"v_add_u32 v{ta}, s13, v{ta}")
            A(f"v_xor_b32 v{tb}, s12, v{r['trc']+t}"); A(f"v_add_u32 v{tb}, s13, v{tb}")
            A(f"ds_read_b64_tr_b16 {vr(fb+4*t,2)}, v{ta}"); A(f"ds_read_b64_tr_b16 {vr(fb+4*t+2,2)}, v{ta} offset:2048")
            A(f"ds_read_b64_tr_b16 {vr(fb+16+2*t,2)}, v{tb}")
        A("s_waitcnt lgkmcnt(0)")
        for t in range(2): A(f"v_mfma_f32_16x16x32_bf16 {vr(d+4*t,4)}, {vr(fa,4)}, {vr(fb+4*t,4)}, 0")
        for t in range(2): A(f"v_mfma_f32_16x16x16_bf16 {vr(d+8+4*t,4)}, {vr(fa+4,2)}, {vr(fb+16+2*t,2)}, 0")
        A(f"v_add_f32 v{d}, v{d}, v{d+8}"); A(f"v_add_f32 v{d+4}, v{d+4}, v{d+12}")
        A(f"v_mov_b32_dpp v{d}, v{d+4} quad_perm:[0,1,2,3] row_mask:0x2 bank_mask:0xf")
        tag_dword(d, R)
    A("s_waitcnt vmcnt(5)"); A("s_barrier")
    stamp(6)
    lc_column(0, True)
    select4(d, [d, d+4, d+8, d+12]); tag_dword(d, R)
    A("s_lshl_b32 s83, s3, 8"); A("s_add_u32 s83, s83, s79")
    store2(d, r['sa'], "s83", 0, WS_GUL - WS_GU)
    sk = A.lab("sk")
    A("s_cmp_ge_u32 s80, 2"); A(f"s_cbranch_scc1 {sk}")
    lc_pair9("s82", "s80", r['t0'], r['t1'])
    A("s_mul_i32 s12, s81, 2304"); A("s_add_u32 s12, s12, s79"); A("s_lshl_b32 s13, s80, 7"); A("s_add_u32 s12, s12, s13")
    A("s_mov_b32 exec_hi, 0"); store2(d, r['sa'], "s12", 2048, WS_GUL - WS_GU); A("s_mov_b64 exec, -1")
    A(f"{sk}:")
    A("s_mul_i32 s74, s4, 576"); A("s_mul_i32 s12, s5, 36"); A("s_add_u32 s74, s74, s12"); A("s_mul_i32 s74, s74, 1152")
    sk = A.lab("sk"); sk2 = A.lab("sk")
    A("s_cmp_ge_u32 s3, 5"); A(f"s_cbranch_scc1 {sk}")
    A("s_mul_i32 s12, s3, 8*1152"); A("s_add_u32 s12, s12, s74"); A("s_add_u32 s12, s12, 1024")
    A("s_lshl_b32 s13, s3, 10"); A(f"s_add_u32 s13, s13, {S_DOWN + 8*4608}")
    A("s_cmp_lg_u32 s3, 4"); A(f"s_cbranch_scc1 {sk2}"); A("s_mov_b32 exec_hi, 0"); A(f"{sk2}:")
    dma(r['offd'], 68, "s12", "s13")
    A("s_mov_b64 exec, -1")
    A(f"{sk}:")
    A("s_lshl_b32 s12, s3, 7"); A("s_add_u32 s74, s74, s12")
    def down_dma(b):
        if cfg["d_win"] is not None and b < cfg["down_pre"]: A(f"s_waitcnt vmcnt({cfg['d_win']-1})")
        A(f"s_add_u32 s12, s74, {b*8*1152}"); A(f"s_add_u32 s13, s76, {S_DOWN + b*1024}")
        if b == 4: A("s_mov_b32 exec_hi, 0")
        dma(r['offd'], 68, "s12", "s13")
        if b == 4: A("s_mov_b64 exec, -1")
    npre = cfg["down_pre"]
    for b in range(npre): down_dma(b)
    A(f"s_waitcnt vmcnt({npre + (2 if cfg['local'] else 1)})")
    stamp(7)
    lc_column(S_UP - S_GATE, True)
    for b_ in (r['trb'], r['trc']):
        for t in range(4): A(f"v_subrev_u32 v{b_+t}, {S_GATE - S_DOWN}, v{b_+t}")
    A(f"s_add_u32 s77, s76, {S_DOWN}")
    select4(d, [d, d+4, d+8, d+12]); tag_dword(d, R)
    store2(d, r['sa'], "s83", 2304, WS_GUL - WS_GU)
    stamp(8)
    A("s_mov_b32 s79, s88")
    A("s_mov_b32 s84, 0x3ffff"); A("s_mov_b32 s85, 0x3ffff")
    def ld(): A(f"buffer_load_dwordx4 {vr(r['q'],4)}, v{r['hfa']}, s[44:47], s79 offen sc1")
    def ck():
        check_f32(r['bad'], [r['q']]); A(f"v_and_b32 v{r['bad']}, 0xff, v{r['bad']}"); A(f"v_cmp_ne_u32 vcc, 0, v{r['bad']}")
    def bt():
        for b in range(npre, 5): down_dma(b)
    A(f"s_add_u32 s82, s79, {WS_GUL - WS_GU}"); A("s_mov_b32 s83, s79")
    poll(ld, ck, base_exec="s[84:85]", first_wait=5 - npre, between=bt if npre < 5 else None, sid=1, alt=("s79", "s82", "s83") if cfg["local"] else None)
    stamp(9)
    q = r['q']
    for e in range(4): A(f"v_and_b32 v{q+e}, s7, v{q+e}")
    A(f"v_permlane32_swap_b32 v{q}, v{q+2}"); A(f"v_permlane32_swap_b32 v{q+1}, v{q+3}")
    A(f"v_add_f32 v{q}, v{q}, v{q+2}"); A(f"v_add_f32 v{q+1}, v{q+1}, v{q+3}")
    A("s_mov_b64 exec, s[84:85]")
    A(f"ds_write_b64 v{r['hfw']}, {vr(q,2)}")
    A("s_mov_b64 exec, -1")
    A("s_waitcnt lgkmcnt(0)"); A("s_barrier")
    A(f"v_min_u32 v{r['t0']}, 35, v{LANE}"); A(f"v_lshlrev_b32 v{r['t1']}, 2, v{r['t0']}"); A(f"v_add_u32 v{r['t1']}, {S_GUL}, v{r['t1']}")
    kf = r['kf']
    for w_ in range(8):
        A(f"ds_read_b32 v{kf+w_}, v{r['t1']} offset:{288*w_}"); A(f"ds_read_b32 v{kf+8+w_}, v{r['t1']} offset:{288*w_+144}")
    A("s_lshl_b32 s12, s3, 7"); A(f"s_add_u32 s12, s12, {S_HB}")
    A(f"v_lshl_add_u32 v{r['sb']}, v{r['t0']}, 1, s12")
    A(f"v_lshl_add_u32 v{r['xg']}, v{G}, 3, s12")
    A(f"v_mov_b32 v{r['xz']}, {S_ZERO}"); A("s_add_u32 s12, s12, 64"); A(f"v_mov_b32 v{r['t0']}, s12")
    A(f"v_cmp_gt_u32 vcc, 16, v{LANE}"); A(f"v_cndmask_b32 v{r['xz']}, v{r['xz']}, v{r['t0']}, vcc")
    A("s_waitcnt lgkmcnt(0)")
    for st in (4, 2, 1):
        for e in range(st):
            A(f"v_add_f32 v{kf+e}, v{kf+e}, v{kf+e+st}"); A(f"v_add_f32 v{kf+8+e}, v{kf+8+e}, v{kf+8+e+st}")
    A(f"v_mul_f32 v{kf}, {hex(f2u(-1.4426950408889634))}, v{kf}")
    A(f"v_exp_f32 v{kf}, v{kf}"); A(f"v_add_f32 v{kf}, 1.0, v{kf}"); A(f"v_rcp_f32 v{kf}, v{kf}")
    A(f"v_mul_f32 v{kf}, v{kf}, v{kf+8}"); A(f"v_cvt_pk_bf16_f32 v{kf}, v{kf}, v{kf}")
    A(f"ds_write_b16 v{r['sb']}, v{kf}")
    A("s_waitcnt lgkmcnt(0)")
    A(f"ds_read_b64 {vr(fa,2)}, v{r['xg']}"); A(f"ds_read_b64 {vr(fa+2,2)}, v{r['xg']} offset:32"); A(f"ds_read_b64 {vr(fa+4,2)}, v{r['xz']}")
    A("s_mul_i32 s79, s2, 2304"); A(f"s_add_u32 s79, s79, {WS_OP}")
    stamp(10)
    sk = A.lab("sk")
    A("s_cmp_ge_u32 s3, 2"); A(f"s_cbranch_scc1 {sk}")
    A(f"s_mov_b32 s82, {S_DOWN + 8*4608}")
    lc_pair9("s82", "s3", r['t0'], r['t1'])
    A("s_lshl_b32 s12, s3, 7"); A("s_add_u32 s12, s12, s79")
    A("s_mov_b32 exec_hi, 0"); A(f"buffer_store_dword v{d}, v{r['sa']}, s[44:47], s12 offen offset:2048 sc1"); A("s_mov_b64 exec, -1")
    A("s_waitcnt vmcnt(1)")
    jn = A.lab("jn"); A(f"s_branch {jn}")
    A(f"{sk}:")
    A("s_waitcnt vmcnt(0)")
    A(f"{jn}:")
    stamp(11)
    lc_column(0, True)
    A("s_lshl_b32 s12, s3, 8"); A("s_add_u32 s12, s12, s79")
    select4(d, [d, d+4, d+8, d+12]); tag_dword(d, R)
    A(f"buffer_store_dword v{d}, v{r['sa']}, s[44:47], s12 offen sc1")
    stamp(12)
    write_stamps()
    A("s_endpgm")
    A("L_S1:")

    A("L_P:")
    R = Regs(4); common_regs(R); r = R.d
    R("l16"); R("sa"); R("sb"); R("sc"); R("qkb"); R("pva"); R("pvb"); R("qbw"); R("qbr")
    R("tl", 4); R("xres"); R("m"); R("ms")
    R("mxw"); R("mxr"); R("pfw"); R("pfr"); R("tbw"); R("tbr"); R("pst"); R("h3d"); R("h3m"); R("pbw"); R("pbr")
    R("h4a"); R("wmr"); R("wmo"); R("wob"); R("wo9")
    R("h2", 16, 4); R("bq", 16, 4); R("s", 4, 4); R("acc", 16, 4); R("accl", 8, 4); R("fm", 12, 4)
    UVF = 0; WOF = 32
    A(f"v_lshlrev_b32 v{r['l16']}, 4, v{LANE}")
    A("s_and_b32 s72, s5, 1"); A("s_lshl_b32 s72, s72, 4"); A("s_lshl_b32 s12, s4, 1"); A("s_add_u32 s72, s72, s12"); A("s_lshr_b32 s12, s5, 3"); A("s_add_u32 s72, s72, s12")
    A("s_bfe_u32 s73, s5, 0x20001")
    A("s_lshr_b32 s74, s5, 1"); A("s_lshl_b32 s12, s4, 3"); A("s_add_u32 s74, s74, s12")
    A("s_and_b32 s75, s5, 1")
    A("s_lshl_b32 s76, s74, 7"); A("s_add_u32 s76, s76, s3")
    A("s_lshl_b32 s12, s75, 6"); A("s_xor_b32 s13, s12, 64")
    A("s_add_u32 s77, s76, s13"); A("s_add_u32 s76, s76, s12")
    A("s_lshl_b32 s76, s76, 10"); A("s_lshl_b32 s77, s77, 10")
    A(f"s_mul_i32 s78, s3, {CKS}")
    A("s_waitcnt lgkmcnt(0)")
    if cfg["ws_base"]: A(f"s_add_u32 s40, s40, {cfg['ws_base']}"); A("s_addc_u32 s41, s41, 0")
    if cfg["epoch_v"]: A(f"v_mov_b32 v{r['tagb']}, 0"); A(f"global_load_dword v{r['bad']}, v{r['tagb']}, s[40:41] nt")
    else: A("s_load_dword s6, s[40:41], 0")
    srd(52, 18, 8192*1024)
    code_prefetch("L_P0", "L_P1", r['h2'], r['t0'])
    A("L_P0:")
    srd(44, 40, WS_SIZE)
    zr = r['fm']
    for e in range(4): A(f"v_mov_b32 v{zr+e}, 0")
    def gul_lines(op):
        jn = A.lab("jn"); s4 = A.lab("sk"); s5 = A.lab("sk")
        A("s_cmp_ge_u32 s3, 6"); A(f"s_cbranch_scc1 {jn}")
        A("s_lshl_b32 s12, s4, 4"); A("s_add_u32 s12, s12, s5")
        A("s_mul_i32 s12, s12, 4608"); A("s_lshl_b32 s13, s3, 10"); A("s_add_u32 s12, s12, s13"); A(f"s_add_u32 s12, s12, {WS_GUL}")
        A("s_cmp_lg_u32 s3, 5"); A(f"s_cbranch_scc1 {s5}")
        A("s_lshl_b32 s12, s72, 2"); A("s_add_u32 s12, s12, s73"); A("s_lshl_b32 s12, s12, 9"); A(f"s_add_u32 s12, s12, {WS_CPL}")
        A(f"{s5}:")
        A("s_cmp_lt_u32 s3, 4"); A(f"s_cbranch_scc1 {s4}"); A("s_mov_b32 exec_hi, 0"); A(f"{s4}:")
        op("s12"); A("s_mov_b64 exec, -1")
        A(f"{jn}:")
    if cfg["hints"] == "atomic":
        A("s_lshl_b32 s89, s75, 10"); A("s_lshl_b32 s12, s4, 7"); A("s_add_u32 s89, s89, s12"); A(f"s_add_u32 s89, s89, {WS_HINT}")
        sk = A.lab("sk"); A("s_lshr_b32 s12, s5, 1"); A("s_or_b32 s12, s12, s3"); A("s_cmp_lg_u32 s12, 0"); A(f"s_cbranch_scc1 {sk}")
        A("s_mov_b64 exec, 0xff"); A(f"buffer_store_dwordx4 {vr(zr,4)}, v{r['l16']}, s[44:47], s89 offen sc1"); A("s_mov_b64 exec, -1")
        A(f"{sk}:")
    warm = cfg["local"] and cfg["touch"]
    def gul_zero():
        if warm: gul_lines(lambda so: A(f"buffer_store_dwordx4 {vr(zr,4)}, v{r['l16']}, s[44:47], {so} offen sc1"))
    if cfg["wuk_pf"]:
        srd(68, 22, 512*8192)
        A("s_lshr_b32 s12, s5, 2"); A("s_lshl_b32 s13, s4, 2"); A("s_add_u32 s12, s12, s13"); A("s_lshl_b32 s12, s12, 8")
        A("s_and_b32 s13, s5, 3"); A("s_lshl_b32 s13, s13, 3"); A("s_add_u32 s13, s13, s3"); A("s_lshl_b32 s13, s13, 17"); A("s_add_u32 s12, s12, s13")
        A(f"v_lshlrev_b32 v{r['t0']}, 4, v{N}"); A(f"v_lshl_add_u32 v{r['t0']}, v{G}, 13, v{r['t0']}")
        for i in range(4):
            A(f"buffer_load_dwordx4 {vr(r['bq']+4*i,4)}, v{r['t0']}, s[68:71], s12 offen {NT}")
            if i < 3: A(f"s_add_u32 s12, s12, {4*8192}")
    def ck_dma(i):
        sreg = "s76" if i < 8 else "s77"
        if cfg["p_win1"] is not None and cfg["p_win1"] <= i < cfg["p_n1"]: A(f"s_waitcnt vmcnt({cfg['p_win1']-1})")
        A(f"s_add_u32 s13, s78, {P_CK + i*8*CKS}")
        dma(r['l16'], 52, sreg, "s13")
        if i % 8 < 7: A(f"s_add_u32 {sreg}, {sreg}, 8192")
    if not cfg["p_delay"]: ck_dma(0)
    srd(56, 24, 512*8192); srd(60, 26, 4096*1152); srd(48, 16, 1152); srd(64, 36, 1152)
    A(f"v_lshlrev_b32 v{r['sa']}, 2, v{LANE}")
    A("s_lshl_b32 s12, s3, 4"); A(f"v_add_u32 v{r['t0']}, s12, v{N}"); A(f"v_mul_u32_u24 v{r['t0']}, {CKS}, v{r['t0']}")
    A(f"v_lshl_add_u32 v{r['qkb']}, v{G}, 4, v{r['t0']}")
    A(f"v_lshrrev_b32 v{r['t0']}, 2, v{N}"); A(f"v_lshl_add_u32 v{r['t0']}, v{G}, 2, v{r['t0']}"); A(f"v_mul_u32_u24 v{r['t0']}, {CKS}, v{r['t0']}")
    A(f"v_and_b32 v{r['t1']}, 3, v{N}"); A(f"v_lshl_add_u32 v{r['t0']}, v{r['t1']}, 3, v{r['t0']}")
    A("s_lshl_b32 s12, s3, 7"); A(f"v_add_u32 v{r['pva']}, s12, v{r['t0']}"); A(f"v_add_u32 v{r['pvb']}, {64*CKS}, v{r['pva']}")
    A(f"v_bfe_u32 v{r['t0']}, v{LANE}, 1, 2"); A("s_lshl_b32 s12, s3, 1"); A(f"v_xor_b32 v{r['t1']}, s12, v{r['t0']}")
    A(f"v_lshlrev_b32 v{r['t1']}, 4, v{r['t1']}"); A(f"v_lshl_add_u32 v{r['t1']}, v{r['t0']}, 8, v{r['t1']}")
    A(f"v_lshrrev_b32 v{r['t0']}, 3, v{LANE}"); A(f"v_mul_u32_u24 v{r['t0']}, 1088, v{r['t0']}"); A(f"v_add_u32 v{r['t1']}, v{r['t1']}, v{r['t0']}")
    A(f"v_and_b32 v{r['t0']}, 1, v{LANE}"); A(f"v_lshl_add_u32 v{r['t1']}, v{r['t0']}, 3, v{r['t1']}"); A(f"v_add_u32 v{r['qbw']}, {P_QB}, v{r['t1']}")
    A(f"v_xor_b32 v{r['t0']}, v{N}, v{G}"); A(f"v_lshlrev_b32 v{r['t0']}, 4, v{r['t0']}"); A(f"v_lshl_add_u32 v{r['t0']}, v{G}, 8, v{r['t0']}")
    A(f"v_add_u32 v{r['qbr']}, {P_QB}, v{r['t0']}")
    h2pos = cfg["h2_pos"]
    assert 8 <= h2pos <= 16
    if not cfg["p_delay"]:
        for i in range(1, 8): ck_dma(i)
    addr_q_style(R); addr_trq(R, P_WUV, 2); addr_lc_src(r['offd'], R, 1152); addr_lc_tr(R, r['trb'])
    def p_tags():
        A("s_waitcnt lgkmcnt(0)")
        tags(R, 63)
        for j in range(4):
            A(f"v_bfe_u32 v{r['t0']}, v{r['tagb']}, {2*j}, 1"); A(f"v_bfe_u32 v{r['t1']}, v{r['tagb']}, {2*j+1}, 1")
            A(f"v_lshl_or_b32 v{r['tl']+j}, v{r['t1']}, 16, v{r['t0']}")
    if cfg["gate_p"]: p_tags()
    t0 = r['t0']; t1 = r['t1']
    A(f"v_lshlrev_b32 v{t0}, 5, v{N}"); A(f"v_add_u32 v{r['mxr']}, {P_MX}, v{t0}"); A("s_lshl_b32 s12, s3, 2"); A(f"v_add_u32 v{r['mxw']}, s12, v{r['mxr']}")
    A("s_lshr_b32 s12, s3, 1"); A("s_lshl_b32 s12, s12, 10"); A("s_and_b32 s13, s3, 1"); A("s_lshl_b32 s13, s13, 3"); A("s_add_u32 s12, s12, s13")
    A(f"v_add_u32 v{r['pfr']}, {P_PF}, v{r['l16']}"); A(f"v_add_u32 v{r['pfw']}, s12, v{r['pfr']}")
    A("s_mul_i32 s12, s3, 2304"); A(f"s_add_u32 s12, s12, {P_TB}")
    A(f"v_mul_u32_u24 v{t0}, 144, v{N}"); A(f"v_lshl_add_u32 v{t0}, v{G}, 3, v{t0}"); A(f"v_add_u32 v{r['tbw']}, s12, v{t0}")
    A(f"v_lshrrev_b32 v{t0}, 3, v{LANE}"); A(f"v_and_b32 v{t1}, 7, v{LANE}"); A(f"v_lshlrev_b32 v{t1}, 4, v{t1}")
    A(f"v_lshl_add_u32 v{r['pst']}, v{t0}, 16, v{t1}")
    A(f"v_mul_u32_u24 v{t0}, 144, v{t0}"); A(f"v_add3_u32 v{r['tbr']}, v{t0}, v{t1}, s12")
    A(f"v_lshlrev_b32 v{t0}, 4, v{N}"); A(f"v_lshl_add_u32 v{r['h3d']}, v{G}, 10, v{t0}"); A(f"v_lshrrev_b32 v{t1}, 3, v{N}"); A(f"v_lshl_add_u32 v{t1}, v{t1}, 2, v{G}"); A(f"v_lshlrev_b32 v{r['h3m']}, 9, v{t1}")
    A(f"v_lshrrev_b32 v{t0}, 2, v{N}"); A(f"v_lshlrev_b32 v{t0}, 4, v{t0}")
    A(f"v_and_b32 v{t1}, 1, v{N}"); A(f"v_lshl_add_u32 v{t0}, v{t1}, 3, v{t0}")
    A(f"v_bfe_u32 v{t1}, v{N}, 1, 1"); A(f"v_lshl_add_u32 v{t0}, v{t1}, 1, v{t0}")
    A(f"v_lshrrev_b32 v{t1}, 1, v{G}"); A(f"v_lshl_add_u32 v{t0}, v{t1}, 2, v{t0}")
    A(f"v_and_b32 v{t1}, 1, v{G}"); A(f"v_add_u32 v{t0}, v{t0}, v{t1}")
    A("s_mul_i32 s12, s3, 272"); A(f"s_add_u32 s12, s12, {P_PB}"); A(f"v_lshl_add_u32 v{r['pbw']}, v{t0}, 2, s12")
    A(f"v_lshlrev_b32 v{t1}, 4, v{t1}"); A(f"v_add_u32 v{r['wmr']}, {P_MX}, v{t1}"); A(f"v_xor_b32 v{r['wmo']}, 16, v{r['wmr']}")
    A(f"v_and_b32 v{t0}, 7, v{N}"); A(f"v_mul_u32_u24 v{t0}, 272, v{t0}"); A(f"v_lshl_add_u32 v{t0}, v{G}, 4, v{t0}"); A(f"v_add_u32 v{r['pbr']}, {P_PB}, v{t0}")
    A(f"v_lshrrev_b32 v{t0}, 2, v{N}"); A(f"v_lshlrev_b32 v{t0}, 9, v{t0}"); A(f"v_and_b32 v{t1}, 1, v{N}"); A(f"v_lshl_add_u32 v{t0}, v{t1}, 6, v{t0}")
    A(f"v_lshl_add_u32 v{r['h4a']}, v{G}, 4, v{t0}")
    A("s_lshl_b32 s83, s3, 12"); A(f"s_add_u32 s12, s83, {P_WO}"); A(f"v_add_u32 v{r['wob']}, s12, v{r['trb']}")
    A("s_and_b32 s12, s3, 1"); A("s_lshl_b32 s12, s12, 6"); A(f"v_xor_b32 v{t0}, s12, v{r['trb']}"); A(f"v_add_u32 v{r['wo9']}, {P_WO9}, v{t0}")
    A("s_lshl_b32 s80, s73, 7"); A("s_lshl_b32 s12, s3, 2"); A("s_add_u32 s80, s80, s12"); A("s_lshl_b32 s80, s80, 13")
    A("s_lshl_b32 s12, s72, 8"); A("s_add_u32 s80, s80, s12"); A("s_lshl_b32 s81, s3, 10")
    A("s_lshl_b32 s82, s72, 7"); A("s_lshl_b32 s12, s73, 5"); A("s_add_u32 s82, s82, s12"); A("s_mul_i32 s82, s82, 1152")
    def p_prewrite():
        if not cfg["prew2"]: return
        A("s_lshl_b32 s12, s75, 20"); A("s_lshl_b32 s13, s74, 10"); A("s_add_u32 s12, s12, s13"); A("s_lshl_b32 s13, s3, 7"); A("s_add_u32 s12, s12, s13")
        A(f"s_add_u32 s12, s12, {WS_PART}"); A(f"s_add_u32 s13, s12, {8 << 16}")
        A(f"buffer_store_dwordx4 {vr(zr,4)}, v{r['pst']}, s[44:47], s12 offen sc1"); A(f"buffer_store_dwordx4 {vr(zr,4)}, v{r['pst']}, s[44:47], s13 offen sc1")
        op_prewrite(zr, r['l16'], 1)
        sk = A.lab("sk"); A("s_cmp_lg_u32 s3, 0"); A(f"s_cbranch_scc1 {sk}")
        A("s_lshl_b32 s12, s75, 8"); A("s_lshl_b32 s13, s74, 9"); A("s_add_u32 s12, s12, s13"); A(f"s_add_u32 s12, s12, {WS_ML}")
        A("s_mov_b64 exec, 0xffff"); A(f"buffer_store_dwordx4 {vr(zr,4)}, v{r['l16']}, s[44:47], s12 offen sc1"); A("s_mov_b64 exec, -1")
        A(f"{sk}:")
    if cfg["gate_s"]: go_write("0", t0, r['sa'])
    for i in range(cfg["p_pre"] if cfg["p_delay"] else 0): ck_dma(i)
    if cfg["gate_p"]: go_wait(t0, r['sa'])
    stamp(15)
    gul_zero()
    pipe = cfg["p_mode"] == "pipe"
    if not pipe:
        for i in range(cfg["p_pre"] if cfg["p_delay"] else 8, h2pos):
            if i == cfg["prew_pos"]: p_prewrite()
            ck_dma(i)
        if not cfg["gate_p"]: p_tags()
    A("s_lshl_b32 s79, s75, 4"); A("s_lshl_b32 s12, s3, 1"); A("s_add_u32 s79, s79, s12"); A("s_lshl_b32 s79, s79, 11"); A(f"s_add_u32 s79, s79, {WS_QA}")
    if cfg["qa_rep"] > 1: A(f"s_and_b32 s12, s4, {cfg['qa_rep']-1}"); A("s_lshl_b32 s12, s12, 16"); A("s_add_u32 s79, s79, s12")
    A("s_lshl_b32 s12, s4, 12"); A("s_lshl_b32 s13, s75, 11"); A("s_add_u32 s12, s12, s13"); A(f"s_add_u32 s12, s12, {WS_HINT}")
    A("s_mov_b32 s84, s12")
    h2 = r['h2']
    def pv_frags(v0, v1):
        for v in range(v0, v1):
            for u in range(4):
                for rd in range(2):
                    b_ = r['pva'] if v < 2 else r['pvb']
                    A(f"ds_read_b64_tr_b16 {ar(64 + (v*4+u)*4 + 2*rd, 2)}, v{b_} offset:{(32*(v%2) + 16*rd)*CKS + 32*u}")
    def qk_frags():
        for t in range(16): A(f"ds_read_b128 {ar(4*t,4)}, v{r['qkb']} offset:{64*t}")
    def ld():
        for e in range(4): A(f"buffer_load_dwordx4 {vr(h2+4*e,4)}, v{r['l16']}, s[44:47], s79 offen offset:{1024*e} sc1")
    def ck():
        check_f32(r['bad'], [h2, h2+4, h2+8, h2+12]); A(f"v_and_b32 v{r['bad']}, 0xff, v{r['bad']}"); A(f"v_cmp_ne_u32 vcc, 0, v{r['bad']}")
    def wuv_dma(i):
        A(f"s_add_u32 s12, s80, {i*32*8192}"); A(f"s_add_u32 s13, s81, {P_WUV + i*8192}"); dma(r['offq'], 56, "s12", "s13")
    def wo9():
        sk = A.lab("sk"); A("s_cmp_ge_u32 s3, 4"); A(f"s_cbranch_scc1 {sk}")
        A("s_mul_i32 s12, s3, 8*1152"); A("s_add_u32 s12, s12, s82"); A("s_add_u32 s12, s12, 1024"); A(f"s_add_u32 s13, s81, {P_WO9}")
        dma(r['offd'], 60, "s12", "s13"); A(f"{sk}:")
        A("s_lshl_b32 s12, s3, 7"); A("s_add_u32 s82, s82, s12")
    def wo_dma(b):
        A(f"s_add_u32 s12, s82, {b*8*1152}"); A(f"s_add_u32 s13, s83, {P_WO + b*1024}"); dma(r['offd'], 60, "s12", "s13")
    def convert():
        for e in range(16): A(f"v_and_b32 v{h2+e}, s7, v{h2+e}")
        for e in range(8): A(f"v_cvt_pk_bf16_f32 v{h2+e}, v{h2+2*e}, v{h2+2*e+1}")
        A(f"v_xor_b32 v{r['t0']}, 16, v{r['qbw']}")
        A(f"ds_write_b64 v{r['qbw']}, {vr(h2,2)}"); A(f"ds_write_b64 v{r['qbw']}, {vr(h2+2,2)} offset:{8*1088}")
        A(f"ds_write_b64 v{r['t0']}, {vr(h2+4,2)}"); A(f"ds_write_b64 v{r['t0']}, {vr(h2+6,2)} offset:{8*1088}")
    def pv_tile(t):
        v, rd = t // 2, t % 2
        for u in range(4):
            b_ = r['pva'] if v < 2 else r['pvb']
            A(f"ds_read_b64_tr_b16 {ar(64 + (v*4+u)*4 + 2*rd, 2)}, v{b_} offset:{(32*(v%2) + 16*rd)*CKS + 32*u}")
    def qk_tiles(ta, tb):
        sk = A.lab("sk"); go = A.lab("go")
        A(f"s_cmp_eq_u32 s3, {ta}"); A(f"s_cbranch_scc1 {go}"); A(f"s_cmp_lg_u32 s3, {tb}"); A(f"s_cbranch_scc1 {sk}")
        A(f"{go}:"); qk_frags(); A(f"{sk}:")
    def rows(spec, win):
        for kind, i in spec:
            if win is not None: A(f"s_waitcnt vmcnt({win-1})")
            A(f"s_add_u32 s12, {'s76' if kind == 'o' else 's77'}, {i*8192}"); A(f"s_add_u32 s13, s78, {P_CK + (i + (0 if kind == 'o' else 8))*8*CKS}")
            dma(r['l16'], 52, "s12", "s13")
    def hint_read():
        A(f"v_mov_b32 v{r['bad']}, 0"); A(f"buffer_atomic_add v{r['bad']}, v{r['sa']}, s[44:47], s89 offen sc0 sc1")
    def stage_tail():
        p_prewrite()
        for i in range(4): wuv_dma(i)
        if cfg["prew2"]:
            sk = A.lab("sk"); jn = A.lab("jn")
            A("s_cmp_ge_u32 s3, 4"); A(f"s_cbranch_scc1 {sk}"); A("s_waitcnt vmcnt(7) lgkmcnt(0)"); A(f"s_branch {jn}")
            A(f"{sk}:"); A("s_waitcnt vmcnt(6) lgkmcnt(0)"); A(f"{jn}:")
        else: A("s_waitcnt vmcnt(4) lgkmcnt(0)")
        A("s_barrier")
    if pipe:
        assert cfg["p_delay"] and cfg["hints"] == "atomic" and cfg["p_pre"] == 0
        w0, w1, w2 = cfg["pw"]
        rows([("o",0),("o",1),("o",2),("o",3)], w0)
        rows([("o",4),("p",0),("o",5),("p",1)], w1)
        if not cfg["gate_p"]: p_tags()
        A(f"v_mov_b32 v{r['sb']}, {P_FR}")
        A("s_waitcnt vmcnt(4)"); A("s_barrier")
        stamp(1)
        sk = A.lab("sk"); A("s_cmp_lg_u32 s3, 0"); A(f"s_cbranch_scc1 {sk}"); A("s_mov_b64 exec, 1"); hint_read(); A("s_mov_b64 exec, -1"); A(f"{sk}:")
        rows([("o",6),("p",2),("o",7),("p",3)], w2)
        qk_tiles(0, 1); pv_tile(0); pv_tile(1)
        A("s_waitcnt vmcnt(4)")
        sk = A.lab("sk"); A("s_cmp_lg_u32 s3, 0"); A(f"s_cbranch_scc1 {sk}"); A("s_mov_b64 exec, 1"); A(f"ds_write_b32 v{r['sb']}, v{r['bad']}"); A("s_mov_b64 exec, -1"); A(f"{sk}:")
        A("s_waitcnt lgkmcnt(0)"); A("s_barrier")
        A(f"ds_read_b32 v{r['bad']}, v{r['sb']}")
        if warm: gul_lines(lambda so: A(f"buffer_load_dwordx4 {vr(r['acc'],4)}, v{r['l16']}, s[44:47], {so} offen"))
        A("s_waitcnt lgkmcnt(0)"); A(f"v_readfirstlane_b32 s88, v{r['bad']}")
        stamp(22)
        NR = A.lab("notready"); QK = A.lab("qk")
        A("s_cmp_lt_u32 s88, 16"); A(f"s_cbranch_scc1 {NR}")
        tailrows = [("p",4),("p",5),("p",6),("p",7)]
        def bt():
            rows(tailrows, None)
            qk_tiles(2, 4); pv_tile(2); pv_tile(4)
            A("s_waitcnt vmcnt(8)"); A("s_barrier")
            stamp(2)
            if cfg["gate_s"]: go_write("s6", t0, r['sa'])
            qk_tiles(3, 5); pv_tile(3); pv_tile(5)
        poll(ld, ck, between=bt, sid=0, first_wait=4)
        stamp(3)
        convert()
        stage_tail()
        qk_tiles(6, 7)
        A("s_mov_b32 s88, 1")
        A(f"s_branch {QK}")
        A(f"{NR}:")
        rows(tailrows, None)
        qk_tiles(2, 4); pv_tile(2); pv_tile(4)
        A("s_waitcnt vmcnt(4)"); A("s_barrier")
        stamp(2)
        if cfg["gate_s"]: go_write("s6", t0, r['sa'])
        qk_tiles(3, 5); pv_tile(3); pv_tile(5)
        stage_tail()
        qk_tiles(6, 7); pv_tile(6); pv_tile(7)
        sk = A.lab("sk"); L = A.lab("hint")
        A("s_cmp_lg_u32 s3, 0"); A(f"s_cbranch_scc1 {sk}")
        A("s_mov_b32 s14, 0"); A("s_mov_b64 exec, 1")
        A(f"{L}:")
        hint_read(); A("s_waitcnt vmcnt(0)")
        A(f"v_readfirstlane_b32 s15, v{r['bad']}"); A("s_add_u32 s14, s14, 1"); A(f"s_cmp_ge_u32 s14, {cfg['gate_cap']}"); A("s_cselect_b32 s15, 16, s15")
        A("s_cmp_lt_u32 s15, 16"); A(f"s_cbranch_scc1 {L}")
        A("s_mov_b64 exec, -1")
        if cfg["stamps"]: A(f"v_writelane_b32 v0, s14, 28")
        A(f"{sk}:")
        A("s_barrier")
        stamp(14)
        poll(ld, ck, sid=0)
        stamp(3)
        convert()
        A("s_mov_b32 s88, 0")
        A("s_waitcnt lgkmcnt(0)"); A("s_barrier")
        A(f"{QK}:")
        stamp(4)
    else:
        assert h2pos == 16
        stamp(1)
        A("s_waitcnt vmcnt(8)"); A("s_barrier")
        stamp(2)
        if cfg["gate_s"] and cfg["go_at"] == "own": go_write("s6", t0, r['sa'])
        if warm: gul_lines(lambda so: A(f"buffer_load_dwordx4 {vr(r['acc'],4)}, v{r['l16']}, s[44:47], {so} offen"))
        def own_frags():
            sk = A.lab("sk"); A("s_cmp_ge_u32 s3, 4"); A(f"s_cbranch_scc1 {sk}"); qk_frags(); A(f"{sk}:")
            pv_frags(0, 2)
        def other_frags():
            sk = A.lab("sk"); A("s_cmp_lt_u32 s3, 4"); A(f"s_cbranch_scc1 {sk}"); qk_frags(); A(f"{sk}:")
            pv_frags(2, 4)
        if cfg["hints"] == "atomic":
            own_frags()
            A("s_waitcnt vmcnt(0) lgkmcnt(0)"); A("s_barrier")
            other_frags()
            sk = A.lab("sk"); L = A.lab("hint")
            A("s_cmp_lg_u32 s3, 0"); A(f"s_cbranch_scc1 {sk}")
            A("s_mov_b32 s14, 0"); A("s_mov_b64 exec, 1")
            A(f"{L}:")
            A(f"v_mov_b32 v{r['bad']}, 0"); A(f"buffer_atomic_add v{r['bad']}, v{r['sa']}, s[44:47], s89 offen sc0 sc1"); A("s_waitcnt vmcnt(0)")
            A(f"v_readfirstlane_b32 s15, v{r['bad']}"); A("s_add_u32 s14, s14, 1"); A(f"s_cmp_ge_u32 s14, {cfg['gate_cap']}"); A("s_cselect_b32 s15, 16, s15")
            A("s_cmp_lt_u32 s15, 16"); A(f"s_cbranch_scc1 {L}")
            A("s_mov_b64 exec, -1")
            if cfg["stamps"]: A(f"v_writelane_b32 v0, s14, 28")
            A(f"{sk}:")
            A("s_barrier")
            stamp(14)
            poll(ld, ck, sid=0)
        elif cfg["hints"]:
            A(f"v_lshlrev_b32 v{r['sb']}, 7, v{N}")
            def hld(): A(f"buffer_load_dword v{r['bad']}, v{r['sb']}, s[44:47], s84 offen sc1")
            def hck(): A(f"v_cmp_ne_u32 vcc, s6, v{r['bad']}")
            def hbt():
                own_frags()
                A("s_waitcnt vmcnt(1) lgkmcnt(0)"); A("s_barrier")
                if cfg["frags_first"]: other_frags()
            poll(hld, hck, base_exec="0xffff", between=hbt, sid=4)
            stamp(14)
            poll(ld, ck, between=None if cfg["frags_first"] else other_frags, sid=0)
        else:
            def bt():
                own_frags()
                A("s_waitcnt vmcnt(4) lgkmcnt(0)"); A("s_barrier")
                other_frags()
            poll(ld, ck, between=bt, sid=0)
        stamp(3)
        for e in range(16): A(f"v_and_b32 v{h2+e}, s7, v{h2+e}")
        for e in range(8): A(f"v_cvt_pk_bf16_f32 v{h2+e}, v{h2+2*e}, v{h2+2*e+1}")
        A(f"v_xor_b32 v{r['t0']}, 16, v{r['qbw']}")
        A(f"ds_write_b64 v{r['qbw']}, {vr(h2,2)}"); A(f"ds_write_b64 v{r['qbw']}, {vr(h2+2,2)} offset:{8*1088}")
        A(f"ds_write_b64 v{r['t0']}, {vr(h2+4,2)}"); A(f"ds_write_b64 v{r['t0']}, {vr(h2+6,2)} offset:{8*1088}")
        if cfg["gate_s"] and cfg["go_at"] == "h2": go_write("s6", t0, r['sa'])
        if cfg["prew_pos"] == 16: p_prewrite()
        for i in range(4): wuv_dma(i)
        A("s_waitcnt lgkmcnt(0)"); A("s_barrier")
        stamp(4)
    bq = r['bq']; s_ = r['s']
    for t in range(4): A(f"ds_read_b128 {vr(bq+4*t,4)}, v{r['qbr']} offset:{1088*t}")
    for t in range(16):
        A(f"s_waitcnt lgkmcnt({min(3, 15-t)})")
        A(f"v_mfma_f32_16x16x32_bf16 {vr(s_,4)}, {ar(4*t,4)}, {vr(bq+4*(t%4),4)}, {'0' if t == 0 else vr(s_,4)}")
        if t + 4 < 16: A(f"ds_read_b128 {vr(bq+4*(t%4),4)}, v{r['qbr']} offset:{1088*(t+4)}")
    m = r['m']
    if pipe:
        sk = A.lab("sk"); A("s_cmp_eq_u32 s88, 0"); A(f"s_cbranch_scc1 {sk}"); pv_tile(6); pv_tile(7); A(f"{sk}:")
    A(f"v_max3_f32 v{m}, v{s_}, v{s_+1}, v{s_+2}"); A(f"v_max_f32 v{m}, v{m}, v{s_+3}")
    allreduce_groups(m, t0, "v_max_f32")
    A("s_mov_b64 exec, 0xffff"); A(f"ds_write_b32 v{r['mxw']}, v{m}"); A("s_mov_b64 exec, -1")
    A(f"s_mov_b32 s15, {hex(f2u(SCALE2))}")
    A("s_waitcnt lgkmcnt(0)"); A("s_barrier")
    stamp(5)
    A(f"ds_read_b128 {vr(bq,4)}, v{r['mxr']}"); A(f"ds_read_b128 {vr(bq+4,4)}, v{r['mxr']} offset:16")
    A("s_waitcnt lgkmcnt(0)")
    A(f"v_max3_f32 v{m}, v{bq}, v{bq+1}, v{bq+2}"); A(f"v_max3_f32 v{t0}, v{bq+3}, v{bq+4}, v{bq+5}")
    A(f"v_max3_f32 v{m}, v{m}, v{bq+6}, v{bq+7}"); A(f"v_max_f32 v{m}, v{m}, v{t0}")
    A(f"v_mul_f32 v{r['ms']}, s15, v{m}")
    for e in range(4): A(f"v_fma_f32 v{s_+e}, v{s_+e}, s15, -v{r['ms']}")
    for e in range(4): A(f"v_exp_f32 v{s_+e}, v{s_+e}")
    A(f"v_cvt_pk_bf16_f32 v{s_}, v{s_}, v{s_+1}"); A(f"v_cvt_pk_bf16_f32 v{s_+1}, v{s_+2}, v{s_+3}")
    A(f"ds_write_b64 v{r['pfw']}, {vr(s_,2)}")
    A("s_waitcnt lgkmcnt(0)"); A("s_barrier")
    for v in range(4): A(f"ds_read_b128 {vr(bq+4*v,4)}, v{r['pfr']} offset:{1024*v}")
    stamp(6)
    acc = r['acc']
    for v in range(4):
        A(f"s_waitcnt lgkmcnt({3-v})")
        for u in range(4):
            A(f"v_mfma_f32_16x16x32_bf16 {vr(acc+4*u,4)}, {ar(64+(v*4+u)*4,4)}, {vr(bq+4*v,4)}, {'0' if v == 0 else vr(acc+4*u,4)}")
    sk = A.lab("sk"); A("s_cmp_lg_u32 s3, 0"); A(f"s_cbranch_scc1 {sk}")
    for e in range(4): A(f"v_mov_b32 v{h2+e}, 0x3f803f80")
    for v in range(4): A(f"v_mfma_f32_16x16x32_bf16 {vr(r['accl'],4)}, {vr(h2,4)}, {vr(bq+4*v,4)}, {'0' if v == 0 else vr(r['accl'],4)}")
    A(f"{sk}:")
    A("s_lshl_b32 s79, s75, 20"); A("s_lshl_b32 s12, s74, 10"); A("s_add_u32 s79, s79, s12"); A("s_lshl_b32 s12, s3, 7"); A("s_add_u32 s79, s79, s12")
    A(f"s_add_u32 s79, s79, {WS_PART}"); A(f"s_add_u32 s84, s79, {8 << 16}")
    A("s_mov_b32 s15, 0x07060302")
    for u in range(4):
        A(f"v_perm_b32 v{acc+4*u}, v{acc+4*u+1}, v{acc+4*u}, s15"); A(f"v_perm_b32 v{acc+4*u+1}, v{acc+4*u+3}, v{acc+4*u+2}, s15")
        A(f"ds_write_b64 v{r['tbw']}, {vr(acc+4*u,2)} offset:{32*u}")
    A("s_mov_b32 s15, 0xfffefffe")
    A("s_waitcnt lgkmcnt(0)")
    A(f"ds_read_b128 {vr(bq,4)}, v{r['tbr']}"); A(f"ds_read_b128 {vr(bq+4,4)}, v{r['tbr']} offset:{8*144}")
    for hh in range(2):
        A(f"s_waitcnt lgkmcnt({1-hh})")
        for j in range(4): A(f"v_and_or_b32 v{bq+4*hh+j}, v{bq+4*hh+j}, s15, v{r['tl']+j}")
        A(f"buffer_store_dwordx4 {vr(bq+4*hh,4)}, v{r['pst']}, s[44:47], {'s79' if hh == 0 else 's84'} offen sc1")
    sk = A.lab("sk"); A("s_cmp_lg_u32 s3, 0"); A(f"s_cbranch_scc1 {sk}")
    A(f"v_mov_b32 v{h2}, v{r['ms']}"); A(f"v_mov_b32 v{h2+1}, v{r['accl']}"); A(f"v_mov_b32 v{h2+2}, s6"); A(f"v_mov_b32 v{h2+3}, s6")
    A("s_lshl_b32 s12, s75, 8"); A("s_lshl_b32 s13, s74, 9"); A("s_add_u32 s12, s12, s13"); A(f"s_add_u32 s12, s12, {WS_ML}")
    A("s_mov_b64 exec, 0xffff"); A(f"buffer_store_dwordx4 {vr(h2,4)}, v{r['l16']}, s[44:47], s12 offen sc1"); A("s_mov_b64 exec, -1")
    A(f"{sk}:")
    stamp(7)
    cfg["wo_early"] = cfg["wo_pos"] == "early"
    if cfg["wo_early"]:
        wo9()
        for b in range(4): wo_dma(b)
    A("s_lshl_b32 s79, s72, 16"); A("s_lshl_b32 s12, s3, 13"); A("s_add_u32 s79, s79, s12"); A("s_lshl_b32 s12, s73, 8"); A("s_add_u32 s79, s79, s12")
    A(f"s_add_u32 s79, s79, {WS_PART}"); A("s_add_u32 s84, s79, 4096")
    A("s_lshl_b32 s74, s72, 4"); A("s_add_u32 s74, s74, s83"); A(f"s_add_u32 s74, s74, {WS_ML}")
    mla = acc; mlb = acc + 4
    if cfg["h3_ack"]: A(f"s_waitcnt vmcnt({4 if cfg['wo_early'] else 0})"); stamp(21)
    def ld():
        A(f"buffer_load_dwordx4 {vr(mla,4)}, v{r['h3m']}, s[44:47], s74 offen sc1")
        A(f"buffer_load_dwordx4 {vr(bq,4)}, v{r['h3d']}, s[44:47], s79 offen sc1")
        A(f"buffer_load_dwordx4 {vr(bq+4,4)}, v{r['h3d']}, s[44:47], s84 offen sc1")
    def ck():
        A(f"v_xor_b32 v{r['bad']}, v{bq}, v{r['tl']}")
        for e in range(1, 8): A(f"v_bitop3_b32 v{r['bad']}, v{bq+e}, v{r['tl']+e%4}, v{r['bad']} bitop3:0xbe")
        A(f"v_and_b32 v{r['bad']}, 0x10001, v{r['bad']}")
        A(f"v_bitop3_b32 v{r['bad']}, v{mla+2}, s6, v{r['bad']} bitop3:0xbe")
        A(f"v_cmp_ne_u32 vcc, 0, v{r['bad']}")
    def bt():
        if cfg["wo_pos"] == "mid":
            wo9()
            for b in range(4): wo_dma(b)
        if not cfg["h3_ack"]: A(f"s_waitcnt vmcnt({5 if cfg['wo_pos'] == 'late' else 9})")
        A("s_barrier")
        sk = A.lab("sk"); A("s_cmp_ge_u32 s3, 4"); A(f"s_cbranch_scc1 {sk}")
        A(f"v_xor_b32 v{t0}, 32, v{r['trq']}")
        for q in range(8):
            A(f"ds_read_b64_tr_b16 {ar(UVF+2*q,2)}, v{r['trq']} offset:{4096*q}"); A(f"ds_read_b64_tr_b16 {ar(UVF+16+2*q,2)}, v{t0} offset:{4096*q}")
        A(f"{sk}:")
        A("s_mov_b32 s15, 0x10000"); A("s_mov_b32 s13, 0xfffe0000"); A(f"v_mov_b32 v{t1}, 0x10000")
    poll(ld, ck, wqm=True, between=bt, sid=1, first_wait=4 if cfg["wo_pos"] == "mid" else 0)
    stamp(8)
    un = h2
    def unpack(e):
        A(f"v_lshl_or_b32 v{un+2*e}, v{bq+e}, 16, s15"); A(f"v_and_or_b32 v{un+2*e+1}, v{bq+e}, s13, v{t1}")
    lw = m + 1
    assert r['ms'] == m + 1
    A(f"v_max_f32_dpp v{m}, v{mla}, v{mla} row_ror:8 row_mask:0xf bank_mask:0xf"); A(f"v_mov_b32 v{t0}, v{m}"); unpack(0)
    A(f"v_permlane16_swap_b32 v{m}, v{t0}"); A(f"v_max_f32 v{m}, v{m}, v{t0}"); A(f"v_mov_b32 v{t0}, v{m}"); unpack(1)
    A(f"v_permlane32_swap_b32 v{m}, v{t0}"); A(f"v_max_f32 v{m}, v{m}, v{t0}")
    A(f"v_sub_f32 v{mla}, v{mla}, v{m}"); A(f"v_exp_f32 v{mla}, v{mla}")
    unpack(2); unpack(3)
    A(f"v_mul_f32 v{lw}, v{mla}, v{mla+1}")
    A(f"v_mov_b32_dpp v{mlb}, v{mla} row_newbcast:8 row_mask:0xf bank_mask:0xf"); A(f"v_mov_b32_dpp v{mla}, v{mla} row_newbcast:0 row_mask:0xf bank_mask:0xf")
    for e in range(4, 8): unpack(e)
    A(f"v_add_f32_dpp v{lw}, v{lw}, v{lw} row_ror:8 row_mask:0xf bank_mask:0xf")
    for e in range(8): A(f"v_mul_f32 v{un+e}, v{un+e}, v{mla}")
    for e in range(8): A(f"v_fmac_f32 v{un+e}, v{un+8+e}, v{mlb}")
    for e in range(4): A(f"v_permlane32_swap_b32 v{un+e}, v{un+4+e}")
    A(f"v_mov_b32 v{t0}, v{lw}")
    for e in range(4): A(f"v_add_f32 v{un+e}, v{un+e}, v{un+4+e}")
    A(f"v_permlane16_swap_b32 v{lw}, v{t0}")
    for e in range(2): A(f"v_permlane16_swap_b32 v{un+e}, v{un+2+e}")
    A(f"v_add_f32 v{lw}, v{lw}, v{t0}")
    for e in range(2): A(f"v_add_f32 v{un+e}, v{un+e}, v{un+2+e}")
    A(f"v_mov_b32 v{t0}, v{lw}")
    A(f"v_cvt_pk_bf16_f32 v{un}, v{un}, v{un+1}")
    A(f"ds_write_b32 v{r['pbw']}, v{un}")
    A(f"v_permlane32_swap_b32 v{lw}, v{t0}"); A(f"v_add_f32 v{lw}, v{lw}, v{t0}")
    A("s_mov_b64 exec, 1"); A(f"ds_write2_b32 v{r['mxw']}, v{m}, v{lw} offset0:0 offset1:8"); A("s_mov_b64 exec, -1")
    A("s_lshl_b32 s78, s72, 11")
    A("s_waitcnt vmcnt(0) lgkmcnt(0)" if cfg["wo_bar"] == "pb" else "s_waitcnt lgkmcnt(0)"); A("s_barrier")
    if cfg["wo_pos"] == "late":
        assert cfg["wo_bar"] == "h4"
        sk = A.lab("sk"); A("s_cmp_lt_u32 s3, 4"); A(f"s_cbranch_scc1 {sk}")
        A("s_sub_u32 s15, s3, 4")
        A("s_mul_i32 s12, s15, 8*1152"); A("s_add_u32 s12, s12, s82"); A("s_add_u32 s12, s12, 1024"); A("s_lshl_b32 s13, s15, 10"); A(f"s_add_u32 s13, s13, {P_WO9}")
        dma(r['offd'], 60, "s12", "s13")
        A("s_lshl_b32 s12, s15, 7"); A("s_add_u32 s82, s82, s12"); A("s_lshl_b32 s15, s15, 12")
        for c_ in range(2):
            for b in range(4):
                A(f"s_add_u32 s12, s82, {b*8*1152 + c_*512}"); A(f"s_add_u32 s13, s15, {P_WO + b*1024 + c_*16384}"); dma(r['offd'], 60, "s12", "s13")
        A(f"{sk}:")
    sk = A.lab("sk"); A("s_cmp_ge_u32 s3, 4"); A(f"s_cbranch_scc1 {sk}")
    fm = r['fm']
    A(f"ds_read_b128 {vr(fm,4)}, v{r['wmr']}"); A(f"ds_read_b128 {vr(fm+4,4)}, v{r['wmo']}")
    for v in range(4): A(f"ds_read_b128 {vr(bq+4*v,4)}, v{r['pbr']} offset:{64*v}")
    A(f"ds_read_b128 {vr(fm+8,4)}, v{r['wmr']} offset:32")
    A("s_lshl_b32 s12, s73, 9"); A("s_add_u32 s12, s12, s78"); A("s_lshl_b32 s13, s3, 7"); A("s_add_u32 s12, s12, s13"); A(f"s_add_u32 s76, s12, {WS_CP}"); A(f"s_add_u32 s85, s12, {WS_CPL}")
    da = acc; db = acc + 4
    def uvm(v):
        A(f"s_waitcnt lgkmcnt({4-v})")
        for t, dd in ((0, da), (1, db)): A(f"v_mfma_f32_16x16x32_bf16 {vr(dd,4)}, {vr(bq+4*v,4)}, {ar(UVF+16*t+4*v,4)}, {'0' if v == 0 else vr(dd,4)}")
    uvm(0)
    A(f"v_max3_f32 v{m}, v{fm}, v{fm+1}, v{fm+2}"); A(f"v_max3_f32 v{t0}, v{fm+3}, v{fm+4}, v{fm+5}")
    A(f"v_max3_f32 v{m}, v{m}, v{fm+6}, v{fm+7}"); A(f"v_max_f32 v{m}, v{m}, v{t0}")
    uvm(1)
    for e in range(4): A(f"v_sub_f32 v{fm+e}, v{fm+e}, v{m}")
    uvm(2)
    for e in range(4): A(f"v_exp_f32 v{fm+e}, v{fm+e}")
    uvm(3)
    A("s_waitcnt lgkmcnt(0)")
    A(f"v_mul_f32 v{lw}, v{fm}, v{fm+8}")
    for e in range(1, 4): A(f"v_fmac_f32 v{lw}, v{fm+e}, v{fm+8+e}")
    A(f"v_mov_b32 v{t0}, v{lw}"); A(f"v_permlane16_swap_b32 v{lw}, v{t0}"); A(f"v_add_f32 v{lw}, v{lw}, v{t0}"); A(f"v_rcp_f32 v{lw}, v{lw}")
    for dd in (da, db):
        A(f"v_mul_f32 v{dd}, v{dd}, v{fm}")
        for e in range(1, 4): A(f"v_fmac_f32 v{dd}, v{dd+e}, v{fm+e}")
    A(f"v_permlane16_swap_b32 v{da}, v{db}"); A(f"v_add_f32 v{da}, v{da}, v{db}")
    A(f"v_mul_f32 v{da}, v{da}, v{lw}")
    tag_dword(da, R)
    A("s_mov_b32 exec_hi, 0")
    if cfg["local"]: A(f"buffer_store_dword v{da}, v{r['sa']}, s[44:47], s85 offen")
    else: A(f"buffer_store_dword v{da}, v{r['sa']}, s[44:47], s76 offen sc1")
    A("s_mov_b64 exec, -1")
    A(f"{sk}:")
    stamp(9)
    A("s_lshl_b32 s12, s73, 7"); A("s_add_u32 s79, s78, s12"); A(f"s_add_u32 s79, s79, {WS_CP}")
    def ld(): A(f"buffer_load_dwordx4 {vr(h2,4)}, v{r['h4a']}, s[44:47], s79 offen sc1")
    def ck():
        check_f32(r['bad'], [h2]); A(f"v_and_b32 v{r['bad']}, 0xff, v{r['bad']}"); A(f"v_cmp_ne_u32 vcc, 0, v{r['bad']}")
    def dfr():
        sk = A.lab("sk"); A("s_cmp_ge_u32 s3, 4"); A(f"s_cbranch_scc1 {sk}")
        A("s_mov_b64 exec, -1"); A("s_mov_b32 exec_hi, 0"); A(f"buffer_store_dword v{da}, v{r['sa']}, s[44:47], s76 offen sc1"); A(f"{sk}:")
    A(f"s_add_u32 s84, s79, {WS_CPL - WS_CP}"); A("s_mov_b32 s85, s79")
    if cfg["wo_bar"] == "h4":
        A("s_waitcnt vmcnt(0)"); A("s_barrier")
    def bt():
        for t in range(4):
            A(f"ds_read_b64_tr_b16 {ar(WOF+4*t,2)}, v{r['wob']}"); A(f"ds_read_b64_tr_b16 {ar(WOF+4*t+2,2)}, v{r['wob']} offset:2048")
            if t < 3: A(f"v_xor_b32 v{r['wob']}, {(t ^ (t+1)) << 5}, v{r['wob']}")
        for t in range(2):
            A(f"ds_read_b64_tr_b16 {ar(WOF+16+4*t,2)}, v{r['wo9']}"); A(f"ds_read_b64_tr_b16 {ar(WOF+18+4*t,2)}, v{r['wo9']} offset:2048")
            if t < 1: A(f"v_xor_b32 v{r['wo9']}, 32, v{r['wo9']}")
    if cfg["local"]: poll(ld, ck, sid=2, alt=("s79", "s84", "s85"), deferred=dfr, between=bt)
    else: poll(ld, ck, sid=2, between=bt)
    stamp(10)
    for e in range(4): A(f"v_and_b32 v{h2+e}, s7, v{h2+e}")
    for rr in (4, 8):
        for e in range(4): A(f"v_add_f32_dpp v{h2+e}, v{h2+e}, v{h2+e} row_ror:{rr} row_mask:0xf bank_mask:0xf")
    for e in range(2): A(f"v_cvt_pk_bf16_f32 v{h2+4+e}, v{h2+2*e}, v{h2+2*e+1}")
    A("s_mul_i32 s79, s2, 2304"); A(f"s_add_u32 s79, s79, {WS_OP}")
    for hf in range(2):
        for e in range(2): A(f"v_mov_b32_dpp v{h2+8+2*hf+e}, v{h2+4+e} quad_perm:[{hf},{hf},{2+hf},{2+hf}] row_mask:0xf bank_mask:0xf")
    al = r['accl']
    A("s_lshl_b32 s12, s3, 8"); A("s_add_u32 s12, s12, s79")
    A("s_waitcnt lgkmcnt(0)")
    for t in range(4): A(f"v_mfma_f32_16x16x32_bf16 {vr(acc+4*t,4)}, {vr(h2+8,4)}, {ar(WOF+4*t,4)}, 0")
    sk = A.lab("sk"); A("s_and_b32 s13, s3, 6"); A("s_cmp_lg_u32 s13, 4"); A(f"s_cbranch_scc1 {sk}")
    for t in range(2): A(f"v_mfma_f32_16x16x32_bf16 {vr(al+4*t,4)}, {vr(h2+8,4)}, {ar(WOF+16+4*t,4)}, 0")
    A(f"{sk}:")
    select4(acc, [acc, acc+4, acc+8, acc+12]); tag_dword(acc, R)
    A(f"buffer_store_dword v{acc}, v{r['sa']}, s[44:47], s12 offen sc1")
    sk = A.lab("sk"); A("s_cmp_lg_u32 s13, 4"); A(f"s_cbranch_scc1 {sk}")
    A("s_and_b32 s13, s3, 1"); A("s_lshl_b32 s13, s13, 7"); A("s_add_u32 s13, s13, s79")
    A(f"v_mov_b32_dpp v{al}, v{al+4} quad_perm:[0,1,2,3] row_mask:0x2 bank_mask:0xf")
    tag_dword(al, R)
    A("s_mov_b32 exec_hi, 0"); A(f"buffer_store_dword v{al}, v{r['sa']}, s[44:47], s13 offen offset:2048 sc1"); A("s_mov_b64 exec, -1")
    A(f"{sk}:")
    stamp(11)
    A("s_lshr_b32 s12, s5, 2"); A("s_lshl_b32 s12, s12, 3"); A("s_add_u32 s12, s12, s4")
    A("s_cmp_ge_u32 s12, 18"); A("s_cbranch_scc1 L_Pend")
    A("s_lshl_b32 s74, s12, 2"); A("s_and_b32 s12, s5, 3"); A("s_add_u32 s74, s74, s12")
    A(f"v_lshrrev_b32 v{r['t0']}, 1, v{LANE}"); A(f"v_mul_u32_u24 v{r['t0']}, 2304, v{r['t0']}")
    A(f"v_and_b32 v{r['t1']}, 1, v{LANE}"); A(f"v_lshl_add_u32 v{r['sb']}, v{r['t1']}, 4, v{r['t0']}")
    A("s_mul_i32 s79, s3, 32*2304"); A("s_lshl_b32 s12, s74, 5"); A("s_add_u32 s79, s79, s12"); A(f"s_add_u32 s79, s79, {WS_OP}")
    A(f"v_and_b32 v{r['sc']}, 7, v{LANE}"); A(f"v_lshlrev_b32 v{r['sc']}, 1, v{r['sc']}"); A("s_lshl_b32 s75, s74, 4")
    A(f"buffer_load_ushort v{r['xres']}, v{r['sc']}, s[48:51], s75 offen")
    if cfg.get("h5_ack"): A("s_waitcnt vmcnt(0)"); stamp(22)
    def ld(): A(f"buffer_load_dwordx4 {vr(h2,4)}, v{r['sb']}, s[44:47], s79 offen sc1")
    def ck():
        check_f32(r['bad'], [h2]); A(f"v_and_b32 v{r['bad']}, 0xff, v{r['bad']}"); A(f"v_cmp_ne_u32 vcc, 0, v{r['bad']}")
    poll(ld, ck, sid=3)
    stamp(12)
    for e in range(4): A(f"v_and_b32 v{h2+e}, s7, v{h2+e}")
    A(f"v_permlane32_swap_b32 v{h2}, v{h2+2}"); A(f"v_permlane32_swap_b32 v{h2+1}, v{h2+3}")
    A(f"v_add_f32 v{h2}, v{h2}, v{h2+2}"); A(f"v_add_f32 v{h2+1}, v{h2+1}, v{h2+3}")
    A(f"v_lshrrev_b32 v{r['t0']}, 5, v{LANE}"); A(f"v_lshl_add_u32 v{r['t1']}, v{r['t1']}, 1, v{r['t0']}")
    A(f"v_permlane16_swap_b32 v{h2}, v{h2+1}"); A(f"v_add_f32 v{h2}, v{h2}, v{h2+1}")
    A(f"v_bfe_u32 v{r['t0']}, v{LANE}, 4, 1"); A(f"v_lshl_add_u32 v{r['t1']}, v{r['t1']}, 1, v{r['t0']}")
    for rr in (8, 4, 2): A(f"v_add_f32_dpp v{h2}, v{h2}, v{h2} row_ror:{rr} row_mask:0xf bank_mask:0xf")
    A("s_lshl_b32 s12, s3, 2"); A(f"s_add_u32 s12, s12, {P_FR}"); A(f"v_lshl_add_u32 v{r['t1']}, v{r['t1']}, 5, s12")
    A("s_mov_b32 s84, 0x00030003"); A("s_mov_b32 s85, 0x00030003"); A("s_mov_b64 exec, s[84:85]")
    A(f"ds_write_b32 v{r['t1']}, v{h2}")
    A("s_mov_b64 exec, -1")
    A(f"v_lshlrev_b32 v{r['t0']}, 4, v{r['sc']}"); A(f"v_add_u32 v{r['t0']}, {P_FR}, v{r['t0']}")
    A("s_waitcnt lgkmcnt(0)"); A("s_barrier")
    A("s_cmp_lg_u32 s3, 0"); A("s_cbranch_scc1 L_Pend")
    A(f"ds_read_b128 {vr(h2,4)}, v{r['t0']}"); A(f"ds_read_b128 {vr(h2+4,4)}, v{r['t0']} offset:16")
    A(f"v_lshlrev_b32 v{r['xres']}, 16, v{r['xres']}")
    A("s_waitcnt lgkmcnt(0)")
    for st in (4, 2, 1):
        for e in range(st): A(f"v_add_f32 v{h2+e}, v{h2+e}, v{h2+e+st}")
    A(f"v_add_f32 v{h2}, v{h2}, v{r['xres']}"); A(f"v_cvt_pk_bf16_f32 v{h2}, v{h2}, v{h2}")
    A("s_mov_b64 exec, 0xff")
    A(f"buffer_store_short v{h2}, v{r['sc']}, s[64:67], s75 offen")
    A("s_cmp_lg_u32 s74, 0"); A("s_cbranch_scc1 L_Pend")
    A("s_mov_b64 exec, 1"); A(f"v_mov_b32 v{r['t0']}, s6")
    A(f"buffer_store_dword v{r['t0']}, v{r['sa']}, s[44:47], 0 offen sc1")
    A("L_Pend:")
    stamp(13)
    write_stamps()
    A("L_exit:")
    A("s_endpgm")
    A("L_P1:")
    body = A.finish(verbose=cfg.get("verbose", False))
    head = open("parallel_sum__compressed_kv_cla__glu_gated_glu__decode.s.ref").read().split("; Override launch")[0]
    head += f"; @launch grid=(256,1,1) block=(512,1,1) lds={LDS}\n"
    head += '.amdgcn_target "amdgcn-amd-amdhsa--gfx950"\n.text\n' + f".globl {NAME}\n.p2align 8\n.type {NAME},@function\n"
    tail = f""".section .rodata,"a"
.p2align 6
.amdhsa_kernel {NAME}
  .amdhsa_next_free_vgpr 256
  .amdhsa_next_free_sgpr 102
  .amdhsa_accum_offset 128
  .amdhsa_group_segment_fixed_size 0
  .amdhsa_kernarg_size 104
  .amdhsa_user_sgpr_count 2
  .amdhsa_user_sgpr_kernarg_segment_ptr 1
  .amdhsa_system_sgpr_workgroup_id_x 1
  .amdhsa_float_denorm_mode_32 3
.end_amdhsa_kernel
"""
    return head + body + tail

if __name__ == "__main__":
    out = sys.argv[1] if len(sys.argv) > 1 else "k.s"
    kw = eval("dict(" + (sys.argv[2] if len(sys.argv) > 2 else "") + ")")
    open(out, "w").write(generate(verbose=True, **kw))
```

```python
import sys
from asmlib import Asm

NAME = "parallel_sum__compressed_kv_cla__glu_gated_glu__decode_kernel"

DEF = dict(
    nt="",
    stamps=False,
    prefetch_code=True,
    spin_cap=1 << 18, ws_base=0,
    local=True, k0=24, touch=True,
    h3_ack=True,
    sleep=0,
    p_win1=None, p_n1=0,
    h2_pos=16,
    wq_bar=True, gate_p=False, wuk_pf=True, prew2=True, qa_warm="lo", s_win0=None, s_n0=0, tfl="", epoch_v=False, prew_pos=16, gate_s=False, gate_cap=40, p_pre=0, s_pre=0,
    qa_rep=2, hints="atomic", frags_first=False,
    wo_bar="pb", p_delay=True,
    h1="sload", code_s=False, p_mode="pipe", pw=(None, None, None),
    d_win=None, wo_pos="mid", go_at="own",
    wo_early=False,
    s_win=3,
    wuk_pre=8,
    down_pre=5,
)

WS_R = 0
WS_QP = 0x10000
WS_QA = 0x20000
WS_CP = 0x30000
WS_ML = 0x40000
WS_OP = 0x60000
WS_GU = 0x100000
WS_PART = 0x200000
WS_ST = 0x400000
WS_SIZE = 0x500000
LOC = 0x40000
WS_QP = 0x10000; WS_CP = 0x18000 + 0x8000; WS_QA = 0x30000; WS_ML = 0x40000
WS_QPL = 0x50000; WS_CPL = 0x60000; WS_OP = 0x70000
WS_GU = 0x100000; WS_GUL = 0x480000 - 0x80000 + 0x100000
WS_QA = 0x600000; WS_HINT = 0x680000; WS_GO = 0x690000
WS_SIZE = 0x700000
TAGK = 0x9E3679B8

S_XN = 0; S_ZERO = 1152; S_GUL = 1280; S_HB = 3584
S_WQ = 4608; S_WUK = 41472; S_GATE = 74240; S_UP = 115712; S_DOWN = 4608
CKS = 1056
P_CK = 0; P_QB = 135168; P_PB = 152576; P_PF = 154752; P_MX = 158848; P_FR = 159424
P_WUV = 0; P_WO = 32768; P_WO9 = 159744; P_TB = 73728
LDS = 163840

SCALE2 = 1.4426950408889634 / (128 ** 0.5)
import struct
def f2u(x): return struct.unpack("<I", struct.pack("<f", x))[0]

class Regs:
    def __init__(self, start): self.n = start; self.d = {}
    def __call__(self, name, cnt=1, align=1):
        if cnt > 1: align = max(align, 2)
        self.n = (self.n + align - 1) // align * align
        self.d[name] = self.n; self.n += cnt
        assert self.n <= 128, f"out of arch VGPRs at {name}"
        return self.d[name]

def vr(b, n=1): return f"v{b}" if n == 1 else f"v[{b}:{b+n-1}]"
def ar(b, n=1): return f"a{b}" if n == 1 else f"a[{b}:{b+n-1}]"

def generate(**kw):
    cfg = dict(DEF); cfg.update(kw)
    NT = cfg["nt"]
    A = Asm()
    stamp_n = [0]
    def stamp(i):
        if not cfg["stamps"]: return
        if cfg.get("only") is not None and i not in cfg["only"]: return
        A("s_memrealtime s[42:43]"); A("s_waitcnt lgkmcnt(0)"); A(f"v_writelane_b32 v0, s42, {i}")
    def srd(b, p, size):
        A(f"s_mov_b32 s{b}, s{p}"); A(f"s_mov_b32 s{b+1}, s{p+1}"); A(f"s_mov_b32 s{b+2}, {size}"); A(f"s_mov_b32 s{b+3}, 0x20000")
    def dma(voff, srdb, soff, m0, flags=NT):
        A(f"s_mov_b32 m0, {m0}")
        A(f"buffer_load_dwordx4 v{voff}, s[{srdb}:{srdb+3}], {soff} offen {flags} lds")
    def check_f32(bad, regs, first=True):
        for gi, b in enumerate(regs):
            for j in range(4):
                if first and gi == 0 and j == 0: A(f"v_xor_b32 v{bad}, s8, v{b}")
                else: A(f"v_bitop3_b32 v{bad}, v{b+j}, s{8+j}, v{bad} bitop3:0xbe")
    def poll(loads, check, base_exec="-1", wqm=False, first_wait=0, between=None, sid=None, alt=None, deferred=None):
        L = A.lab("poll"); D = A.lab("got"); K0 = cfg["k0"]
        if alt: A(f"s_mov_b32 {alt[0]}, {alt[1]}")
        if base_exec != "-1": A(f"s_mov_b64 exec, {base_exec}")
        loads()
        if between is not None:
            if base_exec != "-1": A("s_mov_b64 exec, -1")
            between()
            if base_exec != "-1": A(f"s_mov_b64 exec, {base_exec}")
        A(f"s_waitcnt vmcnt({first_wait})")
        if sid is not None: stamp(16 + sid)
        check()
        if wqm: A("s_wqm_b64 vcc, vcc")
        A("s_mov_b32 s14, 0")
        A("s_and_b64 exec, exec, vcc")
        A(f"s_cbranch_scc0 {D}")
        A(f"{L}:")
        if cfg["sleep"]: A(f"s_sleep {cfg['sleep']}")
        if alt:
            A("s_bitcmp1_b32 s14, 0"); A(f"s_cselect_b32 {alt[0]}, {alt[2]}, {alt[1]}")
            A(f"s_cmp_lt_u32 s14, {K0}"); A(f"s_cselect_b32 {alt[0]}, {alt[1]}, {alt[0]}")
        if deferred:
            sk = A.lab("sk"); A(f"s_cmp_lg_u32 s14, {K0}"); A(f"s_cbranch_scc1 {sk}")
            A("s_mov_b64 s[86:87], exec"); deferred(); A("s_mov_b64 exec, s[86:87]"); A(f"{sk}:")
        loads()
        A("s_waitcnt vmcnt(0)")
        check()
        if wqm: A("s_wqm_b64 vcc, vcc")
        A("s_add_u32 s14, s14, 1"); A(f"s_cmp_lt_u32 s14, {cfg['spin_cap']}"); A(f"s_cbranch_scc0 {D}")
        A("s_and_b64 exec, exec, vcc")
        A(f"s_cbranch_scc1 {L}")
        A(f"{D}:")
        if deferred:
            sk = A.lab("sk"); A(f"s_cmp_gt_u32 s14, {K0}"); A(f"s_cbranch_scc1 {sk}"); deferred(); A(f"{sk}:")
        A("s_mov_b64 exec, -1")
        if sid is not None and cfg["stamps"]: A("s_add_u32 s14, s14, 1"); A(f"v_writelane_b32 v0, s14, {24 + sid}")
    def go_addr(dst, wgexpr):
        A(f"s_lshl_b32 {dst}, {wgexpr}, 7"); A(f"s_add_u32 {dst}, {dst}, {WS_GO}")
    def go_write(val, vt, voff):
        sk = A.lab("sk"); A("s_cmp_lg_u32 s3, 0"); A(f"s_cbranch_scc1 {sk}")
        go_addr("s12", "s2"); A(f"v_mov_b32 v{vt}, {val}")
        A("s_mov_b32 exec_hi, 0"); A(f"buffer_store_dword v{vt}, v{voff}, s[44:47], s12 offen"); A("s_mov_b64 exec, -1")
        A(f"{sk}:")
    def go_wait(vt, voff):
        L = A.lab("go"); D = A.lab("gone")
        A("s_xor_b32 s13, s2, 128"); go_addr("s13", "s13"); A("s_mov_b32 s14, 0"); A("s_mov_b64 exec, 1")
        A(f"{L}:")
        A(f"buffer_load_dword v{vt}, v{voff}, s[44:47], s13 offen sc1"); A("s_waitcnt vmcnt(0)")
        A(f"v_cmp_ne_u32 vcc, s6, v{vt}"); A("s_add_u32 s14, s14, 1"); A(f"s_cmp_ge_u32 s14, {cfg['gate_cap']}"); A(f"s_cbranch_scc1 {D}")
        A("s_cmp_lg_u64 vcc, 0"); A(f"s_cbranch_scc1 {L}")
        A(f"{D}:"); A("s_mov_b64 exec, -1")
    def op_prewrite(z, l16, w0):
        sk = A.lab("sk"); s2 = A.lab("sk")
        A(f"s_sub_u32 s13, s3, {w0}"); A("s_cmp_ge_u32 s13, 3"); A(f"s_cbranch_scc1 {sk}")
        A("s_mul_i32 s12, s2, 2304"); A(f"s_add_u32 s12, s12, {WS_OP}"); A("s_lshl_b32 s15, s13, 10"); A("s_add_u32 s12, s12, s15")
        A("s_cmp_lg_u32 s13, 2"); A(f"s_cbranch_scc1 {s2}"); A("s_mov_b64 exec, 0xffff"); A(f"{s2}:")
        A(f"buffer_store_dwordx4 {vr(z,4)}, v{l16}, s[44:47], s12 offen sc1"); A("s_mov_b64 exec, -1")
        A(f"{sk}:")
    def store2(v, voff, soff, off, dist):
        o = f" offset:{off}" if off else ""
        if cfg["local"]:
            A(f"s_add_u32 s15, {soff}, {dist}"); A(f"buffer_store_dword v{v}, v{voff}, s[44:47], s15 offen{o}")
        A(f"buffer_store_dword v{v}, v{voff}, s[44:47], {soff} offen{o} sc1")
    def allreduce_groups(v, t, op):
        A(f"v_mov_b32 v{t}, v{v}"); A(f"v_permlane16_swap_b32 v{v}, v{t}"); A(f"{op} v{v}, v{v}, v{t}")
        A(f"v_mov_b32 v{t}, v{v}"); A(f"v_permlane32_swap_b32 v{v}, v{t}"); A(f"{op} v{v}, v{v}, v{t}")
    def allreduce_row(v, op):
        for r in (8, 4, 2, 1): A(f"{op}_dpp v{v}, v{v}, v{v} row_ror:{r} row_mask:0xf bank_mask:0xf")
    def select4(d, srcs):
        for g in (1, 2, 3): A(f"v_mov_b32_dpp v{d}, v{srcs[g]} quad_perm:[0,1,2,3] row_mask:{hex(1<<g)} bank_mask:0xf")
    def write_stamps():
        if not cfg["stamps"]: return
        if cfg.get("expose"):
            wg, wv, idx = cfg["expose"]; D = A.lab("nex"); L = A.lab("ex")
            A(f"s_cmp_lg_u32 s2, {wg}"); A(f"s_cbranch_scc1 {D}"); A(f"s_cmp_lg_u32 s3, {wv}"); A(f"s_cbranch_scc1 {D}")
            A(f"v_readlane_b32 s12, v0, {idx}"); A(f"v_readlane_b32 s13, v0, {cfg.get('expose0', 0)}"); A("s_nop 4"); A("s_sub_u32 s12, s12, s13"); A(f"s_mul_i32 s12, s12, {cfg.get('expose_k', 10)}")
            A("s_min_u32 s12, s12, 100000")
            A("s_memrealtime s[86:87]"); A("s_waitcnt lgkmcnt(0)")
            A(f"{L}:"); A("s_memrealtime s[42:43]"); A("s_waitcnt lgkmcnt(0)"); A("s_sub_u32 s13, s42, s86"); A("s_cmp_lt_u32 s13, s12"); A(f"s_cbranch_scc1 {L}")
            A(f"{D}:")
            return
        A("s_mov_b64 exec, -1"); A("s_lshl_b32 s12, s2, 3"); A("s_add_u32 s12, s12, s3"); A("s_lshl_b32 s12, s12, 8"); A(f"s_add_u32 s12, s12, {WS_ST}")
        A("v_lshlrev_b32 v4, 2, v1")
        A("buffer_store_dword v0, v4, s[44:47], s12 offen")

    A(f"{NAME}:")
    if cfg["stamps"]:
        A("s_memrealtime s[86:87]")
    A("s_cmp_ge_u32 s2, 256"); A("s_cbranch_scc1 L_exit")
    A("s_load_dwordx16 s[16:31], s[0:1], 0"); A("s_load_dwordx8 s[32:39], s[0:1], 64"); A("s_load_dwordx2 s[40:41], s[0:1], 96")
    A("v_lshrrev_b32 v1, 6, v0"); A("s_and_b32 s4, s2, 7"); A("v_readfirstlane_b32 s3, v1")
    A("s_lshr_b32 s5, s2, 3"); A("s_and_b32 s5, s5, 15")
    A("v_and_b32 v1, 63, v0")
    A("v_and_b32 v2, 15, v1")
    A("v_lshrrev_b32 v3, 4, v1")
    LANE, N, G = 1, 2, 3
    if cfg["stamps"]: A("s_waitcnt lgkmcnt(0)"); A("v_mov_b32 v0, 0"); A("v_writelane_b32 v0, s86, 0")
    A("s_lshr_b32 s72, s5, 2"); A("s_lshl_b32 s73, s4, 2"); A("s_add_u32 s72, s72, s73")
    A("s_and_b32 s73, s5, 3")
    A("s_cmp_ge_u32 s2, 128"); A("s_cbranch_scc1 L_P")

    def common_regs(R):
        R("tq"); R("t0"); R("t1"); R("offq"); R("trq"); R("offd")
        R("trb", 4); R("bad"); R("tagb")
    def addr_q_style(R):
        r = R.d
        A("s_and_b32 s12, s3, 1"); A("s_lshl_b32 s12, s12, 2")
        A(f"v_add_u32 v{r['t0']}, s12, v{G}"); A(f"v_lshlrev_b32 v{r['t0']}, 1, v{r['t0']}")
        A(f"v_xor_b32 v{r['t0']}, v{r['t0']}, v{N}"); A(f"v_lshlrev_b32 v{r['t0']}, 4, v{r['t0']}")
        A(f"v_lshl_add_u32 v{r['offq']}, v{G}, 13, v{r['t0']}")
    def addr_trq(R, base, sh=1):
        r = R.d
        A(f"v_lshrrev_b32 v{r['t0']}, 2, v{N}")
        A(f"v_and_b32 v{r['t1']}, 1, v{G}"); A(f"v_lshl_add_u32 v{r['t1']}, v{r['t1']}, 2, v{r['t0']}")
        A(f"v_lshlrev_b32 v{r['t1']}, 1, v{r['t1']}")
        A(f"v_bfe_u32 v{r['tq']}, v{N}, 1, 1"); A("s_and_b32 s12, s3, 3" if sh == 2 else "s_mov_b32 s12, s3"); A(f"s_lshl_b32 s12, s12, {sh}"); A(f"v_add_u32 v{r['tq']}, s12, v{r['tq']}")
        A(f"v_xor_b32 v{r['t1']}, v{r['t1']}, v{r['tq']}"); A(f"v_lshlrev_b32 v{r['t1']}, 4, v{r['t1']}")
        A(f"v_lshl_add_u32 v{r['t1']}, v{r['t0']}, 8, v{r['t1']}")
        A(f"v_lshl_add_u32 v{r['t1']}, v{G}, 10, v{r['t1']}")
        A(f"v_and_b32 v{r['t0']}, 1, v{N}"); A(f"v_lshl_add_u32 v{r['trq']}, v{r['t0']}, 3, v{r['t1']}")
        if base: A(f"v_add_u32 v{r['trq']}, {base}, v{r['trq']}")
    def addr_lc_src(dst, R, stride):
        r = R.d
        A(f"v_lshrrev_b32 v{r['t0']}, 3, v{LANE}"); A(f"v_and_b32 v{r['t1']}, 6, v{r['t0']}")
        A(f"v_and_b32 v{dst}, 7, v{LANE}"); A(f"v_xor_b32 v{dst}, v{dst}, v{r['t1']}"); A(f"v_lshlrev_b32 v{dst}, 4, v{dst}")
        A(f"v_mul_u32_u24 v{r['t0']}, {stride}, v{r['t0']}"); A(f"v_add_u32 v{dst}, v{dst}, v{r['t0']}")
    def addr_lc_tr(R, trb, trc=None):
        r = R.d
        A(f"v_lshrrev_b32 v{r['t0']}, 2, v{N}")
        A(f"v_bfe_u32 v{r['tq']}, v{N}, 1, 1")
        if trc is not None:
            A(f"v_and_b32 v{r['t1']}, 6, v{r['t0']}"); A(f"v_xor_b32 v{r['t1']}, v{r['t1']}, v{r['tq']}")
            A(f"v_lshlrev_b32 v{r['t1']}, 4, v{r['t1']}"); A(f"v_lshl_add_u32 v{r['t1']}, v{r['t0']}, 7, v{r['t1']}")
            A(f"v_and_b32 v{trc}, 1, v{N}"); A(f"v_lshl_add_u32 v{trc}, v{trc}, 3, v{r['t1']}")
            A(f"v_add_u32 v{trc}, 4096, v{trc}")
        A(f"v_and_b32 v{r['t1']}, 1, v{G}"); A(f"v_lshl_add_u32 v{r['t0']}, v{r['t1']}, 2, v{r['t0']}")
        A(f"v_and_b32 v{r['t1']}, 6, v{r['t0']}"); A(f"v_xor_b32 v{r['t1']}, v{r['t1']}, v{r['tq']}")
        A(f"v_lshlrev_b32 v{r['t1']}, 4, v{r['t1']}"); A(f"v_lshl_add_u32 v{r['t1']}, v{r['t0']}, 7, v{r['t1']}")
        A(f"v_lshrrev_b32 v{r['t0']}, 1, v{G}"); A(f"v_lshl_add_u32 v{r['t1']}, v{r['t0']}, 10, v{r['t1']}")
        A(f"v_and_b32 v{trb}, 1, v{N}"); A(f"v_lshl_add_u32 v{trb}, v{trb}, 3, v{r['t1']}")
    def tags(R, younger):
        r = R.d
        if cfg["epoch_v"]: A(f"s_waitcnt vmcnt({younger})"); A(f"v_readfirstlane_b32 s6, v{r['bad']}")
        A(f"s_add_u32 s6, s6, {hex(TAGK)}"); A("s_or_b32 s6, s6, 0x01010101")
        for j in range(4): A(f"s_bfe_u32 s{8+j}, s6, {hex((8 << 16) | (8*j))}")
        A(f"v_and_b32 v{r['tagb']}, 3, v{LANE}"); A(f"v_lshlrev_b32 v{r['tagb']}, 3, v{r['tagb']}")
        A(f"v_lshrrev_b32 v{r['tagb']}, v{r['tagb']}, s6"); A(f"v_and_b32 v{r['tagb']}, 0xff, v{r['tagb']}")
        A("s_mov_b32 s7, 0xffffff00")
    def tag_dword(v, R): A(f"v_and_or_b32 v{v}, v{v}, s7, v{R.d['tagb']}")
    def code_prefetch(lab0, lab1, dst, t):
        if not cfg["prefetch_code"]: return
        D = A.lab("npf"); PC = A.lab("pc")
        if cfg["code_s"]:
            A("s_getpc_b64 s[92:93]"); A(f"{PC}:")
            A(f"s_add_u32 s92, s92, {lab0}-{PC}"); A("s_addc_u32 s93, s93, 0")
            A("s_lshl_b32 s15, s5, 3"); A("s_add_u32 s15, s15, s3"); A("s_lshl_b32 s15, s15, 7"); A(f"s_min_u32 s15, s15, {lab1}-{lab0}-4")
            A("s_load_dword s91, s[92:93], s15")
            return
        A("s_cmp_lg_u32 s3, 7"); A(f"s_cbranch_scc1 {D}")
        A("s_getpc_b64 s[12:13]"); A(f"{PC}:")
        A(f"s_add_u32 s12, s12, {lab0}-{PC}"); A("s_addc_u32 s13, s13, 0")
        A("s_lshl_b32 s15, s5, 10"); A(f"v_lshl_add_u32 v{t}, v{LANE}, 4, s15")
        A(f"v_min_u32 v{t}, {lab1}-{lab0}-16, v{t}")
        A(f"global_load_dwordx4 v[{dst}:{dst+3}], v{t}, s[12:13]")
        A(f"{D}:")

    R = Regs(4); common_regs(R); r = R.d
    R("offk"); R("offg"); R("trc", 4); R("xa"); R("xg"); R("xz")
    R("acc"); R("acc2")
    R("fa", 8, 4); R("fb", 24, 4); R("d", 32, 4); R("q", 8, 4); R("qa", 4, 4); R("kf", 16, 4)
    R("sa"); R("sb"); R("sc"); R("hfa"); R("hfw")
    r["x"] = r["kf"]; r["xf"] = r["kf"] + 5
    d = r['d']
    addr_q_style(R)
    A(f"v_lshlrev_b32 v{r['sa']}, 2, v{LANE}")
    A("s_waitcnt lgkmcnt(0)")
    if cfg["ws_base"]: A(f"s_add_u32 s40, s40, {cfg['ws_base']}"); A("s_addc_u32 s41, s41, 0")
    if cfg["epoch_v"]: A(f"v_mov_b32 v{r['tagb']}, 0"); A(f"global_load_dword v{r['bad']}, v{r['tagb']}, s[40:41] nt")
    else: A("s_load_dword s6, s[40:41], 0")
    srd(48, 16, 1152); srd(52, 20, 576*8192)
    code_prefetch("L_S0", "L_S1", r['d'], r['t0'])
    A("L_S0:")
    A("s_mul_i32 s74, s73, 144"); A("s_lshl_b32 s12, s3, 2"); A("s_add_u32 s74, s74, s12"); A("s_lshl_b32 s74, s74, 13")
    A("s_lshl_b32 s75, s72, 8"); A("s_add_u32 s74, s74, s75")
    A("s_lshl_b32 s76, s3, 10")
    def wq_dma(i):
        A(f"s_add_u32 s12, s74, {i*32*8192}"); A(f"s_add_u32 s13, s76, {S_WQ + i*8192}")
        dma(r['offq'], 52, "s12", "s13")
    A("s_lshl_b32 s78, s72, 11")
    def hf_addr():
        A(f"v_and_b32 v{r['t0']}, 31, v{LANE}"); A(f"v_min_u32 v{r['t0']}, 17, v{r['t0']}"); A(f"v_lshrrev_b32 v{r['t1']}, 5, v{LANE}")
        A(f"v_lshlrev_b32 v{r['hfa']}, 4, v{r['t0']}"); A(f"v_lshl_add_u32 v{r['hfw']}, v{r['t1']}, 3, v{r['hfa']}")
        A(f"v_mul_u32_u24 v{r['t1']}, 4608, v{r['t1']}"); A(f"v_add_u32 v{r['hfa']}, v{r['hfa']}, v{r['t1']}")
        A(f"v_add_u32 v{r['t1']}, {2304 - 144}, v{r['hfa']}"); A(f"v_cmp_lt_u32 vcc, 8, v{r['t0']}"); A(f"v_cndmask_b32 v{r['hfa']}, v{r['hfa']}, v{r['t1']}, vcc")
        A("s_lshl_b32 s88, s4, 4"); A("s_lshl_b32 s12, s3, 1"); A("s_add_u32 s88, s88, s12"); A("s_mul_i32 s88, s88, 4608")
        A("s_mul_i32 s12, s5, 144"); A("s_add_u32 s88, s88, s12"); A(f"s_add_u32 s88, s88, {WS_GU}")
        A("s_mul_i32 s12, s3, 288"); A(f"s_add_u32 s12, s12, {S_GUL}"); A(f"v_add_u32 v{r['hfw']}, s12, v{r['hfw']}")
    prew = cfg["local"] and cfg["touch"]
    def gu_prewrite():
        if not prew: return
        A("s_lshl_b32 s12, s4, 4"); A("s_add_u32 s12, s12, s5"); A("s_mul_i32 s12, s12, 4608"); A(f"s_add_u32 s12, s12, {WS_GUL}")
        A("s_lshl_b32 s13, s3, 8"); A("s_add_u32 s13, s13, s12")
        A(f"v_xor_b32 v{r['t0']}, 0xff, v{r['tagb']}")
        A(f"buffer_store_dword v{r['t0']}, v{r['sa']}, s[44:47], s13 offen"); A(f"buffer_store_dword v{r['t0']}, v{r['sa']}, s[44:47], s13 offen offset:2304")
        sk = A.lab("sk"); A("s_cmp_ge_u32 s3, 2"); A(f"s_cbranch_scc1 {sk}")
        A("s_mul_i32 s13, s3, 2304"); A("s_add_u32 s13, s13, s12"); A(f"buffer_store_dword v{r['t0']}, v{r['sa']}, s[44:47], s13 offen offset:2048")
        A(f"{sk}:")
    A("s_cmp_ge_u32 s3, 4"); A("s_cbranch_scc1 L_S_hi")
    for i in range(5): A(f"buffer_load_dword v{r['x']+i}, v{r['sa']}, s[48:51], 0 offen offset:{256*i}")
    for i in range(5): wq_dma(i)
    if cfg["wq_bar"]: A("s_barrier")
    srd(44, 40, WS_SIZE)
    if cfg["gate_p"]: go_write("0", r['t0'], r['sa'])
    nz = 0
    if cfg["h1"] in ("sload", "remote"):
        A("s_lshl_b32 s12, s73, 9"); A("s_add_u32 s12, s12, s78"); A("s_lshl_b32 s13, s3, 7"); A("s_add_u32 s12, s12, s13")
        A(f"s_add_u32 s12, s12, {WS_QPL if cfg['h1'] == 'sload' else WS_QP}"); A(f"v_mov_b32 v{r['t0']}, 0")
        A("s_mov_b32 exec_hi, 0"); A(f"buffer_store_dword v{r['t0']}, v{r['sa']}, s[44:47], s12 offen sc1"); A("s_mov_b64 exec, -1"); nz = 1
    if cfg["qa_warm"] == "lo":
        A("s_lshl_b32 s12, s73, 9"); A("s_add_u32 s12, s12, s78"); A("s_lshl_b32 s13, s3, 7"); A("s_add_u32 s12, s12, s13"); A(f"s_add_u32 s12, s12, {WS_QA}")
        A(f"v_mov_b32 v{r['t0']}, 0"); A("s_mov_b32 exec_hi, 0")
        for q_ in range(cfg["qa_rep"]):
            A(f"buffer_store_dword v{r['t0']}, v{r['sa']}, s[44:47], s12 offen sc1"); A("s_add_u32 s12, s12, 0x10000")
        A("s_mov_b64 exec, -1"); nz += cfg["qa_rep"]
    hf_addr()
    addr_trq(R, S_WQ, 2)
    if cfg["gate_p"]:
        sk = A.lab("sk"); jn = A.lab("jn"); A("s_cmp_lg_u32 s3, 0"); A(f"s_cbranch_scc1 {sk}"); A("s_waitcnt vmcnt(6)"); A(f"s_branch {jn}"); A(f"{sk}:"); A("s_waitcnt vmcnt(5)"); A(f"{jn}:")
    else: A(f"s_waitcnt vmcnt({5 + nz})")
    xf = r['xf']
    for i in range(5):
        A(f"v_lshlrev_b32 v{xf+2*i}, 16, v{r['x']+i}"); A(f"v_and_b32 v{xf+2*i+1}, 0xffff0000, v{r['x']+i}")
    A(f"v_add_f32 v{r['acc']}, v{xf}, v{xf+1}")
    for i in range(2, 10): A(f"v_add_f32 v{r['acc']}, v{r['acc']}, v{xf+i}")
    allreduce_row(r['acc'], "v_add_f32"); allreduce_groups(r['acc'], r['t0'], "v_add_f32")
    A(f"v_mul_f32 v{r['acc']}, {hex(f2u(1.0/576))}, v{r['acc']}")
    for i in range(10): A(f"v_sub_f32 v{xf+i}, v{xf+i}, v{r['acc']}")
    A(f"v_cmp_gt_u32 vcc, 32, v{LANE}")
    A(f"v_cndmask_b32 v{xf+8}, 0, v{xf+8}, vcc"); A(f"v_cndmask_b32 v{xf+9}, 0, v{xf+9}, vcc")
    A(f"v_mul_f32 v{r['acc2']}, v{xf}, v{xf}")
    for i in range(1, 10): A(f"v_fmac_f32 v{r['acc2']}, v{xf+i}, v{xf+i}")
    allreduce_row(r['acc2'], "v_add_f32"); allreduce_groups(r['acc2'], r['t0'], "v_add_f32")
    A(f"v_mov_b32 v{r['t0']}, {hex(f2u(1e-5))}")
    A(f"v_fmac_f32 v{r['t0']}, {hex(f2u(1.0/576))}, v{r['acc2']}")
    A(f"v_rsq_f32 v{r['t0']}, v{r['t0']}")
    for i in range(10): A(f"v_mul_f32 v{xf+i}, v{xf+i}, v{r['t0']}")
    for i in range(5): A(f"v_cvt_pk_bf16_f32 v{r['x']+i}, v{xf+2*i}, v{xf+2*i+1}")
    for i in range(5): A(f"ds_write_b32 v{r['sa']}, v{r['x']+i} offset:{S_XN + 256*i}")
    A("s_waitcnt lgkmcnt(0)")
    tags(R, 5)
    A("s_mul_i32 s12, s73, 288"); A(f"v_lshl_add_u32 v{r['xa']}, v{G}, 3, s12")
    for q in range(9): A(f"ds_read_b64 {ar(2*q, 2)}, v{r['xa']} offset:{S_XN + 32*q}")
    A(f"v_xor_b32 v{r['t0']}, 32, v{r['trq']}")
    A("s_lshl_b32 s12, s73, 9"); A("s_add_u32 s12, s12, s78"); A("s_lshl_b32 s13, s3, 7"); A("s_add_u32 s12, s12, s13")
    A(f"s_add_u32 s79, s12, {WS_QP}")
    stamp(1)
    A(f"s_waitcnt vmcnt({nz})"); A("s_barrier")
    stamp(2)
    if cfg["gate_p"]: go_write("s6", r['t1'], r['sa'])
    for q in range(9):
        A(f"ds_read_b64_tr_b16 {ar(20+2*q, 2)}, v{r['trq']} offset:{4096*q}")
        A(f"ds_read_b64_tr_b16 {ar(40+2*q, 2)}, v{r['t0']} offset:{4096*q}")
    for v in range(4):
        A(f"s_waitcnt lgkmcnt({14-4*v})")
        for t in range(2): A(f"v_mfma_f32_16x16x32_bf16 {vr(d+4*t,4)}, {ar(4*v,4)}, {ar(20+20*t+4*v,4)}, {'0' if v == 0 else vr(d+4*t,4)}")
    A("s_waitcnt lgkmcnt(0)")
    for t in range(2): A(f"v_mfma_f32_16x16x16_bf16 {vr(d+8+4*t,4)}, {ar(16,2)}, {ar(36+20*t,2)}, 0")
    A(f"v_add_f32 v{d}, v{d}, v{d+8}"); A(f"v_add_f32 v{d+4}, v{d+4}, v{d+12}")
    A(f"v_mov_b32_dpp v{d}, v{d+4} quad_perm:[0,1,2,3] row_mask:0x2 bank_mask:0xf")
    tag_dword(d, R)
    A("s_mov_b32 exec_hi, 0")
    if cfg["h1"] == "remote": A(f"buffer_store_dword v{d}, v{r['sa']}, s[44:47], s79 offen sc1")
    else: store2(d, r['sa'], "s79", 0, WS_QPL - WS_QP)
    A("s_mov_b64 exec, -1")
    if cfg["h1"] == "remote": A("s_barrier")
    stamp(3)
    if cfg["qa_warm"] == "lo": A(f"s_waitcnt vmcnt({1 if cfg['h1'] == 'remote' or not cfg['local'] else 2})"); A("s_barrier")
    srd(60, 30, 576*9216); srd(64, 32, 576*9216); srd(68, 34, 4608*1152)
    addr_lc_src(r['offg'], R, 9216); addr_lc_src(r['offd'], R, 1152)
    addr_lc_tr(R, r['trb'], r['trc'])
    if cfg["prew2"]:
        for e in range(4): A(f"v_mov_b32 v{d+16+e}, 0")
        A(f"v_lshlrev_b32 v{r['t0']}, 4, v{LANE}")
        op_prewrite(d+16, r['t0'], 0)
    A("s_barrier")
    A("s_branch L_S_ffn")
    A("L_S_hi:")
    for i in range(4): wq_dma(i)
    srd(56, 22, 512*8192); srd(44, 40, WS_SIZE)
    A(f"v_and_b32 v{r['t0']}, 3, v{N}"); A(f"v_lshlrev_b32 v{r['t0']}, 5, v{r['t0']}")
    A(f"v_lshrrev_b32 v{r['t1']}, 2, v{N}"); A(f"v_lshl_add_u32 v{r['t0']}, v{r['t1']}, 9, v{r['t0']}")
    A(f"v_lshl_add_u32 v{r['sb']}, v{G}, 7, v{r['t0']}")
    A(f"s_add_u32 s79, s78, {WS_QP}"); A(f"s_add_u32 s84, s78, {WS_QPL}"); A("s_mov_b32 s85, s79")
    hf_addr()
    A(f"v_lshlrev_b32 v{r['t0']}, 2, v{G}"); A(f"v_xor_b32 v{r['t0']}, v{r['t0']}, v{N}"); A(f"v_lshlrev_b32 v{r['t0']}, 4, v{r['t0']}")
    A(f"v_lshl_add_u32 v{r['offk']}, v{G}, 13, v{r['t0']}")
    A("s_sub_u32 s80, s3, 4")
    A("s_lshl_b32 s74, s73, 7"); A("s_lshl_b32 s12, s80, 5"); A("s_add_u32 s74, s74, s12"); A("s_lshl_b32 s74, s74, 13"); A("s_add_u32 s74, s74, s75")
    A("s_lshl_b32 s77, s80, 13")
    nk0 = cfg["wuk_pre"]
    def wuk_dma(i):
        A(f"s_add_u32 s12, s74, {i*4*8192}"); A(f"s_add_u32 s13, s77, {S_WUK + i*1024}")
        dma(r['offk'], 56, "s12", "s13")
        if i < 7: A(f"v_xor_b32 v{r['offk']}, {(((i%4) ^ ((i+1)%4)) << 4)}, v{r['offk']}")
    if cfg["wq_bar"]: A("s_barrier")
    for i in range(nk0): wuk_dma(i)
    nqw = 0
    if cfg["qa_warm"] == "own":
        assert nk0 == 8
        A("s_lshl_b32 s12, s73, 9"); A("s_add_u32 s12, s12, s78"); A("s_lshl_b32 s13, s80, 7"); A("s_add_u32 s12, s12, s13"); A(f"s_add_u32 s12, s12, {WS_QA}")
        A(f"v_mov_b32 v{r['t1']}, 0"); A("s_mov_b32 exec_hi, 0")
        for q_ in range(cfg["qa_rep"]):
            A(f"buffer_store_dword v{r['t1']}, v{r['sa']}, s[44:47], s12 offen sc1"); A("s_add_u32 s12, s12, 0x10000")
        A("s_mov_b64 exec, -1"); nqw = cfg["qa_rep"]
    srd(60, 30, 576*9216); srd(64, 32, 576*9216); srd(68, 34, 4608*1152)
    if cfg["h1"] == "sload":
        A("s_waitcnt lgkmcnt(0)")
        A(f"s_waitcnt vmcnt({nk0 + nqw + 4 - cfg.get('sl_pos', 2)})")
        A("s_lshl_b32 s12, s73, 9"); A("s_add_u32 s12, s12, s78"); A("s_lshl_b32 s13, s80, 7"); A("s_add_u32 s12, s12, s13"); A(f"s_add_u32 s12, s12, {WS_QPL}")
        A("s_load_dword s90, s[40:41], s12")
    stamp(1)
    A(f"s_waitcnt vmcnt({nk0 + nqw})"); A("s_barrier")
    stamp(2)
    for i in range(nk0, 8): wuk_dma(i)
    addr_lc_src(r['offg'], R, 9216); addr_lc_src(r['offd'], R, 1152)
    addr_lc_tr(R, r['trb'], r['trc'])
    if cfg["h1"] != "sload": A("s_waitcnt lgkmcnt(0)")
    tags(R, 8)
    def ld():
        A(f"buffer_load_dwordx4 {vr(r['q'],4)}, v{r['sb']}, s[44:47], s79 offen sc1")
        A(f"buffer_load_dwordx4 {vr(r['q']+4,4)}, v{r['sb']}, s[44:47], s79 offen offset:16 sc1")
    def ck():
        check_f32(r['bad'], [r['q'], r['q']+4]); A(f"v_and_b32 v{r['bad']}, 0xff, v{r['bad']}"); A(f"v_cmp_ne_u32 vcc, 0, v{r['bad']}")
    A(f"v_and_b32 v{r['t0']}, 3, v{N}"); A(f"v_xor_b32 v{r['t0']}, v{r['t0']}, v{G}"); A(f"v_lshrrev_b32 v{r['t1']}, 2, v{N}")
    A(f"v_lshl_add_u32 v{r['t0']}, v{r['t0']}, 2, v{r['t1']}"); A(f"v_lshlrev_b32 v{r['t0']}, 4, v{r['t0']}")
    A(f"v_lshl_add_u32 v{r['t0']}, v{N}, 8, v{r['t0']}"); A(f"v_add_u32 v{r['t0']}, s77, v{r['t0']}")
    A(f"s_waitcnt vmcnt({nqw})")
    stamp(3)
    def bt():
        for v in range(4):
            for t in range(2): A(f"ds_read_b128 {ar(16*t+4*v,4)}, v{r['t0']} offset:{S_WUK + 4096*t}")
            if v < 3: A(f"v_xor_b32 v{r['t0']}, {((v ^ (v+1)) << 4)}, v{r['t0']}")
    if cfg["h1"] == "remote": A("s_barrier")
    poll(ld, ck, between=bt, sid=0, alt=("s79", "s84", "s85") if cfg["local"] and cfg["h1"] != "remote" else None)
    stamp(4)
    if cfg["hints"] == "atomic":
        sk = A.lab("sk"); A("s_lshl_b32 s12, s73, 3"); A("s_add_u32 s12, s12, s3"); A("s_cmp_lg_u32 s12, 31"); A(f"s_cbranch_scc1 {sk}")
        A(f"v_lshlrev_b32 v{r['t0']}, 7, v{LANE}"); A(f"v_mov_b32 v{r['t1']}, 1"); A("s_lshr_b32 s12, s72, 4"); A("s_lshl_b32 s12, s12, 10"); A(f"s_add_u32 s12, s12, {WS_HINT}")
        A("s_mov_b64 exec, 0xff"); A(f"buffer_atomic_add v{r['t1']}, v{r['t0']}, s[44:47], s12 offen sc1"); A("s_mov_b64 exec, -1")
        A(f"{sk}:")
    elif cfg["hints"]:
        sk = A.lab("sk"); A("s_lshl_b32 s12, s73, 3"); A("s_add_u32 s12, s12, s3"); A("s_cmp_lg_u32 s12, 31"); A(f"s_cbranch_scc1 {sk}")
        A(f"v_lshlrev_b32 v{r['t0']}, 12, v{LANE}"); A(f"v_mov_b32 v{r['t1']}, s6"); A("s_lshl_b32 s12, s72, 7"); A(f"s_add_u32 s12, s12, {WS_HINT}")
        A("s_mov_b64 exec, 0xff"); A(f"buffer_store_dword v{r['t1']}, v{r['t0']}, s[44:47], s12 offen sc1"); A("s_mov_b64 exec, -1")
        A(f"{sk}:")
    for e in range(8): A(f"v_and_b32 v{r['q']+e}, s7, v{r['q']+e}")
    for e in range(4): A(f"v_cvt_pk_bf16_f32 v{r['qa']+e}, v{r['q']+2*e}, v{r['q']+2*e+1}")
    A("s_waitcnt lgkmcnt(0)")
    for t in range(2):
        for v in range(4): A(f"v_mfma_f32_16x16x32_bf16 {vr(d+16*t+4*v,4)}, {vr(r['qa'],4)}, {ar(16*t+4*v,4)}, 0")
    A("s_lshl_b32 s12, s73, 9"); A("s_add_u32 s12, s12, s78"); A("s_lshl_b32 s13, s80, 7"); A("s_add_u32 s12, s12, s13"); A(f"s_add_u32 s12, s12, {WS_QA}")
    for t in range(2):
        b_ = d + 16*t
        A(f"v_add_f32 v{b_}, v{b_}, v{b_+5}"); A(f"v_add_f32 v{b_+10}, v{b_+10}, v{b_+15}"); A(f"v_add_f32 v{b_}, v{b_}, v{b_+10}")
    A(f"v_permlane16_swap_b32 v{d}, v{d+16}"); A(f"v_add_f32 v{d}, v{d}, v{d+16}")
    A(f"v_mov_b32 v{r['t0']}, v{d}"); A(f"v_permlane32_swap_b32 v{d}, v{r['t0']}"); A(f"v_add_f32 v{d}, v{d}, v{r['t0']}")
    tag_dword(d, R)
    if cfg["qa_warm"] == "lo": A("s_barrier")
    A("s_mov_b32 exec_hi, 0")
    for q_ in range(cfg["qa_rep"]):
        A(f"buffer_store_dword v{d}, v{r['sa']}, s[44:47], s12 offen sc1")
        if q_ + 1 < cfg["qa_rep"]: A("s_add_u32 s12, s12, 0x10000")
    A("s_mov_b64 exec, -1")
    A("s_barrier")
    A("L_S_ffn:")
    stamp(5)
    if cfg["gate_s"]: go_wait(r['t0'], r['sa'])
    stamp(13)
    A("s_mul_i32 s74, s5, 36*9216"); A("s_mul_i32 s12, s4, 1152"); A("s_add_u32 s74, s74, s12")
    A("s_and_b32 s80, s3, 3"); A("s_lshr_b32 s81, s3, 2")
    A("s_mul_i32 s82, s81, 41472"); A(f"s_add_u32 s82, s82, {S_GATE + 8*4608}")
    up9 = A.lab("up9"); j9 = A.lab("j9")
    A("s_mul_i32 s12, s80, 8*9216"); A("s_add_u32 s12, s12, s74"); A("s_add_u32 s12, s12, 1024")
    A("s_lshl_b32 s13, s80, 10"); A("s_add_u32 s13, s13, s82")
    A(f"s_add_u32 s15, s74, {32*9216 + 1024}"); A("s_add_u32 s83, s82, 4096")
    A("s_cmp_lg_u32 s81, 0"); A(f"s_cbranch_scc1 {up9}")
    for sb_, nxt in ((60, j9), (64, None)):
        sk = A.lab("sk")
        dma(r['offg'], sb_, "s12", "s13")
        A("s_cmp_lg_u32 s80, 0"); A(f"s_cbranch_scc1 {sk}")
        A("s_mov_b32 exec_hi, 0"); dma(r['offg'], sb_, "s15", "s83"); A("s_mov_b64 exec, -1")
        A(f"{sk}:")
        if nxt: A(f"s_branch {nxt}"); A(f"{up9}:")
    A(f"{j9}:")
    A("s_lshl_b32 s12, s3, 7"); A("s_add_u32 s74, s74, s12")
    A("s_mul_i32 s76, s3, 4608")
    cnt = 0
    for mat, (sb_, base) in enumerate(((60, S_GATE), (64, S_UP))):
        for b in range(5):
            wn = cfg["s_win0"] if cnt < cfg["s_n0"] else cfg["s_win"]
            if wn is not None and cnt >= wn: A(f"s_waitcnt vmcnt({wn-1})")
            A(f"s_add_u32 s12, s74, {b*8*9216}"); A(f"s_add_u32 s13, s76, {base + b*1024}")
            if b == 4: A("s_mov_b32 exec_hi, 0")
            dma(r['offg'], sb_, "s12", "s13")
            if b == 4: A("s_mov_b64 exec, -1")
            cnt += 1
    A("s_mul_i32 s12, s5, 72"); A(f"v_lshl_add_u32 v{r['xg']}, v{G}, 3, s12")
    A(f"v_mov_b32 v{r['xz']}, {S_ZERO - S_XN}"); A("s_add_u32 s12, s12, 64"); A(f"v_mov_b32 v{r['t0']}, s12")
    A(f"v_cmp_gt_u32 vcc, 16, v{LANE}"); A(f"v_cndmask_b32 v{r['xz']}, v{r['xz']}, v{r['t0']}, vcc")
    A(f"ds_read_b64 {vr(r['fa'],2)}, v{r['xg']} offset:{S_XN}"); A(f"ds_read_b64 {vr(r['fa']+2,2)}, v{r['xg']} offset:{S_XN+32}")
    A(f"ds_read_b64 {vr(r['fa']+4,2)}, v{r['xz']} offset:{S_XN}")
    A("s_lshl_b32 s79, s4, 4"); A("s_add_u32 s79, s79, s5"); A("s_mul_i32 s79, s79, 4608"); A(f"s_add_u32 s79, s79, {WS_GU}")
    A(f"s_add_u32 s77, s76, {S_GATE}")
    for b_ in (r['trb'], r['trc']):
        A(f"v_add_u32 v{b_}, s77, v{b_}")
        for t in (1, 2, 3): A(f"v_xor_b32 v{b_+t}, {t << 5}, v{b_}")
    fb = r['fb']; fa = r['fa']
    def lc_column(base, extra_k):
        for t in range(4):
            A(f"ds_read_b64_tr_b16 {vr(fb+4*t,2)}, v{r['trb']+t} offset:{base}")
            A(f"ds_read_b64_tr_b16 {vr(fb+4*t+2,2)}, v{r['trb']+t} offset:{base+2048}")
            if extra_k: A(f"ds_read_b64_tr_b16 {vr(fb+16+2*t,2)}, v{r['trc']+t} offset:{base}")
        per = 3 if extra_k else 2
        for t in range(4):
            A(f"s_waitcnt lgkmcnt({per*(3-t)})")
            A(f"v_mfma_f32_16x16x32_bf16 {vr(d+4*t,4)}, {vr(fa,4)}, {vr(fb+4*t,4)}, 0")
        if extra_k:
            for t in range(4): A(f"v_mfma_f32_16x16x16_bf16 {vr(d+4*t,4)}, {vr(fa+4,2)}, {vr(fb+16+2*t,2)}, {vr(d+4*t,4)}")
    def lc_pair9(sbase, spair, ta, tb):
        A(f"s_lshl_b32 s12, {spair}, 6"); A(f"s_sub_u32 s13, {sbase}, s77")
        for t in range(2):
            A(f"v_xor_b32 v{ta}, s12, v{r['trb']+t}"); A(f"v_add_u32 v{ta}, s13, v{ta}")
            A(f"v_xor_b32 v{tb}, s12, v{r['trc']+t}"); A(f"v_add_u32 v{tb}, s13, v{tb}")
            A(f"ds_read_b64_tr_b16 {vr(fb+4*t,2)}, v{ta}"); A(f"ds_read_b64_tr_b16 {vr(fb+4*t+2,2)}, v{ta} offset:2048")
            A(f"ds_read_b64_tr_b16 {vr(fb+16+2*t,2)}, v{tb}")
        A("s_waitcnt lgkmcnt(0)")
        for t in range(2): A(f"v_mfma_f32_16x16x32_bf16 {vr(d+4*t,4)}, {vr(fa,4)}, {vr(fb+4*t,4)}, 0")
        for t in range(2): A(f"v_mfma_f32_16x16x16_bf16 {vr(d+8+4*t,4)}, {vr(fa+4,2)}, {vr(fb+16+2*t,2)}, 0")
        A(f"v_add_f32 v{d}, v{d}, v{d+8}"); A(f"v_add_f32 v{d+4}, v{d+4}, v{d+12}")
        A(f"v_mov_b32_dpp v{d}, v{d+4} quad_perm:[0,1,2,3] row_mask:0x2 bank_mask:0xf")
        tag_dword(d, R)
    A("s_waitcnt vmcnt(5)"); A("s_barrier")
    stamp(6)
    lc_column(0, True)
    select4(d, [d, d+4, d+8, d+12]); tag_dword(d, R)
    A("s_lshl_b32 s83, s3, 8"); A("s_add_u32 s83, s83, s79")
    store2(d, r['sa'], "s83", 0, WS_GUL - WS_GU)
    sk = A.lab("sk")
    A("s_cmp_ge_u32 s80, 2"); A(f"s_cbranch_scc1 {sk}")
    lc_pair9("s82", "s80", r['t0'], r['t1'])
    A("s_mul_i32 s12, s81, 2304"); A("s_add_u32 s12, s12, s79"); A("s_lshl_b32 s13, s80, 7"); A("s_add_u32 s12, s12, s13")
    A("s_mov_b32 exec_hi, 0"); store2(d, r['sa'], "s12", 2048, WS_GUL - WS_GU); A("s_mov_b64 exec, -1")
    A(f"{sk}:")
    A("s_mul_i32 s74, s4, 576"); A("s_mul_i32 s12, s5, 36"); A("s_add_u32 s74, s74, s12"); A("s_mul_i32 s74, s74, 1152")
    sk = A.lab("sk"); sk2 = A.lab("sk")
    A("s_cmp_ge_u32 s3, 5"); A(f"s_cbranch_scc1 {sk}")
    A("s_mul_i32 s12, s3, 8*1152"); A("s_add_u32 s12, s12, s74"); A("s_add_u32 s12, s12, 1024")
    A("s_lshl_b32 s13, s3, 10"); A(f"s_add_u32 s13, s13, {S_DOWN + 8*4608}")
    A("s_cmp_lg_u32 s3, 4"); A(f"s_cbranch_scc1 {sk2}"); A("s_mov_b32 exec_hi, 0"); A(f"{sk2}:")
    dma(r['offd'], 68, "s12", "s13")
    A("s_mov_b64 exec, -1")
    A(f"{sk}:")
    A("s_lshl_b32 s12, s3, 7"); A("s_add_u32 s74, s74, s12")
    def down_dma(b):
        if cfg["d_win"] is not None and b < cfg["down_pre"]: A(f"s_waitcnt vmcnt({cfg['d_win']-1})")
        A(f"s_add_u32 s12, s74, {b*8*1152}"); A(f"s_add_u32 s13, s76, {S_DOWN + b*1024}")
        if b == 4: A("s_mov_b32 exec_hi, 0")
        dma(r['offd'], 68, "s12", "s13")
        if b == 4: A("s_mov_b64 exec, -1")
    npre = cfg["down_pre"]
    for b in range(npre): down_dma(b)
    A(f"s_waitcnt vmcnt({npre + (2 if cfg['local'] else 1)})")
    stamp(7)
    lc_column(S_UP - S_GATE, True)
    for b_ in (r['trb'], r['trc']):
        for t in range(4): A(f"v_subrev_u32 v{b_+t}, {S_GATE - S_DOWN}, v{b_+t}")
    A(f"s_add_u32 s77, s76, {S_DOWN}")
    select4(d, [d, d+4, d+8, d+12]); tag_dword(d, R)
    store2(d, r['sa'], "s83", 2304, WS_GUL - WS_GU)
    stamp(8)
    A("s_mov_b32 s79, s88")
    A("s_mov_b32 s84, 0x3ffff"); A("s_mov_b32 s85, 0x3ffff")
    def ld(): A(f"buffer_load_dwordx4 {vr(r['q'],4)}, v{r['hfa']}, s[44:47], s79 offen sc1")
    def ck():
        check_f32(r['bad'], [r['q']]); A(f"v_and_b32 v{r['bad']}, 0xff, v{r['bad']}"); A(f"v_cmp_ne_u32 vcc, 0, v{r['bad']}")
    def bt():
        for b in range(npre, 5): down_dma(b)
    A(f"s_add_u32 s82, s79, {WS_GUL - WS_GU}"); A("s_mov_b32 s83, s79")
    poll(ld, ck, base_exec="s[84:85]", first_wait=5 - npre, between=bt if npre < 5 else None, sid=1, alt=("s79", "s82", "s83") if cfg["local"] else None)
    stamp(9)
    q = r['q']
    for e in range(4): A(f"v_and_b32 v{q+e}, s7, v{q+e}")
    A(f"v_permlane32_swap_b32 v{q}, v{q+2}"); A(f"v_permlane32_swap_b32 v{q+1}, v{q+3}")
    A(f"v_add_f32 v{q}, v{q}, v{q+2}"); A(f"v_add_f32 v{q+1}, v{q+1}, v{q+3}")
    A("s_mov_b64 exec, s[84:85]")
    A(f"ds_write_b64 v{r['hfw']}, {vr(q,2)}")
    A("s_mov_b64 exec, -1")
    A("s_waitcnt lgkmcnt(0)"); A("s_barrier")
    A(f"v_min_u32 v{r['t0']}, 35, v{LANE}"); A(f"v_lshlrev_b32 v{r['t1']}, 2, v{r['t0']}"); A(f"v_add_u32 v{r['t1']}, {S_GUL}, v{r['t1']}")
    kf = r['kf']
    for w_ in range(8):
        A(f"ds_read_b32 v{kf+w_}, v{r['t1']} offset:{288*w_}"); A(f"ds_read_b32 v{kf+8+w_}, v{r['t1']} offset:{288*w_+144}")
    A("s_lshl_b32 s12, s3, 7"); A(f"s_add_u32 s12, s12, {S_HB}")
    A(f"v_lshl_add_u32 v{r['sb']}, v{r['t0']}, 1, s12")
    A(f"v_lshl_add_u32 v{r['xg']}, v{G}, 3, s12")
    A(f"v_mov_b32 v{r['xz']}, {S_ZERO}"); A("s_add_u32 s12, s12, 64"); A(f"v_mov_b32 v{r['t0']}, s12")
    A(f"v_cmp_gt_u32 vcc, 16, v{LANE}"); A(f"v_cndmask_b32 v{r['xz']}, v{r['xz']}, v{r['t0']}, vcc")
    A("s_waitcnt lgkmcnt(0)")
    for st in (4, 2, 1):
        for e in range(st):
            A(f"v_add_f32 v{kf+e}, v{kf+e}, v{kf+e+st}"); A(f"v_add_f32 v{kf+8+e}, v{kf+8+e}, v{kf+8+e+st}")
    A(f"v_mul_f32 v{kf}, {hex(f2u(-1.4426950408889634))}, v{kf}")
    A(f"v_exp_f32 v{kf}, v{kf}"); A(f"v_add_f32 v{kf}, 1.0, v{kf}"); A(f"v_rcp_f32 v{kf}, v{kf}")
    A(f"v_mul_f32 v{kf}, v{kf}, v{kf+8}"); A(f"v_cvt_pk_bf16_f32 v{kf}, v{kf}, v{kf}")
    A(f"ds_write_b16 v{r['sb']}, v{kf}")
    A("s_waitcnt lgkmcnt(0)")
    A(f"ds_read_b64 {vr(fa,2)}, v{r['xg']}"); A(f"ds_read_b64 {vr(fa+2,2)}, v{r['xg']} offset:32"); A(f"ds_read_b64 {vr(fa+4,2)}, v{r['xz']}")
    A("s_mul_i32 s79, s2, 2304"); A(f"s_add_u32 s79, s79, {WS_OP}")
    stamp(10)
    sk = A.lab("sk")
    A("s_cmp_ge_u32 s3, 2"); A(f"s_cbranch_scc1 {sk}")
    A(f"s_mov_b32 s82, {S_DOWN + 8*4608}")
    lc_pair9("s82", "s3", r['t0'], r['t1'])
    A("s_lshl_b32 s12, s3, 7"); A("s_add_u32 s12, s12, s79")
    A("s_mov_b32 exec_hi, 0"); A(f"buffer_store_dword v{d}, v{r['sa']}, s[44:47], s12 offen offset:2048 sc1"); A("s_mov_b64 exec, -1")
    A("s_waitcnt vmcnt(1)")
    jn = A.lab("jn"); A(f"s_branch {jn}")
    A(f"{sk}:")
    A("s_waitcnt vmcnt(0)")
    A(f"{jn}:")
    stamp(11)
    lc_column(0, True)
    A("s_lshl_b32 s12, s3, 8"); A("s_add_u32 s12, s12, s79")
    select4(d, [d, d+4, d+8, d+12]); tag_dword(d, R)
    A(f"buffer_store_dword v{d}, v{r['sa']}, s[44:47], s12 offen sc1")
    stamp(12)
    write_stamps()
    A("s_endpgm")
    A("L_S1:")

    A("L_P:")
    R = Regs(4); common_regs(R); r = R.d
    R("l16"); R("sa"); R("sb"); R("sc"); R("qkb"); R("pva"); R("pvb"); R("qbw"); R("qbr")
    R("tl", 4); R("xres"); R("m"); R("ms")
    R("mxw"); R("mxr"); R("pfw"); R("pfr"); R("tbw"); R("tbr"); R("pst"); R("h3d"); R("h3m"); R("pbw"); R("pbr")
    R("h4a"); R("wmr"); R("wmo"); R("wob"); R("wo9")
    R("h2", 16, 4); R("bq", 16, 4); R("s", 4, 4); R("acc", 16, 4); R("accl", 8, 4); R("fm", 12, 4)
    UVF = 0; WOF = 32
    A(f"v_lshlrev_b32 v{r['l16']}, 4, v{LANE}")
    A("s_and_b32 s72, s5, 1"); A("s_lshl_b32 s72, s72, 4"); A("s_lshl_b32 s12, s4, 1"); A("s_add_u32 s72, s72, s12"); A("s_lshr_b32 s12, s5, 3"); A("s_add_u32 s72, s72, s12")
    A("s_bfe_u32 s73, s5, 0x20001")
    A("s_lshr_b32 s74, s5, 1"); A("s_lshl_b32 s12, s4, 3"); A("s_add_u32 s74, s74, s12")
    A("s_and_b32 s75, s5, 1")
    A("s_lshl_b32 s76, s74, 7"); A("s_add_u32 s76, s76, s3")
    A("s_lshl_b32 s12, s75, 6"); A("s_xor_b32 s13, s12, 64")
    A("s_add_u32 s77, s76, s13"); A("s_add_u32 s76, s76, s12")
    A("s_lshl_b32 s76, s76, 10"); A("s_lshl_b32 s77, s77, 10")
    A(f"s_mul_i32 s78, s3, {CKS}")
    A("s_waitcnt lgkmcnt(0)")
    if cfg["ws_base"]: A(f"s_add_u32 s40, s40, {cfg['ws_base']}"); A("s_addc_u32 s41, s41, 0")
    if cfg["epoch_v"]: A(f"v_mov_b32 v{r['tagb']}, 0"); A(f"global_load_dword v{r['bad']}, v{r['tagb']}, s[40:41] nt")
    else: A("s_load_dword s6, s[40:41], 0")
    srd(52, 18, 8192*1024)
    if cfg.get("probe"):
        preg, poff, pfl = cfg["probe"]
        sk = A.lab("sk"); A("s_cmp_lg_u32 s2, 128"); A(f"s_cbranch_scc1 {sk}"); A("s_cmp_lg_u32 s3, 0"); A(f"s_cbranch_scc1 {sk}")
        A(f"v_mov_b32 v{r['t0']}, {poff - 65536}"); A(f"global_load_dword v{r['t1']}, v{r['t0']}, s[{preg}:{preg+1}] {pfl}"); A("s_waitcnt vmcnt(0)")
        A(f"v_mov_b32 v{r['t0']}, {poff}")
        stamp(30); A(f"global_load_dword v{r['t1']}, v{r['t0']}, s[{preg}:{preg+1}] {pfl}"); A("s_waitcnt vmcnt(0)"); stamp(31)
        A(f"{sk}:")
    code_prefetch("L_P0", "L_P1", r['h2'], r['t0'])
    A("L_P0:")
    srd(44, 40, WS_SIZE)
    zr = r['fm']
    for e in range(4): A(f"v_mov_b32 v{zr+e}, 0")
    def gul_lines(op):
        jn = A.lab("jn"); s4 = A.lab("sk"); s5 = A.lab("sk")
        A("s_cmp_ge_u32 s3, 6"); A(f"s_cbranch_scc1 {jn}")
        A("s_lshl_b32 s12, s4, 4"); A("s_add_u32 s12, s12, s5")
        A("s_mul_i32 s12, s12, 4608"); A("s_lshl_b32 s13, s3, 10"); A("s_add_u32 s12, s12, s13"); A(f"s_add_u32 s12, s12, {WS_GUL}")
        A("s_cmp_lg_u32 s3, 5"); A(f"s_cbranch_scc1 {s5}")
        A("s_lshl_b32 s12, s72, 2"); A("s_add_u32 s12, s12, s73"); A("s_lshl_b32 s12, s12, 9"); A(f"s_add_u32 s12, s12, {WS_CPL}")
        A(f"{s5}:")
        A("s_cmp_lt_u32 s3, 4"); A(f"s_cbranch_scc1 {s4}"); A("s_mov_b32 exec_hi, 0"); A(f"{s4}:")
        op("s12"); A("s_mov_b64 exec, -1")
        A(f"{jn}:")
    if cfg["hints"] == "atomic":
        A("s_lshl_b32 s89, s75, 10"); A("s_lshl_b32 s12, s4, 7"); A("s_add_u32 s89, s89, s12"); A(f"s_add_u32 s89, s89, {WS_HINT}")
        sk = A.lab("sk"); A("s_lshr_b32 s12, s5, 1"); A("s_or_b32 s12, s12, s3"); A("s_cmp_lg_u32 s12, 0"); A(f"s_cbranch_scc1 {sk}")
        A("s_mov_b64 exec, 0xff"); A(f"buffer_store_dwordx4 {vr(zr,4)}, v{r['l16']}, s[44:47], s89 offen sc1"); A("s_mov_b64 exec, -1")
        A(f"{sk}:")
    warm = cfg["local"] and cfg["touch"]
    def gul_zero():
        if warm: gul_lines(lambda so: A(f"buffer_store_dwordx4 {vr(zr,4)}, v{r['l16']}, s[44:47], {so} offen sc1"))
    if cfg["wuk_pf"]:
        srd(68, 22, 512*8192)
        A("s_lshr_b32 s12, s5, 2"); A("s_lshl_b32 s13, s4, 2"); A("s_add_u32 s12, s12, s13"); A("s_lshl_b32 s12, s12, 8")
        A("s_and_b32 s13, s5, 3"); A("s_lshl_b32 s13, s13, 3"); A("s_add_u32 s13, s13, s3"); A("s_lshl_b32 s13, s13, 17"); A("s_add_u32 s12, s12, s13")
        A(f"v_lshlrev_b32 v{r['t0']}, 4, v{N}"); A(f"v_lshl_add_u32 v{r['t0']}, v{G}, 13, v{r['t0']}")
        for i in range(4):
            A(f"buffer_load_dwordx4 {vr(r['bq']+4*i,4)}, v{r['t0']}, s[68:71], s12 offen {NT}")
            if i < 3: A(f"s_add_u32 s12, s12, {4*8192}")
    def ck_dma(i):
        sreg = "s76" if i < 8 else "s77"
        if cfg["p_win1"] is not None and cfg["p_win1"] <= i < cfg["p_n1"]: A(f"s_waitcnt vmcnt({cfg['p_win1']-1})")
        A(f"s_add_u32 s13, s78, {P_CK + i*8*CKS}")
        dma(r['l16'], 52, sreg, "s13")
        if i % 8 < 7: A(f"s_add_u32 {sreg}, {sreg}, 8192")
    if not cfg["p_delay"]: ck_dma(0)
    srd(56, 24, 512*8192); srd(60, 26, 4096*1152); srd(48, 16, 1152); srd(64, 36, 1152)
    A(f"v_lshlrev_b32 v{r['sa']}, 2, v{LANE}")
    A("s_lshl_b32 s12, s3, 4"); A(f"v_add_u32 v{r['t0']}, s12, v{N}"); A(f"v_mul_u32_u24 v{r['t0']}, {CKS}, v{r['t0']}")
    A(f"v_lshl_add_u32 v{r['qkb']}, v{G}, 4, v{r['t0']}")
    A(f"v_lshrrev_b32 v{r['t0']}, 2, v{N}"); A(f"v_lshl_add_u32 v{r['t0']}, v{G}, 2, v{r['t0']}"); A(f"v_mul_u32_u24 v{r['t0']}, {CKS}, v{r['t0']}")
    A(f"v_and_b32 v{r['t1']}, 3, v{N}"); A(f"v_lshl_add_u32 v{r['t0']}, v{r['t1']}, 3, v{r['t0']}")
    A("s_lshl_b32 s12, s3, 7"); A(f"v_add_u32 v{r['pva']}, s12, v{r['t0']}"); A(f"v_add_u32 v{r['pvb']}, {64*CKS}, v{r['pva']}")
    A(f"v_bfe_u32 v{r['t0']}, v{LANE}, 1, 2"); A("s_lshl_b32 s12, s3, 1"); A(f"v_xor_b32 v{r['t1']}, s12, v{r['t0']}")
    A(f"v_lshlrev_b32 v{r['t1']}, 4, v{r['t1']}"); A(f"v_lshl_add_u32 v{r['t1']}, v{r['t0']}, 8, v{r['t1']}")
    A(f"v_lshrrev_b32 v{r['t0']}, 3, v{LANE}"); A(f"v_mul_u32_u24 v{r['t0']}, 1088, v{r['t0']}"); A(f"v_add_u32 v{r['t1']}, v{r['t1']}, v{r['t0']}")
    A(f"v_and_b32 v{r['t0']}, 1, v{LANE}"); A(f"v_lshl_add_u32 v{r['t1']}, v{r['t0']}, 3, v{r['t1']}"); A(f"v_add_u32 v{r['qbw']}, {P_QB}, v{r['t1']}")
    A(f"v_xor_b32 v{r['t0']}, v{N}, v{G}"); A(f"v_lshlrev_b32 v{r['t0']}, 4, v{r['t0']}"); A(f"v_lshl_add_u32 v{r['t0']}, v{G}, 8, v{r['t0']}")
    A(f"v_add_u32 v{r['qbr']}, {P_QB}, v{r['t0']}")
    h2pos = cfg["h2_pos"]
    assert 8 <= h2pos <= 16
    if not cfg["p_delay"]:
        for i in range(1, 8): ck_dma(i)
    addr_q_style(R); addr_trq(R, P_WUV, 2); addr_lc_src(r['offd'], R, 1152); addr_lc_tr(R, r['trb'])
    def p_tags():
        A("s_waitcnt lgkmcnt(0)")
        tags(R, 63)
        for j in range(4):
            A(f"v_bfe_u32 v{r['t0']}, v{r['tagb']}, {2*j}, 1"); A(f"v_bfe_u32 v{r['t1']}, v{r['tagb']}, {2*j+1}, 1")
            A(f"v_lshl_or_b32 v{r['tl']+j}, v{r['t1']}, 16, v{r['t0']}")
    if cfg["gate_p"]: p_tags()
    t0 = r['t0']; t1 = r['t1']
    A(f"v_lshlrev_b32 v{t0}, 5, v{N}"); A(f"v_add_u32 v{r['mxr']}, {P_MX}, v{t0}"); A("s_lshl_b32 s12, s3, 2"); A(f"v_add_u32 v{r['mxw']}, s12, v{r['mxr']}")
    A("s_lshr_b32 s12, s3, 1"); A("s_lshl_b32 s12, s12, 10"); A("s_and_b32 s13, s3, 1"); A("s_lshl_b32 s13, s13, 3"); A("s_add_u32 s12, s12, s13")
    A(f"v_add_u32 v{r['pfr']}, {P_PF}, v{r['l16']}"); A(f"v_add_u32 v{r['pfw']}, s12, v{r['pfr']}")
    A("s_mul_i32 s12, s3, 2304"); A(f"s_add_u32 s12, s12, {P_TB}")
    A(f"v_mul_u32_u24 v{t0}, 144, v{N}"); A(f"v_lshl_add_u32 v{t0}, v{G}, 3, v{t0}"); A(f"v_add_u32 v{r['tbw']}, s12, v{t0}")
    A(f"v_lshrrev_b32 v{t0}, 3, v{LANE}"); A(f"v_and_b32 v{t1}, 7, v{LANE}"); A(f"v_lshlrev_b32 v{t1}, 4, v{t1}")
    A(f"v_lshl_add_u32 v{r['pst']}, v{t0}, 16, v{t1}")
    A(f"v_mul_u32_u24 v{t0}, 144, v{t0}"); A(f"v_add3_u32 v{r['tbr']}, v{t0}, v{t1}, s12")
    A(f"v_lshlrev_b32 v{t0}, 4, v{N}"); A(f"v_lshl_add_u32 v{r['h3d']}, v{G}, 10, v{t0}"); A(f"v_lshrrev_b32 v{t1}, 3, v{N}"); A(f"v_lshl_add_u32 v{t1}, v{t1}, 2, v{G}"); A(f"v_lshlrev_b32 v{r['h3m']}, 9, v{t1}")
    A(f"v_lshrrev_b32 v{t0}, 2, v{N}"); A(f"v_lshlrev_b32 v{t0}, 4, v{t0}")
    A(f"v_and_b32 v{t1}, 1, v{N}"); A(f"v_lshl_add_u32 v{t0}, v{t1}, 3, v{t0}")
    A(f"v_bfe_u32 v{t1}, v{N}, 1, 1"); A(f"v_lshl_add_u32 v{t0}, v{t1}, 1, v{t0}")
    A(f"v_lshrrev_b32 v{t1}, 1, v{G}"); A(f"v_lshl_add_u32 v{t0}, v{t1}, 2, v{t0}")
    A(f"v_and_b32 v{t1}, 1, v{G}"); A(f"v_add_u32 v{t0}, v{t0}, v{t1}")
    A("s_mul_i32 s12, s3, 272"); A(f"s_add_u32 s12, s12, {P_PB}"); A(f"v_lshl_add_u32 v{r['pbw']}, v{t0}, 2, s12")
    A(f"v_lshlrev_b32 v{t1}, 4, v{t1}"); A(f"v_add_u32 v{r['wmr']}, {P_MX}, v{t1}"); A(f"v_xor_b32 v{r['wmo']}, 16, v{r['wmr']}")
    A(f"v_and_b32 v{t0}, 7, v{N}"); A(f"v_mul_u32_u24 v{t0}, 272, v{t0}"); A(f"v_lshl_add_u32 v{t0}, v{G}, 4, v{t0}"); A(f"v_add_u32 v{r['pbr']}, {P_PB}, v{t0}")
    A(f"v_lshrrev_b32 v{t0}, 2, v{N}"); A(f"v_lshlrev_b32 v{t0}, 9, v{t0}"); A(f"v_and_b32 v{t1}, 1, v{N}"); A(f"v_lshl_add_u32 v{t0}, v{t1}, 6, v{t0}")
    A(f"v_lshl_add_u32 v{r['h4a']}, v{G}, 4, v{t0}")
    A("s_lshl_b32 s83, s3, 12"); A(f"s_add_u32 s12, s83, {P_WO}"); A(f"v_add_u32 v{r['wob']}, s12, v{r['trb']}")
    A("s_and_b32 s12, s3, 1"); A("s_lshl_b32 s12, s12, 6"); A(f"v_xor_b32 v{t0}, s12, v{r['trb']}"); A(f"v_add_u32 v{r['wo9']}, {P_WO9}, v{t0}")
    A("s_lshl_b32 s80, s73, 7"); A("s_lshl_b32 s12, s3, 2"); A("s_add_u32 s80, s80, s12"); A("s_lshl_b32 s80, s80, 13")
    A("s_lshl_b32 s12, s72, 8"); A("s_add_u32 s80, s80, s12"); A("s_lshl_b32 s81, s3, 10")
    A("s_lshl_b32 s82, s72, 7"); A("s_lshl_b32 s12, s73, 5"); A("s_add_u32 s82, s82, s12"); A("s_mul_i32 s82, s82, 1152")
    def p_prewrite():
        if not cfg["prew2"]: return
        A("s_lshl_b32 s12, s75, 20"); A("s_lshl_b32 s13, s74, 10"); A("s_add_u32 s12, s12, s13"); A("s_lshl_b32 s13, s3, 7"); A("s_add_u32 s12, s12, s13")
        A(f"s_add_u32 s12, s12, {WS_PART}"); A(f"s_add_u32 s13, s12, {8 << 16}")
        A(f"buffer_store_dwordx4 {vr(zr,4)}, v{r['pst']}, s[44:47], s12 offen sc1"); A(f"buffer_store_dwordx4 {vr(zr,4)}, v{r['pst']}, s[44:47], s13 offen sc1")
        op_prewrite(zr, r['l16'], 1)
        sk = A.lab("sk"); A("s_cmp_lg_u32 s3, 0"); A(f"s_cbranch_scc1 {sk}")
        A("s_lshl_b32 s12, s75, 8"); A("s_lshl_b32 s13, s74, 9"); A("s_add_u32 s12, s12, s13"); A(f"s_add_u32 s12, s12, {WS_ML}")
        A("s_mov_b64 exec, 0xffff"); A(f"buffer_store_dwordx4 {vr(zr,4)}, v{r['l16']}, s[44:47], s12 offen sc1"); A("s_mov_b64 exec, -1")
        A(f"{sk}:")
    if cfg["gate_s"]: go_write("0", t0, r['sa'])
    for i in range(cfg["p_pre"] if cfg["p_delay"] else 0): ck_dma(i)
    if cfg["gate_p"]: go_wait(t0, r['sa'])
    stamp(15)
    gul_zero()
    pipe = cfg["p_mode"] == "pipe"
    if not pipe:
        for i in range(cfg["p_pre"] if cfg["p_delay"] else 8, h2pos):
            if i == cfg["prew_pos"]: p_prewrite()
            ck_dma(i)
        if not cfg["gate_p"]: p_tags()
    A("s_lshl_b32 s79, s75, 4"); A("s_lshl_b32 s12, s3, 1"); A("s_add_u32 s79, s79, s12"); A("s_lshl_b32 s79, s79, 11"); A(f"s_add_u32 s79, s79, {WS_QA}")
    if cfg["qa_rep"] > 1: A(f"s_and_b32 s12, s4, {cfg['qa_rep']-1}"); A("s_lshl_b32 s12, s12, 16"); A("s_add_u32 s79, s79, s12")
    A("s_lshl_b32 s12, s4, 12"); A("s_lshl_b32 s13, s75, 11"); A("s_add_u32 s12, s12, s13"); A(f"s_add_u32 s12, s12, {WS_HINT}")
    A("s_mov_b32 s84, s12")
    h2 = r['h2']
    def pv_frags(v0, v1):
        for v in range(v0, v1):
            for u in range(4):
                for rd in range(2):
                    b_ = r['pva'] if v < 2 else r['pvb']
                    A(f"ds_read_b64_tr_b16 {ar(64 + (v*4+u)*4 + 2*rd, 2)}, v{b_} offset:{(32*(v%2) + 16*rd)*CKS + 32*u}")
    def qk_frags():
        for t in range(16): A(f"ds_read_b128 {ar(4*t,4)}, v{r['qkb']} offset:{64*t}")
    def ld():
        for e in range(4): A(f"buffer_load_dwordx4 {vr(h2+4*e,4)}, v{r['l16']}, s[44:47], s79 offen offset:{1024*e} sc1")
    def ck():
        check_f32(r['bad'], [h2, h2+4, h2+8, h2+12]); A(f"v_and_b32 v{r['bad']}, 0xff, v{r['bad']}"); A(f"v_cmp_ne_u32 vcc, 0, v{r['bad']}")
    def wuv_dma(i):
        A(f"s_add_u32 s12, s80, {i*32*8192}"); A(f"s_add_u32 s13, s81, {P_WUV + i*8192}"); dma(r['offq'], 56, "s12", "s13")
    def wo9():
        sk = A.lab("sk"); A("s_cmp_ge_u32 s3, 4"); A(f"s_cbranch_scc1 {sk}")
        A("s_mul_i32 s12, s3, 8*1152"); A("s_add_u32 s12, s12, s82"); A("s_add_u32 s12, s12, 1024"); A(f"s_add_u32 s13, s81, {P_WO9}")
        dma(r['offd'], 60, "s12", "s13"); A(f"{sk}:")
        A("s_lshl_b32 s12, s3, 7"); A("s_add_u32 s82, s82, s12")
    def wo_dma(b):
        A(f"s_add_u32 s12, s82, {b*8*1152}"); A(f"s_add_u32 s13, s83, {P_WO + b*1024}"); dma(r['offd'], 60, "s12", "s13")
    def convert():
        for e in range(16): A(f"v_and_b32 v{h2+e}, s7, v{h2+e}")
        for e in range(8): A(f"v_cvt_pk_bf16_f32 v{h2+e}, v{h2+2*e}, v{h2+2*e+1}")
        A(f"v_xor_b32 v{r['t0']}, 16, v{r['qbw']}")
        A(f"ds_write_b64 v{r['qbw']}, {vr(h2,2)}"); A(f"ds_write_b64 v{r['qbw']}, {vr(h2+2,2)} offset:{8*1088}")
        A(f"ds_write_b64 v{r['t0']}, {vr(h2+4,2)}"); A(f"ds_write_b64 v{r['t0']}, {vr(h2+6,2)} offset:{8*1088}")
    def pv_tile(t):
        v, rd = t // 2, t % 2
        for u in range(4):
            b_ = r['pva'] if v < 2 else r['pvb']
            A(f"ds_read_b64_tr_b16 {ar(64 + (v*4+u)*4 + 2*rd, 2)}, v{b_} offset:{(32*(v%2) + 16*rd)*CKS + 32*u}")
    def qk_tiles(ta, tb):
        sk = A.lab("sk"); go = A.lab("go")
        A(f"s_cmp_eq_u32 s3, {ta}"); A(f"s_cbranch_scc1 {go}"); A(f"s_cmp_lg_u32 s3, {tb}"); A(f"s_cbranch_scc1 {sk}")
        A(f"{go}:"); qk_frags(); A(f"{sk}:")
    def rows(spec, win):
        for kind, i in spec:
            if win is not None: A(f"s_waitcnt vmcnt({win-1})")
            A(f"s_add_u32 s12, {'s76' if kind == 'o' else 's77'}, {i*8192}"); A(f"s_add_u32 s13, s78, {P_CK + (i + (0 if kind == 'o' else 8))*8*CKS}")
            dma(r['l16'], 52, "s12", "s13")
    def hint_read():
        A(f"v_mov_b32 v{r['bad']}, 0"); A(f"buffer_atomic_add v{r['bad']}, v{r['sa']}, s[44:47], s89 offen sc0 sc1")
    def stage_tail():
        p_prewrite()
        for i in range(4): wuv_dma(i)
        if cfg["prew2"]:
            sk = A.lab("sk"); jn = A.lab("jn")
            A("s_cmp_ge_u32 s3, 4"); A(f"s_cbranch_scc1 {sk}"); A("s_waitcnt vmcnt(7) lgkmcnt(0)"); A(f"s_branch {jn}")
            A(f"{sk}:"); A("s_waitcnt vmcnt(6) lgkmcnt(0)"); A(f"{jn}:")
        else: A("s_waitcnt vmcnt(4) lgkmcnt(0)")
        A("s_barrier")
    if pipe:
        assert cfg["p_delay"] and cfg["hints"] == "atomic" and cfg["p_pre"] == 0
        w0, w1, w2 = cfg["pw"]
        rows([("o",0),("o",1),("o",2),("o",3)], w0)
        rows([("o",4),("p",0),("o",5),("p",1)], w1)
        if not cfg["gate_p"]: p_tags()
        A(f"v_mov_b32 v{r['sb']}, {P_FR}")
        A("s_waitcnt vmcnt(4)"); A("s_barrier")
        stamp(1)
        sk = A.lab("sk"); A("s_cmp_lg_u32 s3, 0"); A(f"s_cbranch_scc1 {sk}"); A("s_mov_b64 exec, 1"); hint_read(); A("s_mov_b64 exec, -1"); A(f"{sk}:")
        rows([("o",6),("p",2),("o",7),("p",3)], w2)
        qk_tiles(0, 1); pv_tile(0); pv_tile(1)
        A("s_waitcnt vmcnt(4)")
        sk = A.lab("sk"); A("s_cmp_lg_u32 s3, 0"); A(f"s_cbranch_scc1 {sk}"); A("s_mov_b64 exec, 1"); A(f"ds_write_b32 v{r['sb']}, v{r['bad']}"); A("s_mov_b64 exec, -1"); A(f"{sk}:")
        A("s_waitcnt lgkmcnt(0)"); A("s_barrier")
        A(f"ds_read_b32 v{r['bad']}, v{r['sb']}")
        if warm: gul_lines(lambda so: A(f"buffer_load_dwordx4 {vr(r['acc'],4)}, v{r['l16']}, s[44:47], {so} offen"))
        A("s_waitcnt lgkmcnt(0)"); A(f"v_readfirstlane_b32 s88, v{r['bad']}")
        stamp(22)
        NR = A.lab("notready"); QK = A.lab("qk")
        A("s_cmp_lt_u32 s88, 16"); A(f"s_cbranch_scc1 {NR}")
        tailrows = [("p",4),("p",5),("p",6),("p",7)]
        def bt():
            rows(tailrows, None)
            qk_tiles(2, 4); pv_tile(2); pv_tile(4)
            A("s_waitcnt vmcnt(8)"); A("s_barrier")
            stamp(2)
            if cfg["gate_s"]: go_write("s6", t0, r['sa'])
            qk_tiles(3, 5); pv_tile(3); pv_tile(5)
        poll(ld, ck, between=bt, sid=0, first_wait=4)
        stamp(3)
        convert()
        stage_tail()
        qk_tiles(6, 7)
        A("s_mov_b32 s88, 1")
        A(f"s_branch {QK}")
        A(f"{NR}:")
        rows(tailrows, None)
        qk_tiles(2, 4); pv_tile(2); pv_tile(4)
        A("s_waitcnt vmcnt(4)"); A("s_barrier")
        stamp(2)
        if cfg["gate_s"]: go_write("s6", t0, r['sa'])
        qk_tiles(3, 5); pv_tile(3); pv_tile(5)
        stage_tail()
        qk_tiles(6, 7); pv_tile(6); pv_tile(7)
        sk = A.lab("sk"); L = A.lab("hint")
        A("s_cmp_lg_u32 s3, 0"); A(f"s_cbranch_scc1 {sk}")
        A("s_mov_b32 s14, 0"); A("s_mov_b64 exec, 1")
        A(f"{L}:")
        hint_read(); A("s_waitcnt vmcnt(0)")
        A(f"v_readfirstlane_b32 s15, v{r['bad']}"); A("s_add_u32 s14, s14, 1"); A(f"s_cmp_ge_u32 s14, {cfg['gate_cap']}"); A("s_cselect_b32 s15, 16, s15")
        A("s_cmp_lt_u32 s15, 16"); A(f"s_cbranch_scc1 {L}")
        A("s_mov_b64 exec, -1")
        if cfg["stamps"]: A(f"v_writelane_b32 v0, s14, 28")
        A(f"{sk}:")
        A("s_barrier")
        stamp(14)
        poll(ld, ck, sid=0)
        stamp(3)
        convert()
        A("s_mov_b32 s88, 0")
        A("s_waitcnt lgkmcnt(0)"); A("s_barrier")
        A(f"{QK}:")
        stamp(4)
    else:
        assert h2pos == 16
        stamp(1)
        A("s_waitcnt vmcnt(8)"); A("s_barrier")
        stamp(2)
        if cfg["gate_s"] and cfg["go_at"] == "own": go_write("s6", t0, r['sa'])
        if warm: gul_lines(lambda so: A(f"buffer_load_dwordx4 {vr(r['acc'],4)}, v{r['l16']}, s[44:47], {so} offen"))
        def own_frags():
            sk = A.lab("sk"); A("s_cmp_ge_u32 s3, 4"); A(f"s_cbranch_scc1 {sk}"); qk_frags(); A(f"{sk}:")
            pv_frags(0, 2)
        def other_frags():
            sk = A.lab("sk"); A("s_cmp_lt_u32 s3, 4"); A(f"s_cbranch_scc1 {sk}"); qk_frags(); A(f"{sk}:")
            pv_frags(2, 4)
        if cfg["hints"] == "atomic":
            own_frags()
            A("s_waitcnt vmcnt(0) lgkmcnt(0)"); A("s_barrier")
            other_frags()
            sk = A.lab("sk"); L = A.lab("hint")
            A("s_cmp_lg_u32 s3, 0"); A(f"s_cbranch_scc1 {sk}")
            A("s_mov_b32 s14, 0"); A("s_mov_b64 exec, 1")
            A(f"{L}:")
            A(f"v_mov_b32 v{r['bad']}, 0"); A(f"buffer_atomic_add v{r['bad']}, v{r['sa']}, s[44:47], s89 offen sc0 sc1"); A("s_waitcnt vmcnt(0)")
            A(f"v_readfirstlane_b32 s15, v{r['bad']}"); A("s_add_u32 s14, s14, 1"); A(f"s_cmp_ge_u32 s14, {cfg['gate_cap']}"); A("s_cselect_b32 s15, 16, s15")
            A("s_cmp_lt_u32 s15, 16"); A(f"s_cbranch_scc1 {L}")
            A("s_mov_b64 exec, -1")
            if cfg["stamps"]: A(f"v_writelane_b32 v0, s14, 28")
            A(f"{sk}:")
            A("s_barrier")
            stamp(14)
            poll(ld, ck, sid=0)
        elif cfg["hints"]:
            A(f"v_lshlrev_b32 v{r['sb']}, 7, v{N}")
            def hld(): A(f"buffer_load_dword v{r['bad']}, v{r['sb']}, s[44:47], s84 offen sc1")
            def hck(): A(f"v_cmp_ne_u32 vcc, s6, v{r['bad']}")
            def hbt():
                own_frags()
                A("s_waitcnt vmcnt(1) lgkmcnt(0)"); A("s_barrier")
                if cfg["frags_first"]: other_frags()
            poll(hld, hck, base_exec="0xffff", between=hbt, sid=4)
            stamp(14)
            poll(ld, ck, between=None if cfg["frags_first"] else other_frags, sid=0)
        else:
            def bt():
                own_frags()
                A("s_waitcnt vmcnt(4) lgkmcnt(0)"); A("s_barrier")
                other_frags()
            poll(ld, ck, between=bt, sid=0)
        stamp(3)
        for e in range(16): A(f"v_and_b32 v{h2+e}, s7, v{h2+e}")
        for e in range(8): A(f"v_cvt_pk_bf16_f32 v{h2+e}, v{h2+2*e}, v{h2+2*e+1}")
        A(f"v_xor_b32 v{r['t0']}, 16, v{r['qbw']}")
        A(f"ds_write_b64 v{r['qbw']}, {vr(h2,2)}"); A(f"ds_write_b64 v{r['qbw']}, {vr(h2+2,2)} offset:{8*1088}")
        A(f"ds_write_b64 v{r['t0']}, {vr(h2+4,2)}"); A(f"ds_write_b64 v{r['t0']}, {vr(h2+6,2)} offset:{8*1088}")
        if cfg["gate_s"] and cfg["go_at"] == "h2": go_write("s6", t0, r['sa'])
        if cfg["prew_pos"] == 16: p_prewrite()
        for i in range(4): wuv_dma(i)
        A("s_waitcnt lgkmcnt(0)"); A("s_barrier")
        stamp(4)
    bq = r['bq']; s_ = r['s']
    for t in range(4): A(f"ds_read_b128 {vr(bq+4*t,4)}, v{r['qbr']} offset:{1088*t}")
    for t in range(16):
        A(f"s_waitcnt lgkmcnt({min(3, 15-t)})")
        A(f"v_mfma_f32_16x16x32_bf16 {vr(s_,4)}, {ar(4*t,4)}, {vr(bq+4*(t%4),4)}, {'0' if t == 0 else vr(s_,4)}")
        if t + 4 < 16: A(f"ds_read_b128 {vr(bq+4*(t%4),4)}, v{r['qbr']} offset:{1088*(t+4)}")
    m = r['m']
    if pipe:
        sk = A.lab("sk"); A("s_cmp_eq_u32 s88, 0"); A(f"s_cbranch_scc1 {sk}"); pv_tile(6); pv_tile(7); A(f"{sk}:")
    A(f"v_max3_f32 v{m}, v{s_}, v{s_+1}, v{s_+2}"); A(f"v_max_f32 v{m}, v{m}, v{s_+3}")
    allreduce_groups(m, t0, "v_max_f32")
    A("s_mov_b64 exec, 0xffff"); A(f"ds_write_b32 v{r['mxw']}, v{m}"); A("s_mov_b64 exec, -1")
    A(f"s_mov_b32 s15, {hex(f2u(SCALE2))}")
    A("s_waitcnt lgkmcnt(0)"); A("s_barrier")
    stamp(5)
    A(f"ds_read_b128 {vr(bq,4)}, v{r['mxr']}"); A(f"ds_read_b128 {vr(bq+4,4)}, v{r['mxr']} offset:16")
    A("s_waitcnt lgkmcnt(0)")
    A(f"v_max3_f32 v{m}, v{bq}, v{bq+1}, v{bq+2}"); A(f"v_max3_f32 v{t0}, v{bq+3}, v{bq+4}, v{bq+5}")
    A(f"v_max3_f32 v{m}, v{m}, v{bq+6}, v{bq+7}"); A(f"v_max_f32 v{m}, v{m}, v{t0}")
    A(f"v_mul_f32 v{r['ms']}, s15, v{m}")
    for e in range(4): A(f"v_fma_f32 v{s_+e}, v{s_+e}, s15, -v{r['ms']}")
    for e in range(4): A(f"v_exp_f32 v{s_+e}, v{s_+e}")
    A(f"v_cvt_pk_bf16_f32 v{s_}, v{s_}, v{s_+1}"); A(f"v_cvt_pk_bf16_f32 v{s_+1}, v{s_+2}, v{s_+3}")
    A(f"ds_write_b64 v{r['pfw']}, {vr(s_,2)}")
    A("s_waitcnt lgkmcnt(0)"); A("s_barrier")
    for v in range(4): A(f"ds_read_b128 {vr(bq+4*v,4)}, v{r['pfr']} offset:{1024*v}")
    stamp(6)
    acc = r['acc']
    for v in range(4):
        A(f"s_waitcnt lgkmcnt({3-v})")
        for u in range(4):
            A(f"v_mfma_f32_16x16x32_bf16 {vr(acc+4*u,4)}, {ar(64+(v*4+u)*4,4)}, {vr(bq+4*v,4)}, {'0' if v == 0 else vr(acc+4*u,4)}")
    sk = A.lab("sk"); A("s_cmp_lg_u32 s3, 0"); A(f"s_cbranch_scc1 {sk}")
    for e in range(4): A(f"v_mov_b32 v{h2+e}, 0x3f803f80")
    for v in range(4): A(f"v_mfma_f32_16x16x32_bf16 {vr(r['accl'],4)}, {vr(h2,4)}, {vr(bq+4*v,4)}, {'0' if v == 0 else vr(r['accl'],4)}")
    A(f"{sk}:")
    A("s_lshl_b32 s79, s75, 20"); A("s_lshl_b32 s12, s74, 10"); A("s_add_u32 s79, s79, s12"); A("s_lshl_b32 s12, s3, 7"); A("s_add_u32 s79, s79, s12")
    A(f"s_add_u32 s79, s79, {WS_PART}"); A(f"s_add_u32 s84, s79, {8 << 16}")
    A("s_mov_b32 s15, 0x07060302")
    for u in range(4):
        A(f"v_perm_b32 v{acc+4*u}, v{acc+4*u+1}, v{acc+4*u}, s15"); A(f"v_perm_b32 v{acc+4*u+1}, v{acc+4*u+3}, v{acc+4*u+2}, s15")
        A(f"ds_write_b64 v{r['tbw']}, {vr(acc+4*u,2)} offset:{32*u}")
    A("s_mov_b32 s15, 0xfffefffe")
    A("s_waitcnt lgkmcnt(0)")
    A(f"ds_read_b128 {vr(bq,4)}, v{r['tbr']}"); A(f"ds_read_b128 {vr(bq+4,4)}, v{r['tbr']} offset:{8*144}")
    for hh in range(2):
        A(f"s_waitcnt lgkmcnt({1-hh})")
        for j in range(4): A(f"v_and_or_b32 v{bq+4*hh+j}, v{bq+4*hh+j}, s15, v{r['tl']+j}")
        A(f"buffer_store_dwordx4 {vr(bq+4*hh,4)}, v{r['pst']}, s[44:47], {'s79' if hh == 0 else 's84'} offen sc1")
    sk = A.lab("sk"); A("s_cmp_lg_u32 s3, 0"); A(f"s_cbranch_scc1 {sk}")
    A(f"v_mov_b32 v{h2}, v{r['ms']}"); A(f"v_mov_b32 v{h2+1}, v{r['accl']}"); A(f"v_mov_b32 v{h2+2}, s6"); A(f"v_mov_b32 v{h2+3}, s6")
    A("s_lshl_b32 s12, s75, 8"); A("s_lshl_b32 s13, s74, 9"); A("s_add_u32 s12, s12, s13"); A(f"s_add_u32 s12, s12, {WS_ML}")
    A("s_mov_b64 exec, 0xffff"); A(f"buffer_store_dwordx4 {vr(h2,4)}, v{r['l16']}, s[44:47], s12 offen sc1"); A("s_mov_b64 exec, -1")
    A(f"{sk}:")
    stamp(7)
    cfg["wo_early"] = cfg["wo_pos"] == "early"
    if cfg["wo_early"]:
        wo9()
        for b in range(4): wo_dma(b)
    A("s_lshl_b32 s79, s72, 16"); A("s_lshl_b32 s12, s3, 13"); A("s_add_u32 s79, s79, s12"); A("s_lshl_b32 s12, s73, 8"); A("s_add_u32 s79, s79, s12")
    A(f"s_add_u32 s79, s79, {WS_PART}"); A("s_add_u32 s84, s79, 4096")
    A("s_lshl_b32 s74, s72, 4"); A("s_add_u32 s74, s74, s83"); A(f"s_add_u32 s74, s74, {WS_ML}")
    mla = acc; mlb = acc + 4
    if cfg["h3_ack"]: A(f"s_waitcnt vmcnt({4 if cfg['wo_early'] else 0})"); stamp(21)
    def ld():
        A(f"buffer_load_dwordx4 {vr(mla,4)}, v{r['h3m']}, s[44:47], s74 offen sc1")
        A(f"buffer_load_dwordx4 {vr(bq,4)}, v{r['h3d']}, s[44:47], s79 offen sc1")
        A(f"buffer_load_dwordx4 {vr(bq+4,4)}, v{r['h3d']}, s[44:47], s84 offen sc1")
    def ck():
        A(f"v_xor_b32 v{r['bad']}, v{bq}, v{r['tl']}")
        for e in range(1, 8): A(f"v_bitop3_b32 v{r['bad']}, v{bq+e}, v{r['tl']+e%4}, v{r['bad']} bitop3:0xbe")
        A(f"v_and_b32 v{r['bad']}, 0x10001, v{r['bad']}")
        A(f"v_bitop3_b32 v{r['bad']}, v{mla+2}, s6, v{r['bad']} bitop3:0xbe")
        A(f"v_cmp_ne_u32 vcc, 0, v{r['bad']}")
    def bt():
        if cfg["wo_pos"] == "mid":
            wo9()
            for b in range(4): wo_dma(b)
        if not cfg["h3_ack"]: A(f"s_waitcnt vmcnt({5 if cfg['wo_pos'] == 'late' else 9})")
        A("s_barrier")
        sk = A.lab("sk"); A("s_cmp_ge_u32 s3, 4"); A(f"s_cbranch_scc1 {sk}")
        A(f"v_xor_b32 v{t0}, 32, v{r['trq']}")
        for q in range(8):
            A(f"ds_read_b64_tr_b16 {ar(UVF+2*q,2)}, v{r['trq']} offset:{4096*q}"); A(f"ds_read_b64_tr_b16 {ar(UVF+16+2*q,2)}, v{t0} offset:{4096*q}")
        A(f"{sk}:")
        A("s_mov_b32 s15, 0x10000"); A("s_mov_b32 s13, 0xfffe0000"); A(f"v_mov_b32 v{t1}, 0x10000")
    poll(ld, ck, wqm=True, between=bt, sid=1, first_wait=4 if cfg["wo_pos"] == "mid" else 0)
    stamp(8)
    un = h2
    def unpack(e):
        A(f"v_lshl_or_b32 v{un+2*e}, v{bq+e}, 16, s15"); A(f"v_and_or_b32 v{un+2*e+1}, v{bq+e}, s13, v{t1}")
    lw = m + 1
    assert r['ms'] == m + 1
    A(f"v_max_f32_dpp v{m}, v{mla}, v{mla} row_ror:8 row_mask:0xf bank_mask:0xf"); A(f"v_mov_b32 v{t0}, v{m}"); unpack(0)
    A(f"v_permlane16_swap_b32 v{m}, v{t0}"); A(f"v_max_f32 v{m}, v{m}, v{t0}"); A(f"v_mov_b32 v{t0}, v{m}"); unpack(1)
    A(f"v_permlane32_swap_b32 v{m}, v{t0}"); A(f"v_max_f32 v{m}, v{m}, v{t0}")
    A(f"v_sub_f32 v{mla}, v{mla}, v{m}"); A(f"v_exp_f32 v{mla}, v{mla}")
    unpack(2); unpack(3)
    A(f"v_mul_f32 v{lw}, v{mla}, v{mla+1}")
    A(f"v_mov_b32_dpp v{mlb}, v{mla} row_newbcast:8 row_mask:0xf bank_mask:0xf"); A(f"v_mov_b32_dpp v{mla}, v{mla} row_newbcast:0 row_mask:0xf bank_mask:0xf")
    for e in range(4, 8): unpack(e)
    A(f"v_add_f32_dpp v{lw}, v{lw}, v{lw} row_ror:8 row_mask:0xf bank_mask:0xf")
    for e in range(8): A(f"v_mul_f32 v{un+e}, v{un+e}, v{mla}")
    for e in range(8): A(f"v_fmac_f32 v{un+e}, v{un+8+e}, v{mlb}")
    for e in range(4): A(f"v_permlane32_swap_b32 v{un+e}, v{un+4+e}")
    A(f"v_mov_b32 v{t0}, v{lw}")
    for e in range(4): A(f"v_add_f32 v{un+e}, v{un+e}, v{un+4+e}")
    A(f"v_permlane16_swap_b32 v{lw}, v{t0}")
    for e in range(2): A(f"v_permlane16_swap_b32 v{un+e}, v{un+2+e}")
    A(f"v_add_f32 v{lw}, v{lw}, v{t0}")
    for e in range(2): A(f"v_add_f32 v{un+e}, v{un+e}, v{un+2+e}")
    A(f"v_mov_b32 v{t0}, v{lw}")
    A(f"v_cvt_pk_bf16_f32 v{un}, v{un}, v{un+1}")
    A(f"ds_write_b32 v{r['pbw']}, v{un}")
    A(f"v_permlane32_swap_b32 v{lw}, v{t0}"); A(f"v_add_f32 v{lw}, v{lw}, v{t0}")
    A("s_mov_b64 exec, 1"); A(f"ds_write2_b32 v{r['mxw']}, v{m}, v{lw} offset0:0 offset1:8"); A("s_mov_b64 exec, -1")
    A("s_lshl_b32 s78, s72, 11")
    A("s_waitcnt vmcnt(0) lgkmcnt(0)" if cfg["wo_bar"] == "pb" else "s_waitcnt lgkmcnt(0)"); A("s_barrier")
    if cfg["wo_pos"] == "late":
        assert cfg["wo_bar"] == "h4"
        sk = A.lab("sk"); A("s_cmp_lt_u32 s3, 4"); A(f"s_cbranch_scc1 {sk}")
        A("s_sub_u32 s15, s3, 4")
        A("s_mul_i32 s12, s15, 8*1152"); A("s_add_u32 s12, s12, s82"); A("s_add_u32 s12, s12, 1024"); A("s_lshl_b32 s13, s15, 10"); A(f"s_add_u32 s13, s13, {P_WO9}")
        dma(r['offd'], 60, "s12", "s13")
        A("s_lshl_b32 s12, s15, 7"); A("s_add_u32 s82, s82, s12"); A("s_lshl_b32 s15, s15, 12")
        for c_ in range(2):
            for b in range(4):
                A(f"s_add_u32 s12, s82, {b*8*1152 + c_*512}"); A(f"s_add_u32 s13, s15, {P_WO + b*1024 + c_*16384}"); dma(r['offd'], 60, "s12", "s13")
        A(f"{sk}:")
    sk = A.lab("sk"); A("s_cmp_ge_u32 s3, 4"); A(f"s_cbranch_scc1 {sk}")
    fm = r['fm']
    A(f"ds_read_b128 {vr(fm,4)}, v{r['wmr']}"); A(f"ds_read_b128 {vr(fm+4,4)}, v{r['wmo']}")
    for v in range(4): A(f"ds_read_b128 {vr(bq+4*v,4)}, v{r['pbr']} offset:{64*v}")
    A(f"ds_read_b128 {vr(fm+8,4)}, v{r['wmr']} offset:32")
    A("s_lshl_b32 s12, s73, 9"); A("s_add_u32 s12, s12, s78"); A("s_lshl_b32 s13, s3, 7"); A("s_add_u32 s12, s12, s13"); A(f"s_add_u32 s76, s12, {WS_CP}"); A(f"s_add_u32 s85, s12, {WS_CPL}")
    da = acc; db = acc + 4
    def uvm(v):
        A(f"s_waitcnt lgkmcnt({4-v})")
        for t, dd in ((0, da), (1, db)): A(f"v_mfma_f32_16x16x32_bf16 {vr(dd,4)}, {vr(bq+4*v,4)}, {ar(UVF+16*t+4*v,4)}, {'0' if v == 0 else vr(dd,4)}")
    uvm(0)
    A(f"v_max3_f32 v{m}, v{fm}, v{fm+1}, v{fm+2}"); A(f"v_max3_f32 v{t0}, v{fm+3}, v{fm+4}, v{fm+5}")
    A(f"v_max3_f32 v{m}, v{m}, v{fm+6}, v{fm+7}"); A(f"v_max_f32 v{m}, v{m}, v{t0}")
    uvm(1)
    for e in range(4): A(f"v_sub_f32 v{fm+e}, v{fm+e}, v{m}")
    uvm(2)
    for e in range(4): A(f"v_exp_f32 v{fm+e}, v{fm+e}")
    uvm(3)
    A("s_waitcnt lgkmcnt(0)")
    A(f"v_mul_f32 v{lw}, v{fm}, v{fm+8}")
    for e in range(1, 4): A(f"v_fmac_f32 v{lw}, v{fm+e}, v{fm+8+e}")
    A(f"v_mov_b32 v{t0}, v{lw}"); A(f"v_permlane16_swap_b32 v{lw}, v{t0}"); A(f"v_add_f32 v{lw}, v{lw}, v{t0}"); A(f"v_rcp_f32 v{lw}, v{lw}")
    for dd in (da, db):
        A(f"v_mul_f32 v{dd}, v{dd}, v{fm}")
        for e in range(1, 4): A(f"v_fmac_f32 v{dd}, v{dd+e}, v{fm+e}")
    A(f"v_permlane16_swap_b32 v{da}, v{db}"); A(f"v_add_f32 v{da}, v{da}, v{db}")
    A(f"v_mul_f32 v{da}, v{da}, v{lw}")
    tag_dword(da, R)
    A("s_mov_b32 exec_hi, 0")
    if cfg["local"]: A(f"buffer_store_dword v{da}, v{r['sa']}, s[44:47], s85 offen")
    else: A(f"buffer_store_dword v{da}, v{r['sa']}, s[44:47], s76 offen sc1")
    A("s_mov_b64 exec, -1")
    A(f"{sk}:")
    stamp(9)
    A("s_lshl_b32 s12, s73, 7"); A("s_add_u32 s79, s78, s12"); A(f"s_add_u32 s79, s79, {WS_CP}")
    def ld(): A(f"buffer_load_dwordx4 {vr(h2,4)}, v{r['h4a']}, s[44:47], s79 offen sc1")
    def ck():
        check_f32(r['bad'], [h2]); A(f"v_and_b32 v{r['bad']}, 0xff, v{r['bad']}"); A(f"v_cmp_ne_u32 vcc, 0, v{r['bad']}")
    def dfr():
        sk = A.lab("sk"); A("s_cmp_ge_u32 s3, 4"); A(f"s_cbranch_scc1 {sk}")
        A("s_mov_b64 exec, -1"); A("s_mov_b32 exec_hi, 0"); A(f"buffer_store_dword v{da}, v{r['sa']}, s[44:47], s76 offen sc1"); A(f"{sk}:")
    A(f"s_add_u32 s84, s79, {WS_CPL - WS_CP}"); A("s_mov_b32 s85, s79")
    if cfg["wo_bar"] == "h4":
        A("s_waitcnt vmcnt(0)"); A("s_barrier")
    def bt():
        for t in range(4):
            A(f"ds_read_b64_tr_b16 {ar(WOF+4*t,2)}, v{r['wob']}"); A(f"ds_read_b64_tr_b16 {ar(WOF+4*t+2,2)}, v{r['wob']} offset:2048")
            if t < 3: A(f"v_xor_b32 v{r['wob']}, {(t ^ (t+1)) << 5}, v{r['wob']}")
        for t in range(2):
            A(f"ds_read_b64_tr_b16 {ar(WOF+16+4*t,2)}, v{r['wo9']}"); A(f"ds_read_b64_tr_b16 {ar(WOF+18+4*t,2)}, v{r['wo9']} offset:2048")
            if t < 1: A(f"v_xor_b32 v{r['wo9']}, 32, v{r['wo9']}")
    if cfg["local"]: poll(ld, ck, sid=2, alt=("s79", "s84", "s85"), deferred=dfr, between=bt)
    else: poll(ld, ck, sid=2, between=bt)
    stamp(10)
    for e in range(4): A(f"v_and_b32 v{h2+e}, s7, v{h2+e}")
    for rr in (4, 8):
        for e in range(4): A(f"v_add_f32_dpp v{h2+e}, v{h2+e}, v{h2+e} row_ror:{rr} row_mask:0xf bank_mask:0xf")
    for e in range(2): A(f"v_cvt_pk_bf16_f32 v{h2+4+e}, v{h2+2*e}, v{h2+2*e+1}")
    A("s_mul_i32 s79, s2, 2304"); A(f"s_add_u32 s79, s79, {WS_OP}")
    for hf in range(2):
        for e in range(2): A(f"v_mov_b32_dpp v{h2+8+2*hf+e}, v{h2+4+e} quad_perm:[{hf},{hf},{2+hf},{2+hf}] row_mask:0xf bank_mask:0xf")
    al = r['accl']
    A("s_lshl_b32 s12, s3, 8"); A("s_add_u32 s12, s12, s79")
    A("s_waitcnt lgkmcnt(0)")
    for t in range(4): A(f"v_mfma_f32_16x16x32_bf16 {vr(acc+4*t,4)}, {vr(h2+8,4)}, {ar(WOF+4*t,4)}, 0")
    sk = A.lab("sk"); A("s_and_b32 s13, s3, 6"); A("s_cmp_lg_u32 s13, 4"); A(f"s_cbranch_scc1 {sk}")
    for t in range(2): A(f"v_mfma_f32_16x16x32_bf16 {vr(al+4*t,4)}, {vr(h2+8,4)}, {ar(WOF+16+4*t,4)}, 0")
    A(f"{sk}:")
    select4(acc, [acc, acc+4, acc+8, acc+12]); tag_dword(acc, R)
    A(f"buffer_store_dword v{acc}, v{r['sa']}, s[44:47], s12 offen sc1")
    sk = A.lab("sk"); A("s_cmp_lg_u32 s13, 4"); A(f"s_cbranch_scc1 {sk}")
    A("s_and_b32 s13, s3, 1"); A("s_lshl_b32 s13, s13, 7"); A("s_add_u32 s13, s13, s79")
    A(f"v_mov_b32_dpp v{al}, v{al+4} quad_perm:[0,1,2,3] row_mask:0x2 bank_mask:0xf")
    tag_dword(al, R)
    A("s_mov_b32 exec_hi, 0"); A(f"buffer_store_dword v{al}, v{r['sa']}, s[44:47], s13 offen offset:2048 sc1"); A("s_mov_b64 exec, -1")
    A(f"{sk}:")
    stamp(11)
    A("s_lshr_b32 s12, s5, 2"); A("s_lshl_b32 s12, s12, 3"); A("s_add_u32 s12, s12, s4")
    A("s_cmp_ge_u32 s12, 18"); A("s_cbranch_scc1 L_Pend")
    A("s_lshl_b32 s74, s12, 2"); A("s_and_b32 s12, s5, 3"); A("s_add_u32 s74, s74, s12")
    A(f"v_lshrrev_b32 v{r['t0']}, 1, v{LANE}"); A(f"v_mul_u32_u24 v{r['t0']}, 2304, v{r['t0']}")
    A(f"v_and_b32 v{r['t1']}, 1, v{LANE}"); A(f"v_lshl_add_u32 v{r['sb']}, v{r['t1']}, 4, v{r['t0']}")
    A("s_mul_i32 s79, s3, 32*2304"); A("s_lshl_b32 s12, s74, 5"); A("s_add_u32 s79, s79, s12"); A(f"s_add_u32 s79, s79, {WS_OP}")
    A(f"v_and_b32 v{r['sc']}, 7, v{LANE}"); A(f"v_lshlrev_b32 v{r['sc']}, 1, v{r['sc']}"); A("s_lshl_b32 s75, s74, 4")
    A(f"buffer_load_ushort v{r['xres']}, v{r['sc']}, s[48:51], s75 offen")
    if cfg.get("h5_ack"): A("s_waitcnt vmcnt(0)"); stamp(22)
    def ld(): A(f"buffer_load_dwordx4 {vr(h2,4)}, v{r['sb']}, s[44:47], s79 offen sc1")
    def ck():
        check_f32(r['bad'], [h2]); A(f"v_and_b32 v{r['bad']}, 0xff, v{r['bad']}"); A(f"v_cmp_ne_u32 vcc, 0, v{r['bad']}")
    poll(ld, ck, sid=3)
    stamp(12)
    for e in range(4): A(f"v_and_b32 v{h2+e}, s7, v{h2+e}")
    A(f"v_permlane32_swap_b32 v{h2}, v{h2+2}"); A(f"v_permlane32_swap_b32 v{h2+1}, v{h2+3}")
    A(f"v_add_f32 v{h2}, v{h2}, v{h2+2}"); A(f"v_add_f32 v{h2+1}, v{h2+1}, v{h2+3}")
    A(f"v_lshrrev_b32 v{r['t0']}, 5, v{LANE}"); A(f"v_lshl_add_u32 v{r['t1']}, v{r['t1']}, 1, v{r['t0']}")
    A(f"v_permlane16_swap_b32 v{h2}, v{h2+1}"); A(f"v_add_f32 v{h2}, v{h2}, v{h2+1}")
    A(f"v_bfe_u32 v{r['t0']}, v{LANE}, 4, 1"); A(f"v_lshl_add_u32 v{r['t1']}, v{r['t1']}, 1, v{r['t0']}")
    for rr in (8, 4, 2): A(f"v_add_f32_dpp v{h2}, v{h2}, v{h2} row_ror:{rr} row_mask:0xf bank_mask:0xf")
    A("s_lshl_b32 s12, s3, 2"); A(f"s_add_u32 s12, s12, {P_FR}"); A(f"v_lshl_add_u32 v{r['t1']}, v{r['t1']}, 5, s12")
    A("s_mov_b32 s84, 0x00030003"); A("s_mov_b32 s85, 0x00030003"); A("s_mov_b64 exec, s[84:85]")
    A(f"ds_write_b32 v{r['t1']}, v{h2}")
    A("s_mov_b64 exec, -1")
    A(f"v_lshlrev_b32 v{r['t0']}, 4, v{r['sc']}"); A(f"v_add_u32 v{r['t0']}, {P_FR}, v{r['t0']}")
    A("s_waitcnt lgkmcnt(0)"); A("s_barrier")
    A("s_cmp_lg_u32 s3, 0"); A("s_cbranch_scc1 L_Pend")
    A(f"ds_read_b128 {vr(h2,4)}, v{r['t0']}"); A(f"ds_read_b128 {vr(h2+4,4)}, v{r['t0']} offset:16")
    A(f"v_lshlrev_b32 v{r['xres']}, 16, v{r['xres']}")
    A("s_waitcnt lgkmcnt(0)")
    for st in (4, 2, 1):
        for e in range(st): A(f"v_add_f32 v{h2+e}, v{h2+e}, v{h2+e+st}")
    A(f"v_add_f32 v{h2}, v{h2}, v{r['xres']}"); A(f"v_cvt_pk_bf16_f32 v{h2}, v{h2}, v{h2}")
    A("s_mov_b64 exec, 0xff")
    A(f"buffer_store_short v{h2}, v{r['sc']}, s[64:67], s75 offen")
    A("s_cmp_lg_u32 s74, 0"); A("s_cbranch_scc1 L_Pend")
    A("s_mov_b64 exec, 1"); A(f"v_mov_b32 v{r['t0']}, s6")
    A(f"buffer_store_dword v{r['t0']}, v{r['sa']}, s[44:47], 0 offen sc1")
    A("L_Pend:")
    stamp(13)
    write_stamps()
    A("L_exit:")
    A("s_endpgm")
    A("L_P1:")
    body = A.finish(verbose=cfg.get("verbose", False))
    head = open("parallel_sum__compressed_kv_cla__glu_gated_glu__decode.s.ref").read().split("; Override launch")[0]
    head += f"; @launch grid=(256,1,1) block=(512,1,1) lds={LDS}\n"
    head += '.amdgcn_target "amdgcn-amd-amdhsa--gfx950"\n.text\n' + f".globl {NAME}\n.p2align 8\n.type {NAME},@function\n"
    tail = f""".section .rodata,"a"
.p2align 6
.amdhsa_kernel {NAME}
  .amdhsa_next_free_vgpr 256
  .amdhsa_next_free_sgpr 102
  .amdhsa_accum_offset 128
  .amdhsa_group_segment_fixed_size 0
  .amdhsa_kernarg_size 104
  .amdhsa_user_sgpr_count 2
  .amdhsa_user_sgpr_kernarg_segment_ptr 1
  .amdhsa_system_sgpr_workgroup_id_x 1
  .amdhsa_float_denorm_mode_32 3
.end_amdhsa_kernel
"""
    return head + body + tail

if __name__ == "__main__":
    out = sys.argv[1] if len(sys.argv) > 1 else "k.s"
    kw = eval("dict(" + (sys.argv[2] if len(sys.argv) > 2 else "") + ")")
    open(out, "w").write(generate(verbose=True, **kw))
```

```python
import sys, struct
from asmlib import Asm

NAME = "parallel_sum__compressed_kv_cla__glu_gated_glu__decode_kernel"

DEF = dict(
    nt="nt", nt_ck="", nt_uk="",
    stamps=False, prefetch_code=True, spin_cap=1 << 18, k0=24, gate_cap=40,
    touch=True, touch_q=True,
    wuk_pf=4,
    gate_s=False, s_win0=None, s_n0=0, s_win=None,
    qa_rep=1, h2_hint=False, h3_hint="pre", h5_hint=None, h3_ack=True, down_first=True, prio=False, inter=0, l_win=None, own_bar=True, own_wait=None, s_bar=True,
)

WS_QP = 0x10000; WS_CP = 0x20000; WS_ML = 0x30000; WS_QPL = 0x40000; WS_CPL = 0x50000
WS_OP = 0x60000; WS_HC = 0xb0000; WS_GO = 0xc0000
WS_GU = 0x100000; WS_PART = 0x200000; WS_ST = 0x400000; WS_GUL = 0x500000; WS_QA = 0x600000
WS_SIZE = 0x700000
HC2 = 0; HC3 = 0x1000; HC5 = 0x6000
TAGK = 0x9E3779B9

S_XN = 0; S_ZERO = 1152
S_WQ = 1280; S_WUK = 38144; S_GATE = 70912; S_UP = 112384; S_DOWN = 1280
S_WO = 42752; S_WO6 = 153856; S_WO9 = S_GATE + 8*4608; S_GUL = 162048; S_HB = 162560
CKS = 1056
P_CK = 0; P_QB = 135168; P_PB = 152576; P_PF = 154752; P_MX = 158848; P_FR = 159424
P_WUV = 0; P_TB = 73728
LDS = 163840

SCALE2 = 1.4426950408889634 / (128 ** 0.5)
def f2u(x): return struct.unpack("<I", struct.pack("<f", x))[0]

class Regs:
    def __init__(self, start): self.n = start; self.d = {}
    def __call__(self, name, cnt=1, align=1):
        if cnt > 1: align = max(align, 2)
        self.n = (self.n + align - 1) // align * align
        self.d[name] = self.n; self.n += cnt
        assert self.n <= 128, f"out of arch VGPRs at {name}"
        return self.d[name]

def vr(b, n=1): return f"v{b}" if n == 1 else f"v[{b}:{b+n-1}]"
def ar(b, n=1): return f"a{b}" if n == 1 else f"a[{b}:{b+n-1}]"
DPPALL = "row_mask:0xf bank_mask:0xf"

def generate(**kw):
    cfg = dict(DEF); cfg.update(kw)
    NT = cfg["nt"]
    A = Asm()
    LANE, N, G = 1, 2, 3

    def stamp(i):
        if not cfg["stamps"]: return
        if cfg.get("only") is not None and i not in cfg["only"]: return
        A("s_memrealtime s[42:43]"); A("s_waitcnt lgkmcnt(0)"); A(f"v_writelane_b32 v0, s42, {i}")
    def srd(b, p, size):
        A(f"s_mov_b32 s{b}, s{p}"); A(f"s_mov_b32 s{b+1}, s{p+1}"); A(f"s_mov_b32 s{b+2}, {size}"); A(f"s_mov_b32 s{b+3}, 0x20000")
    def dma(voff, srdb, soff, m0, flags=None):
        A(f"s_mov_b32 m0, {m0}")
        A(f"buffer_load_dwordx4 v{voff}, s[{srdb}:{srdb+3}], {soff} offen {NT if flags is None else flags} lds")
    class only_wave:
        def __init__(self, cond, val, reg="s3"): self.c = cond; self.v = val; self.r = reg
        def __enter__(self):
            self.l = A.lab("sk"); A(f"s_cmp_{self.c}_u32 {self.r}, {self.v}"); A(f"s_cbranch_scc0 {self.l}")
        def __exit__(self, *a): A(f"{self.l}:")
    def check_f32(bad, regs):
        for gi, b in enumerate(regs):
            for j in range(4):
                if gi == 0 and j == 0: A(f"v_xor_b32 v{bad}, s8, v{b}")
                else: A(f"v_bitop3_b32 v{bad}, v{b+j}, s{8+j}, v{bad} bitop3:0xbe")
        A(f"v_and_b32 v{bad}, 0xff, v{bad}"); A(f"v_cmp_ne_u32 vcc, 0, v{bad}")
    def poll(loads, check, base_exec="-1", wqm=False, first_wait=0, between=None, sid=None, alt=None):
        L = A.lab("poll"); D = A.lab("got"); K0 = cfg["k0"]
        if alt: A(f"s_mov_b32 {alt[0]}, {alt[1]}")
        if base_exec != "-1": A(f"s_mov_b64 exec, {base_exec}")
        loads()
        if between is not None:
            if base_exec != "-1": A("s_mov_b64 exec, -1")
            between()
            if base_exec != "-1": A(f"s_mov_b64 exec, {base_exec}")
        A(f"s_waitcnt vmcnt({first_wait})")
        if sid is not None: stamp(16 + sid)
        check()
        if wqm: A("s_wqm_b64 vcc, vcc")
        A("s_mov_b32 s14, 0")
        A("s_and_b64 exec, exec, vcc")
        A(f"s_cbranch_scc0 {D}")
        A(f"{L}:")
        if alt:
            A("s_bitcmp1_b32 s14, 0"); A(f"s_cselect_b32 {alt[0]}, {alt[2]}, {alt[1]}")
            A(f"s_cmp_lt_u32 s14, {K0}"); A(f"s_cselect_b32 {alt[0]}, {alt[1]}, {alt[0]}")
        loads()
        A("s_waitcnt vmcnt(0)")
        check()
        if wqm: A("s_wqm_b64 vcc, vcc")
        A("s_add_u32 s14, s14, 1"); A(f"s_cmp_lt_u32 s14, {cfg['spin_cap']}"); A(f"s_cbranch_scc0 {D}")
        A("s_and_b64 exec, exec, vcc")
        A(f"s_cbranch_scc1 {L}")
        A(f"{D}:")
        A("s_mov_b64 exec, -1")
        if sid is not None and cfg["stamps"]: A("s_add_u32 s14, s14, 1"); A(f"v_writelane_b32 v0, s14, {24 + sid}")
    def store2(v, voff, soff, off, dist):
        o = f" offset:{off}" if off else ""
        A(f"s_add_u32 s15, {soff}, {dist}"); A(f"buffer_store_dword v{v}, v{voff}, s[44:47], s15 offen{o}")
        A(f"buffer_store_dword v{v}, v{voff}, s[44:47], {soff} offen{o} sc1")
    def go_write(val, vt, voff):
        with only_wave("eq", 0):
            A("s_lshl_b32 s12, s2, 7"); A(f"s_add_u32 s12, s12, {WS_GO}"); A(f"v_mov_b32 v{vt}, {val}")
            A("s_mov_b32 exec_hi, 0"); A(f"buffer_store_dword v{vt}, v{voff}, s[44:47], s12 offen"); A("s_mov_b64 exec, -1")
    def go_wait(vt, voff):
        L = A.lab("go"); D = A.lab("gone")
        A("s_xor_b32 s13, s2, 128"); A("s_lshl_b32 s13, s13, 7"); A(f"s_add_u32 s13, s13, {WS_GO}"); A("s_mov_b32 s14, 0"); A("s_mov_b64 exec, 1")
        A(f"{L}:")
        A(f"buffer_load_dword v{vt}, v{voff}, s[44:47], s13 offen sc1"); A("s_waitcnt vmcnt(0)")
        A(f"v_cmp_ne_u32 vcc, s6, v{vt}"); A("s_add_u32 s14, s14, 1"); A(f"s_cmp_ge_u32 s14, {cfg['gate_cap']}"); A(f"s_cbranch_scc1 {D}")
        A("s_cmp_lg_u64 vcc, 0"); A(f"s_cbranch_scc1 {L}")
        A(f"{D}:"); A("s_mov_b64 exec, -1")
    def hint_add(soff, stride_sh, ta, tb):
        A(f"v_lshlrev_b32 v{ta}, {stride_sh}, v{LANE}"); A(f"v_mov_b32 v{tb}, 1")
        A("s_mov_b64 exec, 0xff"); A(f"buffer_atomic_add v{tb}, v{ta}, s[44:47], {soff} offen sc1"); A("s_mov_b64 exec, -1")
    def hint_read(soff, v, voff): A(f"v_mov_b32 v{v}, 0"); A(f"buffer_atomic_add v{v}, v{voff}, s[44:47], {soff} offen sc0 sc1")
    def hint_spin(soff, lanes, target, v, voff, sid):
        L = A.lab("hint"); D = A.lab("hinted")
        with only_wave("eq", 0):
            A("s_mov_b32 s14, 0"); A(f"s_mov_b64 exec, {lanes}")
            A(f"{L}:")
            hint_read(soff, v, voff); A("s_waitcnt vmcnt(0)")
            A(f"v_cmp_gt_u32 vcc, {target}, v{v}"); A("s_add_u32 s14, s14, 1"); A(f"s_cmp_ge_u32 s14, {cfg['gate_cap']}"); A(f"s_cbranch_scc1 {D}")
            A("s_cmp_lg_u64 vcc, 0"); A(f"s_cbranch_scc1 {L}")
            A(f"{D}:"); A("s_mov_b64 exec, -1")
            if cfg["stamps"]: A("s_add_u32 s14, s14, 1"); A(f"v_writelane_b32 v0, s14, {24 + sid}")
        A("s_barrier")
    def allreduce_groups(v, t, op):
        A(f"v_mov_b32 v{t}, v{v}"); A(f"v_permlane16_swap_b32 v{v}, v{t}"); A(f"{op} v{v}, v{v}, v{t}")
        A(f"v_mov_b32 v{t}, v{v}"); A(f"v_permlane32_swap_b32 v{v}, v{t}"); A(f"{op} v{v}, v{v}, v{t}")
    def allreduce_row(v, op):
        for r_ in (8, 4, 2, 1): A(f"{op}_dpp v{v}, v{v}, v{v} row_ror:{r_} {DPPALL}")
    def select(d, srcs):
        for g, s_ in enumerate(srcs, 1): A(f"v_mov_b32_dpp v{d}, v{s_} quad_perm:[0,1,2,3] row_mask:{hex(1<<g)} bank_mask:0xf")
    def write_stamps():
        if not cfg["stamps"]: return
        if cfg.get("expose"):
            wg, wv, idx = cfg["expose"]; D = A.lab("nex"); L = A.lab("ex")
            A(f"s_cmp_lg_u32 s2, {wg}"); A(f"s_cbranch_scc1 {D}"); A(f"s_cmp_lg_u32 s3, {wv}"); A(f"s_cbranch_scc1 {D}")
            A(f"v_readlane_b32 s12, v0, {idx}"); A(f"v_readlane_b32 s13, v0, {cfg.get('expose0', 0)}"); A("s_nop 4"); A("s_sub_u32 s12, s12, s13"); A(f"s_mul_i32 s12, s12, {cfg.get('expose_k', 10)}")
            A("s_min_u32 s12, s12, 100000")
            A("s_memrealtime s[86:87]"); A("s_waitcnt lgkmcnt(0)")
            A(f"{L}:"); A("s_memrealtime s[42:43]"); A("s_waitcnt lgkmcnt(0)"); A("s_sub_u32 s13, s42, s86"); A("s_cmp_lt_u32 s13, s12"); A(f"s_cbranch_scc1 {L}")
            A(f"{D}:")
            return
        A("s_mov_b64 exec, -1"); A("s_lshl_b32 s12, s2, 3"); A("s_add_u32 s12, s12, s3"); A("s_lshl_b32 s12, s12, 8"); A(f"s_add_u32 s12, s12, {WS_ST}")
        A("v_lshlrev_b32 v4, 2, v1")
        A("buffer_store_dword v0, v4, s[44:47], s12 offen")

    A(f"{NAME}:")
    if cfg["stamps"]: A("s_memrealtime s[86:87]")
    A("s_cmp_ge_u32 s2, 256"); A("s_cbranch_scc1 L_exit")
    A("s_load_dwordx16 s[16:31], s[0:1], 0"); A("s_load_dwordx8 s[32:39], s[0:1], 64"); A("s_load_dwordx2 s[40:41], s[0:1], 96")
    A("v_lshrrev_b32 v1, 6, v0"); A("s_and_b32 s4, s2, 7"); A("v_readfirstlane_b32 s3, v1")
    A("s_bfe_u32 s5, s2, 0x40003")
    A("v_and_b32 v1, 63, v0"); A("v_and_b32 v2, 15, v1"); A("v_lshrrev_b32 v3, 4, v1")
    if cfg["stamps"]: A("s_waitcnt lgkmcnt(0)"); A("v_mov_b32 v0, 0"); A("v_writelane_b32 v0, s86, 0")
    A("s_lshr_b32 s72, s5, 2"); A("s_lshl_b32 s73, s4, 2"); A("s_add_u32 s72, s72, s73"); A("s_and_b32 s73, s5, 3")
    A("s_and_b32 s98, s5, 1"); A("s_lshl_b32 s98, s98, 4"); A("s_lshl_b32 s12, s4, 1"); A("s_add_u32 s98, s98, s12"); A("s_lshr_b32 s12, s5, 3"); A("s_add_u32 s98, s98, s12")
    A("s_bfe_u32 s99, s5, 0x20001")
    A("s_cmp_ge_u32 s2, 128"); A("s_cbranch_scc1 L_P")

    def common_regs(R):
        R("tq"); R("t0"); R("t1"); R("offq"); R("trq"); R("bad"); R("tagb"); R("sa")
    def addr_q_style(R):
        r = R.d
        A("s_and_b32 s12, s3, 1"); A("s_lshl_b32 s12, s12, 2")
        A(f"v_add_u32 v{r['t0']}, s12, v{G}"); A(f"v_lshlrev_b32 v{r['t0']}, 1, v{r['t0']}")
        A(f"v_xor_b32 v{r['t0']}, v{r['t0']}, v{N}"); A(f"v_lshlrev_b32 v{r['t0']}, 4, v{r['t0']}")
        A(f"v_lshl_add_u32 v{r['offq']}, v{G}, 13, v{r['t0']}")
    def addr_trq(R, base):
        r = R.d
        A(f"v_lshrrev_b32 v{r['t0']}, 2, v{N}")
        A(f"v_and_b32 v{r['t1']}, 1, v{G}"); A(f"v_lshl_add_u32 v{r['t1']}, v{r['t1']}, 2, v{r['t0']}")
        A(f"v_lshlrev_b32 v{r['t1']}, 1, v{r['t1']}")
        A(f"v_bfe_u32 v{r['tq']}, v{N}, 1, 1"); A("s_and_b32 s12, s3, 3"); A("s_lshl_b32 s12, s12, 2"); A(f"v_add_u32 v{r['tq']}, s12, v{r['tq']}")
        A(f"v_xor_b32 v{r['t1']}, v{r['t1']}, v{r['tq']}"); A(f"v_lshlrev_b32 v{r['t1']}, 4, v{r['t1']}")
        A(f"v_lshl_add_u32 v{r['t1']}, v{r['t0']}, 8, v{r['t1']}")
        A(f"v_lshl_add_u32 v{r['t1']}, v{G}, 10, v{r['t1']}")
        A(f"v_and_b32 v{r['t0']}, 1, v{N}"); A(f"v_lshl_add_u32 v{r['trq']}, v{r['t0']}, 3, v{r['t1']}")
        if base: A(f"v_add_u32 v{r['trq']}, {base}, v{r['trq']}")
    def tags(R):
        r = R.d
        A(f"s_add_u32 s6, s6, {hex(TAGK)}")
        for j in range(4): A(f"s_bfe_u32 s{8+j}, s6, {hex((8 << 16) | (8*j))}")
        A(f"v_and_b32 v{r['tagb']}, 3, v{LANE}"); A(f"v_lshlrev_b32 v{r['tagb']}, 3, v{r['tagb']}")
        A(f"v_lshrrev_b32 v{r['tagb']}, v{r['tagb']}, s6"); A(f"v_and_b32 v{r['tagb']}, 0xff, v{r['tagb']}")
        A("s_mov_b32 s7, 0xffffff00")
    def tag_dword(v, R): A(f"v_and_or_b32 v{v}, v{v}, s7, v{R.d['tagb']}")
    def code_prefetch(lab0, lab1, dst, t):
        if not cfg["prefetch_code"]: return
        PC = A.lab("pc")
        with only_wave("eq", 7):
            A("s_getpc_b64 s[12:13]"); A(f"{PC}:")
            A(f"s_add_u32 s12, s12, {lab0}-{PC}"); A("s_addc_u32 s13, s13, 0")
            A("s_lshl_b32 s15, s5, 10"); A(f"v_lshl_add_u32 v{t}, v{LANE}, 4, s15")
            A(f"v_min_u32 v{t}, {lab1}-{lab0}-16, v{t}")
            A(f"global_load_dwordx4 v[{dst}:{dst+3}], v{t}, s[12:13]")

    R = Regs(4); common_regs(R); r = R.d
    R("offk"); R("offg"); R("offd"); R("trb", 4); R("trc", 4); R("xa"); R("xg"); R("xz"); R("acc"); R("acc2")
    R("sb"); R("hfa"); R("hfw"); R("h4a")
    R("ta", 8, 2)
    R("fa", 8, 4); R("d", 32, 4); R("q", 8, 4); R("qa", 4, 4); R("kf", 32, 4)
    r["x"] = r["kf"]; r["xf"] = r["kf"] + 5
    d = r['d']; t0 = r['t0']; t1 = r['t1']
    def addr_lc():
        for dst, stride in ((r['offg'], 9216), (r['offd'], 1152)):
            A(f"v_lshrrev_b32 v{t0}, 3, v{LANE}"); A(f"v_and_b32 v{t1}, 6, v{t0}")
            A(f"v_and_b32 v{dst}, 7, v{LANE}"); A(f"v_xor_b32 v{dst}, v{dst}, v{t1}"); A(f"v_lshlrev_b32 v{dst}, 4, v{dst}")
            A(f"v_mul_u32_u24 v{t0}, {stride}, v{t0}"); A(f"v_add_u32 v{dst}, v{dst}, v{t0}")
        trb = r['trb']; trc = r['trc']
        A(f"v_lshrrev_b32 v{t0}, 2, v{N}"); A(f"v_bfe_u32 v{r['tq']}, v{N}, 1, 1")
        A(f"v_and_b32 v{t1}, 6, v{t0}"); A(f"v_xor_b32 v{t1}, v{t1}, v{r['tq']}")
        A(f"v_lshlrev_b32 v{t1}, 4, v{t1}"); A(f"v_lshl_add_u32 v{t1}, v{t0}, 7, v{t1}")
        A(f"v_and_b32 v{trc}, 1, v{N}"); A(f"v_lshl_add_u32 v{trc}, v{trc}, 3, v{t1}"); A(f"v_add_u32 v{trc}, 4096, v{trc}")
        A(f"v_and_b32 v{t1}, 1, v{G}"); A(f"v_lshl_add_u32 v{t0}, v{t1}, 2, v{t0}")
        A(f"v_and_b32 v{t1}, 6, v{t0}"); A(f"v_xor_b32 v{t1}, v{t1}, v{r['tq']}")
        A(f"v_lshlrev_b32 v{t1}, 4, v{t1}"); A(f"v_lshl_add_u32 v{t1}, v{t0}, 7, v{t1}")
        A(f"v_lshrrev_b32 v{t0}, 1, v{G}"); A(f"v_lshl_add_u32 v{t1}, v{t0}, 10, v{t1}")
        A(f"v_and_b32 v{trb}, 1, v{N}"); A(f"v_lshl_add_u32 v{trb}, v{trb}, 3, v{t1}")
        A("s_mul_i32 s76, s3, 4608")
        for b_ in (trb, trc):
            for t in (1, 2, 3): A(f"v_xor_b32 v{b_+t}, {t << 5}, v{b_}")
        A(f"v_and_b32 v{t0}, 31, v{LANE}"); A(f"v_min_u32 v{t0}, 17, v{t0}"); A(f"v_lshrrev_b32 v{t1}, 5, v{LANE}")
        A(f"v_lshlrev_b32 v{r['hfa']}, 4, v{t0}"); A(f"v_lshl_add_u32 v{r['hfw']}, v{t1}, 3, v{r['hfa']}")
        A(f"v_mul_u32_u24 v{t1}, 4608, v{t1}"); A(f"v_add_u32 v{r['hfa']}, v{r['hfa']}, v{t1}")
        A(f"v_add_u32 v{t1}, {2304 - 144}, v{r['hfa']}"); A(f"v_cmp_lt_u32 vcc, 8, v{t0}"); A(f"v_cndmask_b32 v{r['hfa']}, v{r['hfa']}, v{t1}, vcc")
        A("s_mul_i32 s88, s4, 16*4608"); A("s_mul_i32 s12, s5, 144"); A("s_add_u32 s88, s88, s12"); A(f"s_add_u32 s88, s88, {WS_GU}")
        A(f"v_add_u32 v{r['hfw']}, {S_GUL}, v{r['hfw']}")
        A(f"v_lshrrev_b32 v{t0}, 2, v{N}"); A(f"v_lshlrev_b32 v{t0}, 9, v{t0}"); A(f"v_and_b32 v{t1}, 1, v{N}"); A(f"v_lshl_add_u32 v{t0}, v{t1}, 6, v{t0}")
        A(f"v_lshl_add_u32 v{r['h4a']}, v{G}, 4, v{t0}")
        srd(60, 30, 576*9216); srd(64, 32, 576*9216); srd(68, 34, 4608*1152); srd(92, 26, 4096*1152)
    addr_q_style(R)
    A(f"v_lshlrev_b32 v{r['sa']}, 2, v{LANE}")
    A("s_mul_i32 s74, s73, 144"); A("s_lshl_b32 s12, s3, 2"); A("s_add_u32 s74, s74, s12"); A("s_lshl_b32 s74, s74, 13")
    A("s_lshl_b32 s75, s72, 8"); A("s_add_u32 s74, s74, s75")
    A("s_lshl_b32 s76, s3, 10"); A("s_lshl_b32 s78, s72, 11")
    A("s_waitcnt lgkmcnt(0)")
    A("s_load_dword s6, s[40:41], 0")
    srd(48, 16, 1152); srd(52, 20, 576*8192)
    code_prefetch("L_S0", "L_S1", d, t0)
    A("L_S0:")
    def wq_dma(i):
        A(f"s_add_u32 s12, s74, {i*32*8192}"); A(f"s_add_u32 s13, s76, {S_WQ + i*8192}")
        dma(r['offq'], 52, "s12", "s13")
    A("s_cmp_ge_u32 s3, 4"); A("s_cbranch_scc1 L_S_hi")
    for i in range(5): A(f"buffer_load_dword v{r['x']+i}, v{r['sa']}, s[48:51], 0 offen offset:{256*i}")
    for i in range(5): wq_dma(i)
    A("s_barrier")
    srd(44, 40, WS_SIZE)
    addr_trq(R, S_WQ)
    A("s_waitcnt vmcnt(5)")
    xf = r['xf']
    for i in range(5):
        A(f"v_lshlrev_b32 v{xf+2*i}, 16, v{r['x']+i}"); A(f"v_and_b32 v{xf+2*i+1}, 0xffff0000, v{r['x']+i}")
    A(f"v_add_f32 v{r['acc']}, v{xf}, v{xf+1}")
    for i in range(2, 10): A(f"v_add_f32 v{r['acc']}, v{r['acc']}, v{xf+i}")
    allreduce_row(r['acc'], "v_add_f32"); allreduce_groups(r['acc'], t0, "v_add_f32")
    A(f"v_mul_f32 v{r['acc']}, {hex(f2u(1.0/576))}, v{r['acc']}")
    for i in range(10): A(f"v_sub_f32 v{xf+i}, v{xf+i}, v{r['acc']}")
    A(f"v_cmp_gt_u32 vcc, 32, v{LANE}")
    A(f"v_cndmask_b32 v{xf+8}, 0, v{xf+8}, vcc"); A(f"v_cndmask_b32 v{xf+9}, 0, v{xf+9}, vcc")
    A(f"v_mul_f32 v{r['acc2']}, v{xf}, v{xf}")
    for i in range(1, 10): A(f"v_fmac_f32 v{r['acc2']}, v{xf+i}, v{xf+i}")
    allreduce_row(r['acc2'], "v_add_f32"); allreduce_groups(r['acc2'], t0, "v_add_f32")
    A(f"v_mov_b32 v{t0}, {hex(f2u(1e-5))}")
    A(f"v_fmac_f32 v{t0}, {hex(f2u(1.0/576))}, v{r['acc2']}")
    A(f"v_rsq_f32 v{t0}, v{t0}")
    for i in range(10): A(f"v_mul_f32 v{xf+i}, v{xf+i}, v{t0}")
    for i in range(5): A(f"v_cvt_pk_bf16_f32 v{r['x']+i}, v{xf+2*i}, v{xf+2*i+1}")
    for i in range(5): A(f"ds_write_b32 v{r['sa']}, v{r['x']+i} offset:{S_XN + 256*i}")
    A("s_waitcnt lgkmcnt(0)")
    tags(R)
    A("s_mul_i32 s12, s73, 288"); A(f"v_lshl_add_u32 v{r['xa']}, v{G}, 3, s12")
    for q in range(9): A(f"ds_read_b64 {ar(2*q, 2)}, v{r['xa']} offset:{S_XN + 32*q}")
    A(f"v_xor_b32 v{t0}, 32, v{r['trq']}")
    A("s_lshl_b32 s12, s73, 9"); A("s_add_u32 s12, s12, s78"); A("s_lshl_b32 s13, s3, 7"); A("s_add_u32 s12, s12, s13")
    A(f"s_add_u32 s79, s12, {WS_QP}")
    stamp(1)
    A("s_waitcnt vmcnt(0)"); A("s_barrier")
    stamp(2)
    for q in range(9):
        A(f"ds_read_b64_tr_b16 {ar(20+2*q, 2)}, v{r['trq']} offset:{4096*q}")
        A(f"ds_read_b64_tr_b16 {ar(40+2*q, 2)}, v{t0} offset:{4096*q}")
    for v in range(4):
        A(f"s_waitcnt lgkmcnt({14-4*v})")
        for t in range(2): A(f"v_mfma_f32_16x16x32_bf16 {vr(d+4*t,4)}, {ar(4*v,4)}, {ar(20+20*t+4*v,4)}, {'0' if v == 0 else vr(d+4*t,4)}")
    A("s_waitcnt lgkmcnt(0)")
    for t in range(2): A(f"v_mfma_f32_16x16x16_bf16 {vr(d+8+4*t,4)}, {ar(16,2)}, {ar(36+20*t,2)}, 0")
    A(f"v_add_f32 v{d}, v{d}, v{d+8}"); A(f"v_add_f32 v{d+4}, v{d+4}, v{d+12}")
    select(d, [d+4]); tag_dword(d, R)
    A("s_mov_b32 exec_hi, 0"); store2(d, r['sa'], "s79", 0, WS_QPL - WS_QP); A("s_mov_b64 exec, -1")
    stamp(3)
    addr_lc()
    A("s_barrier")
    A("s_branch L_S_ffn")
    A("L_S_hi:")
    for i in range(4): wq_dma(i)
    srd(56, 22, 512*8192); srd(44, 40, WS_SIZE)
    A(f"v_lshlrev_b32 v{t0}, 2, v{G}"); A(f"v_xor_b32 v{t0}, v{t0}, v{N}"); A(f"v_lshlrev_b32 v{t0}, 4, v{t0}")
    A(f"v_lshl_add_u32 v{r['offk']}, v{G}, 13, v{t0}")
    A("s_sub_u32 s80, s3, 4")
    A("s_lshl_b32 s74, s73, 7"); A("s_lshl_b32 s12, s80, 5"); A("s_add_u32 s74, s74, s12"); A("s_lshl_b32 s74, s74, 13"); A("s_add_u32 s74, s74, s75")
    A("s_lshl_b32 s81, s80, 13")
    A("s_barrier")
    for i in range(8):
        A(f"s_add_u32 s12, s74, {i*4*8192}"); A(f"s_add_u32 s13, s81, {S_WUK + i*1024}")
        dma(r['offk'], 56, "s12", "s13", cfg["nt_uk"])
        if i < 7: A(f"v_xor_b32 v{r['offk']}, {(((i%4) ^ ((i+1)%4)) << 4)}, v{r['offk']}")
    stamp(1)
    A("s_waitcnt vmcnt(8)"); A("s_barrier")
    stamp(2)
    addr_lc()
    A(f"v_and_b32 v{t0}, 3, v{N}"); A(f"v_lshlrev_b32 v{t0}, 5, v{t0}")
    A(f"v_lshrrev_b32 v{t1}, 2, v{N}"); A(f"v_lshl_add_u32 v{t0}, v{t1}, 9, v{t0}")
    A(f"v_lshl_add_u32 v{r['sb']}, v{G}, 7, v{t0}")
    A(f"s_add_u32 s85, s78, {WS_QP}"); A(f"s_add_u32 s84, s78, {WS_QPL}")
    A("s_waitcnt lgkmcnt(0)")
    tags(R)
    A(f"v_and_b32 v{t0}, 3, v{N}"); A(f"v_xor_b32 v{t0}, v{t0}, v{G}"); A(f"v_lshrrev_b32 v{t1}, 2, v{N}")
    A(f"v_lshl_add_u32 v{t0}, v{t0}, 2, v{t1}"); A(f"v_lshlrev_b32 v{t0}, 4, v{t0}")
    A(f"v_lshl_add_u32 v{t0}, v{N}, 8, v{t0}"); A(f"v_add_u32 v{t0}, s81, v{t0}")
    A("s_waitcnt vmcnt(0)")
    stamp(3)
    def ld():
        A(f"buffer_load_dwordx4 {vr(r['q'],4)}, v{r['sb']}, s[44:47], s79 offen sc1")
        A(f"buffer_load_dwordx4 {vr(r['q']+4,4)}, v{r['sb']}, s[44:47], s79 offen offset:16 sc1")
    def bt():
        for v in range(4):
            for t in range(2): A(f"ds_read_b128 {ar(16*t+4*v,4)}, v{t0} offset:{S_WUK + 4096*t}")
            if v < 3: A(f"v_xor_b32 v{t0}, {((v ^ (v+1)) << 4)}, v{t0}")
    poll(ld, lambda: check_f32(r['bad'], [r['q'], r['q']+4]), between=bt, sid=0, alt=("s79", "s84", "s85"))
    stamp(4)
    if cfg["h2_hint"]:
        A("s_lshl_b32 s12, s73, 3"); A("s_add_u32 s12, s12, s3")
        with only_wave("eq", 31, "s12"):
            A("s_lshr_b32 s12, s72, 4"); A("s_lshl_b32 s12, s12, 10"); A(f"s_add_u32 s12, s12, {WS_HC + HC2}")
            hint_add("s12", 7, t0, t1)
    for e in range(8): A(f"v_and_b32 v{r['q']+e}, s7, v{r['q']+e}")
    for e in range(4): A(f"v_cvt_pk_bf16_f32 v{r['qa']+e}, v{r['q']+2*e}, v{r['q']+2*e+1}")
    A("s_waitcnt lgkmcnt(0)")
    for t in range(2):
        for v in range(4): A(f"v_mfma_f32_16x16x32_bf16 {vr(d+16*t+4*v,4)}, {vr(r['qa'],4)}, {ar(16*t+4*v,4)}, 0")
    A("s_lshl_b32 s12, s73, 9"); A("s_add_u32 s12, s12, s78"); A("s_lshl_b32 s13, s80, 7"); A("s_add_u32 s12, s12, s13"); A(f"s_add_u32 s12, s12, {WS_QA}")
    for t in range(2):
        b_ = d + 16*t
        A(f"v_add_f32 v{b_}, v{b_}, v{b_+5}"); A(f"v_add_f32 v{b_+10}, v{b_+10}, v{b_+15}"); A(f"v_add_f32 v{b_}, v{b_}, v{b_+10}")
    A(f"v_permlane16_swap_b32 v{d}, v{d+16}"); A(f"v_add_f32 v{d}, v{d}, v{d+16}")
    A(f"v_mov_b32 v{t0}, v{d}"); A(f"v_permlane32_swap_b32 v{d}, v{t0}"); A(f"v_add_f32 v{d}, v{d}, v{t0}")
    tag_dword(d, R)
    A("s_mov_b32 exec_hi, 0")
    for q_ in range(cfg["qa_rep"]):
        A(f"buffer_store_dword v{d}, v{r['sa']}, s[44:47], s12 offen sc1")
        if q_ + 1 < cfg["qa_rep"]: A("s_add_u32 s12, s12, 0x10000")
    A("s_mov_b64 exec, -1")
    A("s_barrier")
    A("L_S_ffn:")
    stamp(5)
    if cfg["gate_s"]: go_wait(t0, r['sa'])
    stamp(13)
    A("s_mul_i32 s74, s5, 36*9216"); A("s_mul_i32 s12, s4, 1152"); A("s_add_u32 s74, s74, s12")
    A("s_and_b32 s80, s3, 3"); A("s_lshr_b32 s81, s3, 2")
    A("s_mul_i32 s82, s81, 41472"); A(f"s_add_u32 s82, s82, {S_GATE + 8*4608}")
    up9 = A.lab("up9"); j9 = A.lab("j9")
    A("s_mul_i32 s12, s80, 8*9216"); A("s_add_u32 s12, s12, s74"); A("s_add_u32 s12, s12, 1024")
    A("s_lshl_b32 s13, s80, 10"); A("s_add_u32 s13, s13, s82")
    A(f"s_add_u32 s15, s74, {32*9216 + 1024}"); A("s_add_u32 s83, s82, 4096")
    A("s_cmp_lg_u32 s81, 0"); A(f"s_cbranch_scc1 {up9}")
    for sb_, nxt in ((60, j9), (64, None)):
        dma(r['offg'], sb_, "s12", "s13")
        with only_wave("eq", 0, "s80"):
            A("s_mov_b32 exec_hi, 0"); dma(r['offg'], sb_, "s15", "s83"); A("s_mov_b64 exec, -1")
        if nxt: A(f"s_branch {nxt}"); A(f"{up9}:")
    A(f"{j9}:")
    A("s_lshl_b32 s12, s3, 7"); A("s_add_u32 s74, s74, s12")
    cnt = 0
    for sb_, base in ((60, S_GATE), (64, S_UP)):
        for b in range(5):
            wn = cfg["s_win0"] if cnt < cfg["s_n0"] else cfg["s_win"]
            if wn is not None and cnt >= wn: A(f"s_waitcnt vmcnt({wn-1})")
            A(f"s_add_u32 s12, s74, {b*8*9216}"); A(f"s_add_u32 s13, s76, {base + b*1024}")
            if b == 4: A("s_mov_b32 exec_hi, 0")
            dma(r['offg'], sb_, "s12", "s13")
            if b == 4: A("s_mov_b64 exec, -1")
            if b == 4 and cfg["s_bar"]: A("s_barrier")
            cnt += 1
    fa = r['fa']; ta = r['ta']; q = r['q']; kf = r['kf']
    def xfrags(sbase):
        A(f"v_lshl_add_u32 v{r['xg']}, v{G}, 3, {sbase}")
        A(f"v_mov_b32 v{r['xz']}, {S_ZERO}"); A(f"s_add_u32 s13, {sbase}, 64"); A(f"v_mov_b32 v{t0}, s13")
        A(f"v_cmp_gt_u32 vcc, 16, v{LANE}"); A(f"v_cndmask_b32 v{r['xz']}, v{r['xz']}, v{t0}, vcc")
    def xread():
        A(f"ds_read_b64 {vr(fa,2)}, v{r['xg']}"); A(f"ds_read_b64 {vr(fa+2,2)}, v{r['xg']} offset:32"); A(f"ds_read_b64 {vr(fa+4,2)}, v{r['xz']}")
    def col_addr(sbase, k16=True):
        for t in range(4):
            A(f"v_add_u32 v{ta+t}, {sbase}, v{r['trb']+t}")
            if k16: A(f"v_add_u32 v{ta+4+t}, {sbase}, v{r['trc']+t}")
    def col_read(fb, off, tiles=range(4), k16=True):
        for t in tiles:
            A(f"ds_read_b64_tr_b16 {ar(fb+4*t,2)}, v{ta+t} offset:{off}"); A(f"ds_read_b64_tr_b16 {ar(fb+4*t+2,2)}, v{ta+t} offset:{off+2048}")
            if k16: A(f"ds_read_b64_tr_b16 {ar(fb+16+2*t,2)}, v{ta+4+t} offset:{off}")
    def col_mfma(fb, dd, tiles=range(4)):
        for t in tiles: A(f"v_mfma_f32_16x16x16_bf16 {vr(dd+4*t,4)}, {vr(fa+4,2)}, {ar(fb+16+2*t,2)}, 0")
        for t in tiles: A(f"v_mfma_f32_16x16x32_bf16 {vr(dd+4*t,4)}, {vr(fa,4)}, {ar(fb+4*t,4)}, {vr(dd+4*t,4)}")
    def col_pub(dd, off, keep):
        select(dd, [dd+4, dd+8, dd+12]); A(f"v_and_or_b32 v{keep}, v{dd}, s7, v{r['tagb']}")
        A(f"buffer_store_dword v{keep}, v{r['sa']}, s[44:47], s77 offen offset:{off}")
    def gu_remote():
        for mat in range(2):
            for c in range(2): A(f"buffer_store_dword v{q+2*mat+c}, v{r['sa']}, s[44:47], s83 offen offset:{2304*mat + 1024*c} sc1")
    A("s_mul_i32 s74, s4, 576"); A("s_mul_i32 s12, s5, 36"); A("s_add_u32 s74, s74, s12"); A("s_mul_i32 s74, s74, 1152")
    A("s_lshl_b32 s75, s98, 7"); A("s_lshl_b32 s12, s99, 5"); A("s_add_u32 s75, s75, s12"); A("s_mul_i32 s75, s75, 1152")
    A("s_lshl_b32 s12, s98, 11"); A("s_lshl_b32 s13, s99, 7"); A("s_add_u32 s12, s12, s13"); A(f"s_add_u32 s97, s12, {WS_CP}"); A(f"s_add_u32 s96, s12, {WS_CPL}")
    h4ld = lambda: A(f"buffer_load_dwordx4 {vr(q,4)}, v{r['h4a']}, s[44:47], s79 offen sc1")
    A("s_cmp_ge_u32 s3, 4"); A("s_cbranch_scc1 L_S_load")
    A("s_mul_i32 s12, s5, 72"); xfrags("s12"); xread()
    A("s_lshl_b32 s79, s4, 4"); A("s_add_u32 s79, s79, s5"); A("s_mul_i32 s79, s79, 4608"); A(f"s_add_u32 s79, s79, {WS_GU}")
    A("s_lshl_b32 s83, s3, 8"); A("s_add_u32 s83, s83, s79"); A(f"s_add_u32 s77, s83, {WS_GUL - WS_GU}")
    A(f"s_add_u32 s12, s76, {S_GATE}"); col_addr("s12")
    if cfg["prio"]: A("s_setprio 1")
    A("s_waitcnt vmcnt(5)"); A("s_barrier")
    stamp(6)
    for mat in range(2):
        off = mat * (S_UP - S_GATE)
        col_read(0, off); col_read(24, off + 4*4608)
        A("s_waitcnt lgkmcnt(12)"); col_mfma(0, d)
        A("s_waitcnt lgkmcnt(0)"); col_mfma(24, d+16)
        col_pub(d, 2304*mat, q+2*mat); col_pub(d+16, 2304*mat + 1024, q+2*mat+1)
        if mat == 0:
            with only_wave("eq", 0):
                A(f"s_mov_b32 s12, {S_GATE + 8*4608}"); col_addr("s12"); col_read(0, 0)
                A(f"s_add_u32 s77, s79, {WS_GUL - WS_GU}")
                A("s_waitcnt lgkmcnt(0)"); col_mfma(0, d); col_pub(d, 2048, q+4)
                A(f"s_add_u32 s77, s83, {WS_GUL - WS_GU}"); A(f"s_add_u32 s12, s76, {S_GATE}"); col_addr("s12")
                A("s_waitcnt vmcnt(3)")
            with only_wave("lg", 0): A("s_waitcnt vmcnt(2)")
            A("s_barrier")
            stamp(7)
    with only_wave("eq", 1):
        A(f"s_mov_b32 s12, {S_UP + 8*4608}"); col_addr("s12"); col_read(0, 0)
        A(f"s_add_u32 s77, s79, {WS_GUL - WS_GU + 2304}")
        A("s_waitcnt lgkmcnt(0)"); col_mfma(0, d); col_pub(d, 2048, q+4)
    with only_wave("lt", 3): gu_remote()
    with only_wave("lt", 2):
        A("s_mul_i32 s12, s3, 2304"); A("s_add_u32 s12, s12, s79"); A(f"buffer_store_dword v{q+4}, v{r['sa']}, s[44:47], s12 offen offset:2048 sc1")
    with only_wave("eq", 0):
        for b in range(4):
            A(f"s_add_u32 s12, s75, {b*8*1152 + 1024}"); dma(r['offd'], 92, "s12", S_WO9 + b*1024)
    stamp(8)
    with only_wave("eq", 3):
        A("s_mov_b32 s84, 0x3ffff"); A("s_mov_b32 s85, 0x3ffff"); A(f"s_add_u32 s82, s88, {WS_GUL - WS_GU}")
        def ld():
            for i in range(8):
                A(f"s_add_u32 s12, s79, {i*9216}"); A(f"buffer_load_dwordx4 {vr(kf+4*i,4)}, v{r['hfa']}, s[44:47], s12 offen sc1")
        poll(ld, lambda: check_f32(r['bad'], [kf+4*i for i in range(8)]), base_exec="s[84:85]", sid=1, alt=("s79", "s82", "s88"), between=gu_remote, first_wait=4)
        stamp(9)
        for e in range(32): A(f"v_and_b32 v{kf+e}, s7, v{kf+e}")
        for st in (16, 8, 4):
            for e in range(st): A(f"v_add_f32 v{kf+e}, v{kf+e}, v{kf+e+st}")
        A(f"v_permlane32_swap_b32 v{kf}, v{kf+2}"); A(f"v_permlane32_swap_b32 v{kf+1}, v{kf+3}")
        A(f"v_add_f32 v{kf}, v{kf}, v{kf+2}"); A(f"v_add_f32 v{kf+1}, v{kf+1}, v{kf+3}")
        A(f"v_min_u32 v{r['sb']}, 35, v{LANE}"); A(f"v_lshlrev_b32 v{t1}, 2, v{r['sb']}"); A(f"v_add_u32 v{t1}, {S_GUL}, v{t1}")
        A("s_mov_b64 exec, s[84:85]"); A(f"ds_write_b64 v{r['hfw']}, {vr(kf,2)}"); A("s_mov_b64 exec, -1")
        A(f"v_lshlrev_b32 v{r['sb']}, 1, v{r['sb']}"); A(f"v_add_u32 v{r['sb']}, {S_HB}, v{r['sb']}")
        A("s_waitcnt lgkmcnt(0)")
        A(f"ds_read_b32 v{kf}, v{t1}"); A(f"ds_read_b32 v{kf+1}, v{t1} offset:144")
        A("s_waitcnt lgkmcnt(0)")
        A(f"v_mul_f32 v{kf}, {hex(f2u(-1.4426950408889634))}, v{kf}")
        A(f"v_exp_f32 v{kf}, v{kf}"); A(f"v_add_f32 v{kf}, 1.0, v{kf}"); A(f"v_rcp_f32 v{kf}, v{kf}")
        A(f"v_mul_f32 v{kf}, v{kf}, v{kf+1}"); A(f"v_cvt_pk_bf16_f32 v{kf}, v{kf}, v{kf}")
        A(f"ds_write_b16 v{r['sb']}, v{kf}")
    stamp(10)
    A("s_branch L_S_out")
    A("L_S_load:")
    A("s_lshl_b32 s12, s80, 8"); A("s_add_u32 s82, s74, s12"); A("s_add_u32 s83, s75, s12")
    A("s_lshl_b32 s84, s80, 13"); A(f"s_add_u32 s84, s84, {S_WO}"); A("s_cmp_eq_u32 s80, 3"); A(f"s_cselect_b32 s84, {S_WO6}, s84")
    A("s_mul_i32 s85, s80, 9216"); A(f"s_add_u32 s85, s85, {S_DOWN}")
    seq = [("o", c, b) for b in range(4) for c in range(2)] + [("n", 0, 0)] + [("d", c, b) for b in range(5) for c in range(2)]
    if cfg["down_first"]: seq = seq[8:] + seq[:8]
    A("s_waitcnt vmcnt(5)"); A("s_barrier")
    for i, (kind, c, b) in enumerate(seq):
        if i == 5:
            if cfg["down_first"]:
                with only_wave("eq", 4): A("s_waitcnt vmcnt(6)")
                with only_wave("lg", 4): A("s_waitcnt vmcnt(5)")
            else: A("s_waitcnt vmcnt(5)")
            A("s_barrier")
        if cfg["l_win"] is not None and i >= cfg["l_win"]: A(f"s_waitcnt vmcnt({cfg['l_win']-1})")
        if kind == "o":
            A(f"s_add_u32 s12, s83, {b*8*1152 + c*128}"); A(f"s_add_u32 s13, s84, {c*4096 + b*1024}"); dma(r['offd'], 92, "s12", "s13")
        elif kind == "d":
            A(f"s_add_u32 s12, s82, {b*8*1152 + c*128}"); A(f"s_add_u32 s13, s85, {c*4608 + b*1024}")
            if b == 4: A("s_mov_b32 exec_hi, 0")
            dma(r['offd'], 68, "s12", "s13")
            if b == 4: A("s_mov_b64 exec, -1")
        else:
            with only_wave("eq", 0, "s80"):
                A(f"s_add_u32 s12, s74, {32*1152 + 1024}"); A("s_mov_b32 exec_hi, 0"); dma(r['offd'], 68, "s12", S_DOWN + 8*4608 + 4096); A("s_mov_b64 exec, -1")
            A("s_mul_i32 s12, s80, 8*1152"); A("s_add_u32 s12, s12, s74"); A("s_add_u32 s12, s12, 1024")
            A("s_lshl_b32 s13, s80, 10"); A(f"s_add_u32 s13, s13, {S_DOWN + 8*4608}"); dma(r['offd'], 68, "s12", "s13")
    stamp(10)
    A("L_S_out:")
    A(f"s_mov_b32 s12, {S_HB}"); xfrags("s12")
    A(f"s_add_u32 s12, s76, {S_DOWN}"); col_addr("s12")
    A("s_lshl_b32 s84, s3, 12"); A(f"s_add_u32 s84, s84, {S_WO}"); A("s_cmp_ge_u32 s3, 6"); A(f"s_cselect_b32 s12, {S_WO6 - S_WO - 6*4096}, 0"); A("s_add_u32 s84, s84, s12")
    A("s_waitcnt vmcnt(0) lgkmcnt(0)"); A("s_barrier")
    stamp(11)
    def bt():
        xread(); col_read(0, 0)
        col_addr("s84", False); col_read(24, 0, k16=False)
        A("s_waitcnt lgkmcnt(8)"); col_mfma(0, d)
        with only_wave("lt", 2):
            A("s_lshl_b32 s12, s3, 6")
            for t in range(2):
                A(f"v_xor_b32 v{t0}, s12, v{r['trb']+t}"); A(f"v_xor_b32 v{t1}, s12, v{r['trc']+t}")
                A(f"v_add_u32 v{ta+t}, {S_DOWN + 8*4608}, v{t0}"); A(f"v_add_u32 v{ta+4+t}, {S_DOWN + 8*4608}, v{t1}"); A(f"v_add_u32 v{ta+2+t}, {S_WO9}, v{t0}")
            col_read(48, 0, range(2)); col_read(64, 0, range(2, 4), False)
            A("s_waitcnt lgkmcnt(4)"); col_mfma(48, d+16, range(2))
    poll(h4ld, lambda: check_f32(r['bad'], [q]), between=bt, sid=2, alt=("s79", "s96", "s97"))
    stamp(14)
    def h5_add():
        with only_wave("eq", 7):
            A("s_lshl_b32 s12, s4, 7"); A(f"s_add_u32 s12, s12, {WS_HC + HC5}")
            hint_add("s12", 10, t0, t1)
    if cfg["h5_hint"] == "pre": h5_add()
    for e in range(4): A(f"v_and_b32 v{q+e}, s7, v{q+e}")
    for rr in (4, 8):
        for e in range(4): A(f"v_add_f32_dpp v{q+e}, v{q+e}, v{q+e} row_ror:{rr} {DPPALL}")
    for e in range(2): A(f"v_cvt_pk_bf16_f32 v{q+4+e}, v{q+2*e}, v{q+2*e+1}")
    A("s_mul_i32 s79, s2, 2304"); A(f"s_add_u32 s79, s79, {WS_OP}")
    for hf in range(2):
        for e in range(2): A(f"v_mov_b32_dpp v{r['qa']+2*hf+e}, v{q+4+e} quad_perm:[{hf},{hf},{2+hf},{2+hf}] {DPPALL}")
    A("s_lshl_b32 s12, s3, 8"); A("s_add_u32 s12, s12, s79")
    A("s_waitcnt lgkmcnt(0)")
    for t in range(4): A(f"v_mfma_f32_16x16x32_bf16 {vr(d+4*t,4)}, {vr(r['qa'],4)}, {ar(24+4*t,4)}, {vr(d+4*t,4)}")
    with only_wave("lt", 2):
        for t in range(2): A(f"v_mfma_f32_16x16x32_bf16 {vr(d+16+4*t,4)}, {vr(r['qa'],4)}, {ar(72+4*t,4)}, {vr(d+16+4*t,4)}")
    select(d, [d+4, d+8, d+12]); tag_dword(d, R)
    A(f"buffer_store_dword v{d}, v{r['sa']}, s[44:47], s12 offen sc1")
    with only_wave("lt", 2):
        A("s_lshl_b32 s13, s3, 7"); A("s_add_u32 s13, s13, s79")
        select(d+16, [d+20]); tag_dword(d+16, R)
        A("s_mov_b32 exec_hi, 0"); A(f"buffer_store_dword v{d+16}, v{r['sa']}, s[44:47], s13 offen offset:2048 sc1"); A("s_mov_b64 exec, -1")
    if cfg["h5_hint"] == "epi": h5_add()
    stamp(12)
    write_stamps()
    A("s_endpgm")
    A("L_S1:")

    A("L_P:")
    R = Regs(4); common_regs(R); r = R.d
    R("l16"); R("sb"); R("sc"); R("qkb"); R("pva"); R("pvb"); R("qbw"); R("qbr"); R("l128")
    R("tl", 4); R("xres"); R("m", 2)
    R("mxw"); R("mxr"); R("pfw"); R("pfr"); R("tbw"); R("tbr"); R("pst"); R("h3d"); R("h3m"); R("pbw"); R("pbr"); R("wmr"); R("wmo")
    R("h2", 16, 4); R("bq", 16, 4); R("s", 4, 4); R("acc", 16, 4); R("accl", 4, 4); R("fm", 12, 4)
    UVF = 0
    t0 = r['t0']; t1 = r['t1']; h2 = r['h2']; bq = r['bq']; acc = r['acc']; m = r['m']; ms = m + 1
    A(f"v_lshlrev_b32 v{r['l16']}, 4, v{LANE}"); A(f"v_lshlrev_b32 v{r['sa']}, 2, v{LANE}")
    A("s_lshr_b32 s74, s5, 1"); A("s_lshl_b32 s12, s4, 3"); A("s_add_u32 s74, s74, s12")
    A("s_and_b32 s75, s5, 1")
    A("s_lshl_b32 s76, s74, 7"); A("s_add_u32 s76, s76, s3")
    A("s_lshl_b32 s12, s75, 6"); A("s_xor_b32 s13, s12, 64")
    A("s_add_u32 s77, s76, s13"); A("s_add_u32 s76, s76, s12")
    A("s_lshl_b32 s76, s76, 10"); A("s_lshl_b32 s77, s77, 10")
    A(f"s_mul_i32 s78, s3, {CKS}")
    A("s_lshl_b32 s12, s72, 8"); A("s_lshl_b32 s13, s73, 3"); A("s_add_u32 s13, s13, s3"); A("s_lshl_b32 s13, s13, 17"); A("s_add_u32 s79, s12, s13")
    A(f"v_lshlrev_b32 v{t0}, 4, v{N}"); A(f"v_lshl_add_u32 v{r['sb']}, v{G}, 13, v{t0}")
    A("s_waitcnt lgkmcnt(0)")
    A("s_load_dword s6, s[40:41], 0")
    srd(44, 40, WS_SIZE); srd(68, 22, 512*8192)
    if cfg["touch"] and cfg["touch_q"]:
        with only_wave("eq", 6):
            A("s_lshl_b32 s12, s72, 2"); A("s_add_u32 s12, s12, s73"); A("s_lshl_b32 s12, s12, 9"); A(f"s_add_u32 s12, s12, {WS_QPL}")
            A("s_mov_b32 exec_hi, 0"); A(f"buffer_load_dwordx4 {vr(acc,4)}, v{r['l16']}, s[44:47], s12 offen"); A("s_mov_b64 exec, -1")
    code_prefetch("L_P0", "L_P1", h2, t0)
    A("L_P0:")
    for i in range(cfg["wuk_pf"]):
        A(f"buffer_load_dwordx4 {vr(bq+4*i,4)}, v{r['sb']}, s[68:71], s79 offen {cfg['nt_uk']}")
        if i < 3: A(f"s_add_u32 s79, s79, {4*8192}")
    zr = r['fm']
    for e in range(4): A(f"v_mov_b32 v{zr+e}, 0")
    A("s_lshl_b32 s89, s75, 10"); A("s_lshl_b32 s12, s4, 7"); A("s_add_u32 s89, s89, s12"); A(f"s_add_u32 s89, s89, {WS_HC + HC2}")
    A("s_lshl_b32 s90, s75, 13"); A("s_lshl_b32 s12, s4, 10"); A("s_add_u32 s90, s90, s12"); A(f"s_add_u32 s90, s90, {WS_HC + HC3}")
    A(f"s_add_u32 s91, s12, {WS_HC + HC5}")
    A("s_lshl_b32 s12, s5, 3"); A("s_add_u32 s12, s12, s3")
    for key, so, ex in ((0, "s89", "0xff"), (8, "s89", "0xff"), (1, "s90", "-1"), (9, "s90", "-1"), (2, "s91", "-1")):
        with only_wave("eq", key, "s12"):
            A(f"s_mov_b64 exec, {ex}"); A(f"buffer_store_dwordx4 {vr(zr,4)}, v{r['l16']}, s[44:47], {so} offen sc1"); A("s_mov_b64 exec, -1")
    if cfg["gate_s"]: go_write("0", t0, r['sa'])
    srd(52, 18, 8192*1024); srd(56, 24, 512*8192); srd(48, 16, 1152); srd(64, 36, 1152)
    A(f"v_lshlrev_b32 v{r['l128']}, 7, v{LANE}")
    A("s_lshl_b32 s12, s3, 4"); A(f"v_add_u32 v{t0}, s12, v{N}"); A(f"v_mul_u32_u24 v{t0}, {CKS}, v{t0}")
    A(f"v_lshl_add_u32 v{r['qkb']}, v{G}, 4, v{t0}")
    A(f"v_lshrrev_b32 v{t0}, 2, v{N}"); A(f"v_lshl_add_u32 v{t0}, v{G}, 2, v{t0}"); A(f"v_mul_u32_u24 v{t0}, {CKS}, v{t0}")
    A(f"v_and_b32 v{t1}, 3, v{N}"); A(f"v_lshl_add_u32 v{t0}, v{t1}, 3, v{t0}")
    A("s_lshl_b32 s12, s3, 7"); A(f"v_add_u32 v{r['pva']}, s12, v{t0}"); A(f"v_add_u32 v{r['pvb']}, {64*CKS}, v{r['pva']}")
    A(f"v_bfe_u32 v{t0}, v{LANE}, 1, 2"); A("s_lshl_b32 s12, s3, 1"); A(f"v_xor_b32 v{t1}, s12, v{t0}")
    A(f"v_lshlrev_b32 v{t1}, 4, v{t1}"); A(f"v_lshl_add_u32 v{t1}, v{t0}, 8, v{t1}")
    A(f"v_lshrrev_b32 v{t0}, 3, v{LANE}"); A(f"v_mul_u32_u24 v{t0}, 1088, v{t0}"); A(f"v_add_u32 v{t1}, v{t1}, v{t0}")
    A(f"v_and_b32 v{t0}, 1, v{LANE}"); A(f"v_lshl_add_u32 v{t1}, v{t0}, 3, v{t1}"); A(f"v_add_u32 v{r['qbw']}, {P_QB}, v{t1}")
    A(f"v_xor_b32 v{t0}, v{N}, v{G}"); A(f"v_lshlrev_b32 v{t0}, 4, v{t0}"); A(f"v_lshl_add_u32 v{t0}, v{G}, 8, v{t0}")
    A(f"v_add_u32 v{r['qbr']}, {P_QB}, v{t0}")
    addr_q_style(R); addr_trq(R, P_WUV)
    A(f"v_lshlrev_b32 v{t0}, 5, v{N}"); A(f"v_add_u32 v{r['mxr']}, {P_MX}, v{t0}"); A("s_lshl_b32 s12, s3, 2"); A(f"v_add_u32 v{r['mxw']}, s12, v{r['mxr']}")
    A("s_lshr_b32 s12, s3, 1"); A("s_lshl_b32 s12, s12, 10"); A("s_and_b32 s13, s3, 1"); A("s_lshl_b32 s13, s13, 3"); A("s_add_u32 s12, s12, s13")
    A(f"v_add_u32 v{r['pfr']}, {P_PF}, v{r['l16']}"); A(f"v_add_u32 v{r['pfw']}, s12, v{r['pfr']}")
    A("s_mul_i32 s12, s3, 2304"); A(f"s_add_u32 s12, s12, {P_TB}")
    A(f"v_mul_u32_u24 v{t0}, 144, v{N}"); A(f"v_lshl_add_u32 v{t0}, v{G}, 3, v{t0}"); A(f"v_add_u32 v{r['tbw']}, s12, v{t0}")
    A(f"v_lshrrev_b32 v{t0}, 3, v{LANE}"); A(f"v_and_b32 v{t1}, 7, v{LANE}"); A(f"v_lshlrev_b32 v{t1}, 4, v{t1}")
    A(f"v_lshl_add_u32 v{r['pst']}, v{t0}, 16, v{t1}")
    A(f"v_mul_u32_u24 v{t0}, 144, v{t0}"); A(f"v_add3_u32 v{r['tbr']}, v{t0}, v{t1}, s12")
    A(f"v_lshlrev_b32 v{t0}, 4, v{N}"); A(f"v_lshl_add_u32 v{r['h3d']}, v{G}, 10, v{t0}")
    A(f"v_lshrrev_b32 v{t1}, 3, v{N}"); A(f"v_lshl_add_u32 v{t1}, v{t1}, 2, v{G}"); A(f"v_lshlrev_b32 v{r['h3m']}, 9, v{t1}")
    A(f"v_lshrrev_b32 v{t0}, 2, v{N}"); A(f"v_lshlrev_b32 v{t0}, 4, v{t0}")
    A(f"v_and_b32 v{t1}, 1, v{N}"); A(f"v_lshl_add_u32 v{t0}, v{t1}, 3, v{t0}")
    A(f"v_bfe_u32 v{t1}, v{N}, 1, 1"); A(f"v_lshl_add_u32 v{t0}, v{t1}, 1, v{t0}")
    A(f"v_lshrrev_b32 v{t1}, 1, v{G}"); A(f"v_lshl_add_u32 v{t0}, v{t1}, 2, v{t0}")
    A(f"v_and_b32 v{t1}, 1, v{G}"); A(f"v_add_u32 v{t0}, v{t0}, v{t1}")
    A("s_mul_i32 s12, s3, 272"); A(f"s_add_u32 s12, s12, {P_PB}"); A(f"v_lshl_add_u32 v{r['pbw']}, v{t0}, 2, s12")
    A(f"v_lshlrev_b32 v{t1}, 4, v{t1}"); A(f"v_add_u32 v{r['wmr']}, {P_MX}, v{t1}"); A(f"v_xor_b32 v{r['wmo']}, 16, v{r['wmr']}")
    A(f"v_and_b32 v{t0}, 7, v{N}"); A(f"v_mul_u32_u24 v{t0}, 272, v{t0}"); A(f"v_lshl_add_u32 v{t0}, v{G}, 4, v{t0}"); A(f"v_add_u32 v{r['pbr']}, {P_PB}, v{t0}")
    A("s_lshl_b32 s80, s99, 7"); A("s_lshl_b32 s12, s3, 2"); A("s_add_u32 s80, s80, s12"); A("s_lshl_b32 s80, s80, 13")
    A("s_lshl_b32 s12, s98, 8"); A("s_add_u32 s80, s80, s12"); A("s_lshl_b32 s81, s3, 10")
    stamp(15)
    if cfg["touch"]:
        with only_wave("lt", 6):
            A("s_lshl_b32 s12, s4, 4"); A("s_add_u32 s12, s12, s5")
            A("s_mul_i32 s12, s12, 4608"); A("s_add_u32 s12, s12, s81"); A(f"s_add_u32 s12, s12, {WS_GUL}")
            with only_wave("eq", 5):
                A("s_lshl_b32 s12, s98, 2"); A("s_add_u32 s12, s12, s99"); A("s_lshl_b32 s12, s12, 9"); A(f"s_add_u32 s12, s12, {WS_CPL}")
            with only_wave("ge", 4): A("s_mov_b32 exec_hi, 0")
            A(f"buffer_load_dwordx4 {vr(acc+4,4)}, v{r['l16']}, s[44:47], s12 offen"); A("s_mov_b64 exec, -1")
    nint = cfg["inter"]
    order = [("o", i) for i in range(8 - nint)] + [x for i in range(nint) for x in (("o", 8 - nint + i), ("p", i))]
    def rows(kind):
        for kind, i in (order if kind == "o" else [("p", i) for i in range(nint, 8)]):
            A(f"s_add_u32 s12, {'s76' if kind == 'o' else 's77'}, {i*8192}"); A(f"s_add_u32 s13, s78, {P_CK + (i + (0 if kind == 'o' else 8))*8*CKS}")
            dma(r['l16'], 52, "s12", "s13", cfg["nt_ck"])
    rows("o")
    if cfg["own_wait"] is not None: A(f"s_waitcnt vmcnt({cfg['own_wait']})")
    if cfg["own_bar"]: A("s_barrier")
    if cfg["h2_hint"]:
        with only_wave("eq", 0): A("s_mov_b64 exec, 1"); hint_read("s89", r['bad'], r['sa']); A("s_mov_b64 exec, -1")
    rows("p")
    A("s_waitcnt lgkmcnt(0)")
    tags(R)
    for j in range(4):
        A(f"v_bfe_u32 v{t0}, v{r['tagb']}, {2*j}, 1"); A(f"v_bfe_u32 v{t1}, v{r['tagb']}, {2*j+1}, 1")
        A(f"v_lshl_or_b32 v{r['tl']+j}, v{t1}, 16, v{t0}")
    A("s_lshl_b32 s79, s75, 4"); A("s_lshl_b32 s12, s3, 1"); A("s_add_u32 s79, s79, s12"); A("s_lshl_b32 s79, s79, 11"); A(f"s_add_u32 s79, s79, {WS_QA}")
    if cfg["qa_rep"] > 1: A(f"s_and_b32 s12, s4, {cfg['qa_rep']-1}"); A("s_lshl_b32 s12, s12, 16"); A("s_add_u32 s79, s79, s12")
    A(f"v_mov_b32 v{r['sb']}, {P_FR}")
    def frags(own):
        with only_wave("lt" if own else "ge", 4):
            for t in range(16): A(f"ds_read_b128 {ar(4*t,4)}, v{r['qkb']} offset:{64*t}")
        for v in ((0, 1) if own else (2, 3)):
            for u in range(4):
                for rd in range(2):
                    A(f"ds_read_b64_tr_b16 {ar(64 + (v*4+u)*4 + 2*rd, 2)}, v{r['pva'] if own else r['pvb']} offset:{(32*(v%2) + 16*rd)*CKS + 32*u}")
    def ld():
        for e in range(4): A(f"buffer_load_dwordx4 {vr(h2+4*e,4)}, v{r['l16']}, s[44:47], s79 offen offset:{1024*e} sc1")
    ck = lambda: check_f32(r['bad'], [h2, h2+4, h2+8, h2+12])
    stamp(1)
    A(f"s_waitcnt vmcnt({8 - nint})")
    if cfg["h2_hint"]:
        with only_wave("eq", 0):
            A("s_mov_b64 exec, 1"); A(f"ds_write_b32 v{r['sb']}, v{r['bad']}"); A("s_mov_b64 exec, -1"); A("s_waitcnt lgkmcnt(0)")
    A("s_barrier")
    stamp(2)
    if cfg["gate_s"]: go_write("s6", t0, r['sa'])
    def bt():
        frags(True)
        A("s_waitcnt vmcnt(4) lgkmcnt(0)"); A("s_barrier")
        frags(False)
    if cfg["h2_hint"]:
        NR = A.lab("notready"); JN = A.lab("gathered")
        A(f"ds_read_b32 v{r['bad']}, v{r['sb']}"); A("s_waitcnt lgkmcnt(0)"); A(f"v_readfirstlane_b32 s12, v{r['bad']}")
        A("s_cmp_lt_u32 s12, 16"); A(f"s_cbranch_scc1 {NR}")
        poll(ld, ck, between=bt, sid=0)
        A(f"s_branch {JN}")
        A(f"{NR}:")
        frags(True)
        A("s_waitcnt vmcnt(0) lgkmcnt(0)"); A("s_barrier")
        frags(False)
        hint_spin("s89", "1", 16, r['bad'], r['sa'], 4)
        stamp(14)
        poll(ld, ck, sid=0)
        A(f"{JN}:")
    else:
        poll(ld, ck, between=bt, sid=0)
    stamp(3)
    for e in range(16): A(f"v_and_b32 v{h2+e}, s7, v{h2+e}")
    for e in range(8): A(f"v_cvt_pk_bf16_f32 v{h2+e}, v{h2+2*e}, v{h2+2*e+1}")
    A(f"v_xor_b32 v{t0}, 16, v{r['qbw']}")
    A(f"ds_write_b64 v{r['qbw']}, {vr(h2,2)}"); A(f"ds_write_b64 v{r['qbw']}, {vr(h2+2,2)} offset:{8*1088}")
    A(f"ds_write_b64 v{t0}, {vr(h2+4,2)}"); A(f"ds_write_b64 v{t0}, {vr(h2+6,2)} offset:{8*1088}")
    for i in range(4):
        A(f"s_add_u32 s12, s80, {i*32*8192}"); A(f"s_add_u32 s13, s81, {P_WUV + i*8192}"); dma(r['offq'], 56, "s12", "s13")
    A("s_waitcnt lgkmcnt(0)"); A("s_barrier")
    stamp(4)
    s_ = r['s']
    for t in range(4): A(f"ds_read_b128 {vr(bq+4*t,4)}, v{r['qbr']} offset:{1088*t}")
    for t in range(16):
        A(f"s_waitcnt lgkmcnt({min(3, 15-t)})")
        A(f"v_mfma_f32_16x16x32_bf16 {vr(s_,4)}, {ar(4*t,4)}, {vr(bq+4*(t%4),4)}, {'0' if t == 0 else vr(s_,4)}")
        if t + 4 < 16: A(f"ds_read_b128 {vr(bq+4*(t%4),4)}, v{r['qbr']} offset:{1088*(t+4)}")
    A(f"s_mov_b32 s15, {hex(f2u(SCALE2))}")
    A(f"v_max3_f32 v{m}, v{s_}, v{s_+1}, v{s_+2}"); A(f"v_max_f32 v{m}, v{m}, v{s_+3}")
    allreduce_groups(m, t0, "v_max_f32")
    A("s_mov_b64 exec, 0xffff"); A(f"ds_write_b32 v{r['mxw']}, v{m}"); A("s_mov_b64 exec, -1")
    A("s_waitcnt lgkmcnt(0)"); A("s_barrier")
    stamp(5)
    A(f"ds_read_b128 {vr(bq,4)}, v{r['mxr']}"); A(f"ds_read_b128 {vr(bq+4,4)}, v{r['mxr']} offset:16")
    A("s_waitcnt lgkmcnt(0)")
    A(f"v_max3_f32 v{m}, v{bq}, v{bq+1}, v{bq+2}"); A(f"v_max3_f32 v{t0}, v{bq+3}, v{bq+4}, v{bq+5}")
    A(f"v_max3_f32 v{m}, v{m}, v{bq+6}, v{bq+7}"); A(f"v_max_f32 v{m}, v{m}, v{t0}")
    A(f"v_mul_f32 v{ms}, s15, v{m}")
    for e in range(4): A(f"v_fma_f32 v{s_+e}, v{s_+e}, s15, -v{ms}")
    for e in range(4): A(f"v_exp_f32 v{s_+e}, v{s_+e}")
    A(f"v_cvt_pk_bf16_f32 v{s_}, v{s_}, v{s_+1}"); A(f"v_cvt_pk_bf16_f32 v{s_+1}, v{s_+2}, v{s_+3}")
    A(f"ds_write_b64 v{r['pfw']}, {vr(s_,2)}")
    A("s_waitcnt lgkmcnt(0)"); A("s_barrier")
    for v in range(4): A(f"ds_read_b128 {vr(bq+4*v,4)}, v{r['pfr']} offset:{1024*v}")
    stamp(6)
    def h3_add():
        with only_wave("eq", 7):
            A("s_lshl_b32 s12, s75, 13"); A("s_lshl_b32 s13, s4, 7"); A("s_add_u32 s12, s12, s13"); A(f"s_add_u32 s12, s12, {WS_HC + HC3}")
            hint_add("s12", 10, t0, t1)
    if cfg["h3_hint"] == "pre": h3_add()
    for v in range(4):
        A(f"s_waitcnt lgkmcnt({3-v})")
        for u in range(4):
            A(f"v_mfma_f32_16x16x32_bf16 {vr(acc+4*u,4)}, {ar(64+(v*4+u)*4,4)}, {vr(bq+4*v,4)}, {'0' if v == 0 else vr(acc+4*u,4)}")
    with only_wave("eq", 0):
        for e in range(4): A(f"v_mov_b32 v{h2+e}, 0x3f803f80")
        for v in range(4): A(f"v_mfma_f32_16x16x32_bf16 {vr(r['accl'],4)}, {vr(h2,4)}, {vr(bq+4*v,4)}, {'0' if v == 0 else vr(r['accl'],4)}")
    A("s_lshl_b32 s79, s75, 20"); A("s_lshl_b32 s12, s74, 10"); A("s_add_u32 s79, s79, s12"); A("s_lshl_b32 s12, s3, 7"); A("s_add_u32 s79, s79, s12")
    A(f"s_add_u32 s79, s79, {WS_PART}"); A(f"s_add_u32 s84, s79, {8 << 16}")
    if cfg["h3_hint"] == "pre":
        with only_wave("eq", 1): A("s_mov_b64 exec, 0xff"); hint_read("s90", r['bad'], r['l128']); A("s_mov_b64 exec, -1")
    A("s_mov_b32 s15, 0x07060302")
    for u in range(4):
        A(f"v_perm_b32 v{acc+4*u}, v{acc+4*u+1}, v{acc+4*u}, s15"); A(f"v_perm_b32 v{acc+4*u+1}, v{acc+4*u+3}, v{acc+4*u+2}, s15")
        A(f"ds_write_b64 v{r['tbw']}, {vr(acc+4*u,2)} offset:{32*u}")
    A("s_mov_b32 s15, 0xfffefffe")
    A("s_waitcnt lgkmcnt(0)")
    A(f"ds_read_b128 {vr(bq,4)}, v{r['tbr']}"); A(f"ds_read_b128 {vr(bq+4,4)}, v{r['tbr']} offset:{8*144}")
    for hh in range(2):
        A(f"s_waitcnt lgkmcnt({1-hh})")
        for j in range(4): A(f"v_and_or_b32 v{bq+4*hh+j}, v{bq+4*hh+j}, s15, v{r['tl']+j}")
        A(f"buffer_store_dwordx4 {vr(bq+4*hh,4)}, v{r['pst']}, s[44:47], {'s79' if hh == 0 else 's84'} offen sc1")
    with only_wave("eq", 0):
        A(f"v_mov_b32 v{h2}, v{ms}"); A(f"v_mov_b32 v{h2+1}, v{r['accl']}"); A(f"v_mov_b32 v{h2+2}, s6"); A(f"v_mov_b32 v{h2+3}, s6")
        A("s_lshl_b32 s12, s75, 8"); A("s_lshl_b32 s13, s74, 9"); A("s_add_u32 s12, s12, s13"); A(f"s_add_u32 s12, s12, {WS_ML}")
        A("s_mov_b64 exec, 0xffff"); A(f"buffer_store_dwordx4 {vr(h2,4)}, v{r['l16']}, s[44:47], s12 offen sc1"); A("s_mov_b64 exec, -1")
    if cfg["h3_hint"] == "epi": h3_add()
    stamp(7)
    A("s_lshl_b32 s79, s98, 16"); A("s_lshl_b32 s12, s3, 13"); A("s_add_u32 s79, s79, s12"); A("s_lshl_b32 s12, s99, 8"); A("s_add_u32 s79, s79, s12")
    A(f"s_add_u32 s79, s79, {WS_PART}"); A("s_add_u32 s84, s79, 4096")
    A("s_lshl_b32 s74, s98, 4"); A("s_lshl_b32 s12, s3, 12"); A("s_add_u32 s74, s74, s12"); A(f"s_add_u32 s74, s74, {WS_ML}")
    mla = acc; mlb = acc + 4
    def uv_frags():
        with only_wave("lt", 4):
            A(f"v_xor_b32 v{t0}, 32, v{r['trq']}")
            for q in range(8):
                A(f"ds_read_b64_tr_b16 {ar(UVF+2*q,2)}, v{r['trq']} offset:{4096*q}"); A(f"ds_read_b64_tr_b16 {ar(UVF+16+2*q,2)}, v{t0} offset:{4096*q}")
        A("s_mov_b32 s15, 0x10000"); A("s_mov_b32 s13, 0xfffe0000"); A(f"v_mov_b32 v{t1}, 0x10000")
    if cfg["h3_hint"] == "pre":
        A("s_waitcnt vmcnt(2)")
        L = A.lab("hint"); D = A.lab("hinted")
        with only_wave("eq", 1):
            A("s_mov_b32 s14, 0"); A("s_mov_b64 exec, 0xff")
            A(f"{L}:")
            A(f"v_cmp_gt_u32 vcc, 8, v{r['bad']}"); A("s_add_u32 s14, s14, 1"); A(f"s_cmp_ge_u32 s14, {cfg['gate_cap']}"); A(f"s_cbranch_scc1 {D}")
            A("s_cmp_eq_u64 vcc, 0"); A(f"s_cbranch_scc1 {D}")
            hint_read("s90", r['bad'], r['l128']); A("s_waitcnt vmcnt(0)"); A(f"s_branch {L}")
            A(f"{D}:"); A("s_mov_b64 exec, -1")
            if cfg["stamps"]: A(f"v_writelane_b32 v0, s14, 29")
        A("s_barrier")
        bt = uv_frags
    elif cfg["h3_hint"]:
        A("s_waitcnt vmcnt(2)")
        hint_spin("s90", "0xff", 8, r['bad'], r['l128'], 5)
        bt = uv_frags
    else:
        A(f"s_waitcnt vmcnt({0 if cfg['h3_ack'] else 2})")
        def bt(): A("s_barrier"); uv_frags()
    stamp(21)
    def ld():
        A(f"buffer_load_dwordx4 {vr(mla,4)}, v{r['h3m']}, s[44:47], s74 offen sc1")
        A(f"buffer_load_dwordx4 {vr(bq,4)}, v{r['h3d']}, s[44:47], s79 offen sc1")
        A(f"buffer_load_dwordx4 {vr(bq+4,4)}, v{r['h3d']}, s[44:47], s84 offen sc1")
    def ck():
        A(f"v_xor_b32 v{r['bad']}, v{bq}, v{r['tl']}")
        for e in range(1, 8): A(f"v_bitop3_b32 v{r['bad']}, v{bq+e}, v{r['tl']+e%4}, v{r['bad']} bitop3:0xbe")
        A(f"v_and_b32 v{r['bad']}, 0x10001, v{r['bad']}")
        A(f"v_bitop3_b32 v{r['bad']}, v{mla+2}, s6, v{r['bad']} bitop3:0xbe")
        A(f"v_cmp_ne_u32 vcc, 0, v{r['bad']}")
    poll(ld, ck, wqm=True, between=bt, sid=1)
    stamp(8)
    un = h2; lw = m + 1
    def unpack(e):
        A(f"v_lshl_or_b32 v{un+2*e}, v{bq+e}, 16, s15"); A(f"v_and_or_b32 v{un+2*e+1}, v{bq+e}, s13, v{t1}")
    A(f"v_max_f32_dpp v{m}, v{mla}, v{mla} row_ror:8 {DPPALL}"); A(f"v_mov_b32 v{t0}, v{m}"); unpack(0)
    A(f"v_permlane16_swap_b32 v{m}, v{t0}"); A(f"v_max_f32 v{m}, v{m}, v{t0}"); A(f"v_mov_b32 v{t0}, v{m}"); unpack(1)
    A(f"v_permlane32_swap_b32 v{m}, v{t0}"); A(f"v_max_f32 v{m}, v{m}, v{t0}")
    A(f"v_sub_f32 v{mla}, v{mla}, v{m}"); A(f"v_exp_f32 v{mla}, v{mla}")
    unpack(2); unpack(3)
    A(f"v_mul_f32 v{lw}, v{mla}, v{mla+1}")
    A(f"v_mov_b32_dpp v{mlb}, v{mla} row_newbcast:8 {DPPALL}"); A(f"v_mov_b32_dpp v{mla}, v{mla} row_newbcast:0 {DPPALL}")
    for e in range(4, 8): unpack(e)
    A(f"v_add_f32_dpp v{lw}, v{lw}, v{lw} row_ror:8 {DPPALL}")
    for e in range(8): A(f"v_mul_f32 v{un+e}, v{un+e}, v{mla}")
    for e in range(8): A(f"v_fmac_f32 v{un+e}, v{un+8+e}, v{mlb}")
    for e in range(4): A(f"v_permlane32_swap_b32 v{un+e}, v{un+4+e}")
    A(f"v_mov_b32 v{t0}, v{lw}")
    for e in range(4): A(f"v_add_f32 v{un+e}, v{un+e}, v{un+4+e}")
    A(f"v_permlane16_swap_b32 v{lw}, v{t0}")
    for e in range(2): A(f"v_permlane16_swap_b32 v{un+e}, v{un+2+e}")
    A(f"v_add_f32 v{lw}, v{lw}, v{t0}")
    for e in range(2): A(f"v_add_f32 v{un+e}, v{un+e}, v{un+2+e}")
    A(f"v_mov_b32 v{t0}, v{lw}")
    A(f"v_cvt_pk_bf16_f32 v{un}, v{un}, v{un+1}")
    A(f"ds_write_b32 v{r['pbw']}, v{un}")
    A(f"v_permlane32_swap_b32 v{lw}, v{t0}"); A(f"v_add_f32 v{lw}, v{lw}, v{t0}")
    A("s_mov_b64 exec, 1"); A(f"ds_write2_b32 v{r['mxw']}, v{m}, v{lw} offset0:0 offset1:8"); A("s_mov_b64 exec, -1")
    A("s_waitcnt lgkmcnt(0)"); A("s_barrier")
    with only_wave("lt", 4):
        fm = r['fm']
        A(f"ds_read_b128 {vr(fm,4)}, v{r['wmr']}"); A(f"ds_read_b128 {vr(fm+4,4)}, v{r['wmo']}")
        for v in range(4): A(f"ds_read_b128 {vr(bq+4*v,4)}, v{r['pbr']} offset:{64*v}")
        A(f"ds_read_b128 {vr(fm+8,4)}, v{r['wmr']} offset:32")
        A("s_lshl_b32 s12, s98, 11"); A("s_lshl_b32 s13, s99, 9"); A("s_add_u32 s12, s12, s13"); A("s_lshl_b32 s13, s3, 7"); A("s_add_u32 s12, s12, s13"); A(f"s_add_u32 s76, s12, {WS_CP}")
        da = acc; db = acc + 4
        def uvm(v):
            A(f"s_waitcnt lgkmcnt({4-v})")
            for t, dd in ((0, da), (1, db)): A(f"v_mfma_f32_16x16x32_bf16 {vr(dd,4)}, {vr(bq+4*v,4)}, {ar(UVF+16*t+4*v,4)}, {'0' if v == 0 else vr(dd,4)}")
        uvm(0)
        A(f"v_max3_f32 v{m}, v{fm}, v{fm+1}, v{fm+2}"); A(f"v_max3_f32 v{t0}, v{fm+3}, v{fm+4}, v{fm+5}")
        A(f"v_max3_f32 v{m}, v{m}, v{fm+6}, v{fm+7}"); A(f"v_max_f32 v{m}, v{m}, v{t0}")
        uvm(1)
        for e in range(4): A(f"v_sub_f32 v{fm+e}, v{fm+e}, v{m}")
        uvm(2)
        for e in range(4): A(f"v_exp_f32 v{fm+e}, v{fm+e}")
        uvm(3)
        A("s_waitcnt lgkmcnt(0)")
        A(f"v_mul_f32 v{lw}, v{fm}, v{fm+8}")
        for e in range(1, 4): A(f"v_fmac_f32 v{lw}, v{fm+e}, v{fm+8+e}")
        A(f"v_mov_b32 v{t0}, v{lw}"); A(f"v_permlane16_swap_b32 v{lw}, v{t0}"); A(f"v_add_f32 v{lw}, v{lw}, v{t0}"); A(f"v_rcp_f32 v{lw}, v{lw}")
        for dd in (da, db):
            A(f"v_mul_f32 v{dd}, v{dd}, v{fm}")
            for e in range(1, 4): A(f"v_fmac_f32 v{dd}, v{dd+e}, v{fm+e}")
        A(f"v_permlane16_swap_b32 v{da}, v{db}"); A(f"v_add_f32 v{da}, v{da}, v{db}")
        A(f"v_mul_f32 v{da}, v{da}, v{lw}")
        tag_dword(da, R)
        A("s_mov_b32 exec_hi, 0"); store2(da, r['sa'], "s76", 0, WS_CPL - WS_CP); A("s_mov_b64 exec, -1")
    stamp(9)
    A("s_lshr_b32 s12, s5, 1"); A("s_lshl_b32 s12, s12, 3"); A("s_add_u32 s12, s12, s4")
    A("s_cmp_ge_u32 s12, 18"); A("s_cbranch_scc1 L_Pend")
    A("s_lshl_b32 s74, s12, 1"); A("s_add_u32 s74, s74, s75")
    A(f"v_lshrrev_b32 v{t0}, 2, v{LANE}"); A(f"v_mul_u32_u24 v{t0}, 2304, v{t0}")
    A(f"v_and_b32 v{t1}, 3, v{LANE}"); A(f"v_lshl_add_u32 v{r['sb']}, v{t1}, 4, v{t0}")
    A("s_mul_i32 s79, s3, 16*2304"); A("s_lshl_b32 s12, s74, 6"); A("s_add_u32 s79, s79, s12"); A(f"s_add_u32 s79, s79, {WS_OP}")
    A(f"v_lshlrev_b32 v{r['sc']}, 1, v{N}"); A("s_lshl_b32 s75, s74, 5")
    A(f"buffer_load_ushort v{r['xres']}, v{r['sc']}, s[48:51], s75 offen")
    A(f"v_lshrrev_b32 v{t0}, 5, v{LANE}"); A(f"v_lshl_add_u32 v{t1}, v{t1}, 1, v{t0}")
    A(f"v_bfe_u32 v{t0}, v{LANE}, 4, 1"); A(f"v_lshl_add_u32 v{t1}, v{t1}, 1, v{t0}")
    A("s_lshl_b32 s12, s3, 2"); A(f"s_add_u32 s12, s12, {P_FR}"); A(f"v_lshl_add_u32 v{t1}, v{t1}, 5, s12")
    A(f"v_lshlrev_b32 v{t0}, 5, v{N}"); A(f"v_add_u32 v{t0}, {P_FR}, v{t0}")
    A("s_mov_b32 s84, 0x000f000f"); A("s_mov_b32 s85, 0x000f000f")
    if cfg["h5_hint"]: hint_spin("s91", "0xff", 16, r['bad'], r['l128'], 6)
    stamp(22)
    poll(lambda: A(f"buffer_load_dwordx4 {vr(h2,4)}, v{r['sb']}, s[44:47], s79 offen sc1"), lambda: check_f32(r['bad'], [h2]), sid=3)
    stamp(12)
    for e in range(4): A(f"v_and_b32 v{h2+e}, s7, v{h2+e}")
    A(f"v_permlane32_swap_b32 v{h2}, v{h2+2}"); A(f"v_permlane32_swap_b32 v{h2+1}, v{h2+3}")
    A(f"v_add_f32 v{h2}, v{h2}, v{h2+2}"); A(f"v_add_f32 v{h2+1}, v{h2+1}, v{h2+3}")
    A(f"v_permlane16_swap_b32 v{h2}, v{h2+1}"); A(f"v_add_f32 v{h2}, v{h2}, v{h2+1}")
    for rr in (8, 4): A(f"v_add_f32_dpp v{h2}, v{h2}, v{h2} row_ror:{rr} {DPPALL}")
    A("s_mov_b64 exec, s[84:85]")
    A(f"ds_write_b32 v{t1}, v{h2}")
    A("s_mov_b64 exec, -1")
    A("s_waitcnt lgkmcnt(0)"); A("s_barrier")
    A("s_cmp_lg_u32 s3, 0"); A("s_cbranch_scc1 L_Pend")
    A(f"ds_read_b128 {vr(h2,4)}, v{t0}"); A(f"ds_read_b128 {vr(h2+4,4)}, v{t0} offset:16")
    A(f"v_lshlrev_b32 v{r['xres']}, 16, v{r['xres']}")
    A("s_waitcnt lgkmcnt(0)")
    for st in (4, 2, 1):
        for e in range(st): A(f"v_add_f32 v{h2+e}, v{h2+e}, v{h2+e+st}")
    A(f"v_add_f32 v{h2}, v{h2}, v{r['xres']}"); A(f"v_cvt_pk_bf16_f32 v{h2}, v{h2}, v{h2}")
    A("s_mov_b64 exec, 0xffff")
    A(f"buffer_store_short v{h2}, v{r['sc']}, s[64:67], s75 offen")
    A("s_cmp_lg_u32 s74, 0"); A("s_cbranch_scc1 L_Pend")
    A("s_mov_b64 exec, 1"); A(f"v_mov_b32 v{t0}, s6")
    A(f"buffer_store_dword v{t0}, v{r['sa']}, s[44:47], 0 offen sc1")
    A("L_Pend:")
    stamp(13)
    write_stamps()
    A("L_exit:")
    A("s_endpgm")
    A("L_P1:")
    body = A.finish(verbose=cfg.get("verbose", False))
    head = open("parallel_sum__compressed_kv_cla__glu_gated_glu__decode.s.ref").read().split("; Override launch")[0]
    head += f"; @launch grid=(256,1,1) block=(512,1,1) lds={LDS}\n"
    head += '.amdgcn_target "amdgcn-amd-amdhsa--gfx950"\n.text\n' + f".globl {NAME}\n.p2align 8\n.type {NAME},@function\n"
    tail = f""".section .rodata,"a"
.p2align 6
.amdhsa_kernel {NAME}
  .amdhsa_next_free_vgpr 256
  .amdhsa_next_free_sgpr 102
  .amdhsa_accum_offset 128
  .amdhsa_group_segment_fixed_size 0
  .amdhsa_kernarg_size 104
  .amdhsa_user_sgpr_count 2
  .amdhsa_user_sgpr_kernarg_segment_ptr 1
  .amdhsa_system_sgpr_workgroup_id_x 1
  .amdhsa_float_denorm_mode_32 3
.end_amdhsa_kernel
"""
    return head + body + tail

if __name__ == "__main__":
    out = sys.argv[1] if len(sys.argv) > 1 else "k.s"
    kw = eval("dict(" + (sys.argv[2] if len(sys.argv) > 2 else "") + ")")
    open(out, "w").write(generate(verbose=True, **kw))
```
